```python
import torch

def _softmax(x, axis=-1):
    return torch.softmax(x, dim=axis)
def _gelu(x):
    return torch.nn.functional.gelu(x, approximate="tanh")
def _silu(x):
    return torch.nn.functional.silu(x)
def _sigmoid(x):
    return torch.sigmoid(x)
def _layernorm(x, axis=-1, eps=1e-5):
    m = x.mean(dim=axis, keepdim=True)
    v = x.var(dim=axis, keepdim=True, unbiased=False)
    return (x - m) / torch.sqrt(v + eps)
def _scatter_add(tgt, idx, src, axis=0):
    return tgt.clone().index_add_(axis, idx, src)
def _segment_sum(src, seg, n):
    out = torch.zeros((n,) + src.shape[1:], dtype=src.dtype)
    return out.index_add_(0, seg, src)
def _pad(x, pw):
    flat = tuple(v for pair in reversed(pw) for v in pair)
    return torch.nn.functional.pad(x, flat)

kernel_name = 'recurrent_scan__sliding_block_cached__dense_activation_relu__decode'

def setup_inputs():

    _w = (lambda a: (lambda t: t.to(torch.bfloat16) if t.is_floating_point() else t)(torch.as_tensor(a)))
    def _A_setup():
        B, Sq, D = 4, 1, 512
        Hq, Hkv, Sk, Dh = 32, 8, 16384, 128
        assert Hq % Hkv == 0, (Hq, Hkv)
        return {
            "x": _w((lambda *s: torch.randn(*s, dtype=torch.bfloat16) * 0.05)(B, Sq, D)),
            "k_cache": _w((lambda *s: torch.randn(*s, dtype=torch.bfloat16) * 1.6)(B, Hkv, Sk, Dh)),
            "v_cache": _w((lambda *s: torch.randn(*s, dtype=torch.bfloat16) * 0.2)(B, Hkv, Sk, Dh)),
            "wq": _w((lambda *s: torch.randn(*s, dtype=torch.bfloat16) * 1.6)(D, Hq * Dh) * (D ** -0.5)),
            "wo": _w((lambda *s: torch.randn(*s, dtype=torch.bfloat16) * 0.2)(Hq * Dh, D) * ((Hq * Dh) ** -0.5)),
        }
    _A_in = _A_setup()

    def _B_setup():
        B, S, D, Dff = 4, 1, 512, 1792
        return {
            "x": _w((lambda *s: torch.randn(*s, dtype=torch.bfloat16) * 0.05)(B, S, D)),
            "w1": _w((lambda *s: torch.randn(*s, dtype=torch.bfloat16) * 0.1)(D, Dff)),
            "w2": _w((lambda *s: torch.randn(*s, dtype=torch.bfloat16) * 0.1)(Dff, D)),
        }
    _B_in = _B_setup()

    return {
        "A_x": _A_in["x"],
        "A_k_cache": _A_in["k_cache"],
        "A_v_cache": _A_in["v_cache"],
        "A_wq": _A_in["wq"],
        "A_wo": _A_in["wo"],
        "B_x": _B_in["x"],
        "B_w1": _B_in["w1"],
        "B_w2": _B_in["w2"],
    }

def reference(A_x, A_k_cache, A_v_cache, A_wq, A_wo, B_x, B_w1, B_w2):
    def _A_ref(x, k_cache, v_cache, wq, wo):
        B, Sq, D = x.shape
        Hq, Dh = 32, 128
        Hkv, Sk = k_cache.shape[1], k_cache.shape[2]
        W = min(4096, max(256, Sk // 4))
        rep = Hq // Hkv
        q = (lambda x, *d: x.permute(*d))((x @ wq).reshape(B, Sq, Hq, Dh), 0, 2, 1, 3)
        k = (lambda x, n, axis: torch.repeat_interleave(x, n, dim=axis))(k_cache[:, :, Sk - W:, :], rep, axis=1)
        v = (lambda x, n, axis: torch.repeat_interleave(x, n, dim=axis))(v_cache[:, :, Sk - W:, :], rep, axis=1)
        scores = torch.einsum("bhqd,bhkd->bhqk", q, k) * (Dh ** -0.5)
        p = _softmax(scores, axis=-1)
        o = torch.einsum("bhqk,bhkd->bhqd", p, v)
        return (lambda x, *d: x.permute(*d))(o, 0, 2, 1, 3).reshape(B, Sq, Hq * Dh) @ wo

    def _B_ref(x, w1, w2):
        h = torch.einsum("bsd,df->bsf", x, w1)
        zero = torch.zeros_like(h)
        h = torch.maximum(h, zero)
        return torch.einsum("bsf,fd->bsd", h, w2)

    x = A_x
    xn = _layernorm(x, axis=-1)
    s = _A_ref(xn, A_k_cache, A_v_cache, A_wq, A_wo)
    g = _silu(_B_ref(xn, B_w1, B_w2))
    return x + s * g
```

```python
import re

def _regs(tok):
    tok = tok.strip()
    tok = tok.lstrip('-')
    if tok.startswith('abs(') or tok.startswith('|'):
        tok = tok.replace('abs(', '').replace(')', '').replace('|', '')
    m = re.fullmatch(r'([vsa])\[(\d+):(\d+)\]', tok)
    if m:
        return [(m.group(1), i) for i in range(int(m.group(2)), int(m.group(3)) + 1)]
    m = re.fullmatch(r'([vsa])(\d+)', tok)
    if m:
        return [(m.group(1), int(m.group(2)))]
    if tok in ('vcc', 'vcc_lo', 'vcc_hi'):
        return [('vcc', 0)]
    if tok == 'm0':
        return [('m0', 0)]
    if tok in ('exec', 'exec_lo', 'exec_hi'):
        return [('exec', 0)]
    return []

TRANS = ('v_exp_f32', 'v_log_f32', 'v_rcp_f32', 'v_rsq_f32', 'v_sqrt_f32', 'v_sin_f32', 'v_cos_f32')

class Inst:
    def __init__(self, text):
        self.text = text
        t = text.split(';')[0].strip()
        parts = t.split(None, 1)
        self.op = parts[0]
        rest = parts[1] if len(parts) > 1 else ''
        self.mods = rest
        ops = [o.strip() for o in re.split(r',(?![^\[]*\])', rest)] if rest else []
        clean = []
        for o in ops:
            clean.append(o.split()[0] if o else o)
        self.ops = clean
        op = self.op
        self.kind = 'other'
        self.w = []
        self.r = []
        self.nop = 0
        R = lambda i: _regs(clean[i]) if i < len(clean) else []
        base = re.sub(r'_e32$|_e64$|_dpp$', '', op)
        self.base = base
        if op == 's_nop':
            self.kind = 'nop'; self.nop = int(clean[0], 0)
        elif op.startswith('v_mfma'):
            self.kind = 'mfma'
            self.w = R(0); self.rA = R(1); self.rB = R(2); self.rC = R(3)
            self.r = self.rA + self.rB + self.rC
            self.passes = 8 if '32x32' in op else 4
        elif op.startswith('v_'):
            self.kind = 'valu'
            self.trans = base in TRANS
            self.dpp = ('quad_perm' in rest or 'row_' in rest or op.endswith('_dpp'))
            self.permlane = base.startswith('v_permlane')
            self.readlane = base in ('v_readfirstlane_b32', 'v_readlane_b32')
            if self.permlane:
                self.w = R(0) + R(1); self.r = R(0) + R(1)
            else:
                self.w = R(0)
                self.r = sum((R(i) for i in range(1, len(clean))), [])
                if base in ('v_fmac_f32', 'v_dot2c_f32_bf16', 'v_pk_fmac_f16', 'v_writelane_b32'):
                    self.r += R(0)
                if self.dpp and base.startswith('v_mov'):
                    self.r += []
                if base.startswith('v_cndmask') and len(clean) == 3:
                    self.r += [('vcc', 0)]
                if base.startswith('v_cmp') and len(clean) == 2:
                    self.w = [('vcc', 0)]; self.r = R(0) + R(1)
        elif op.startswith('ds_'):
            self.kind = 'ds'
            if op.startswith('ds_read') or '_rtn_' in op or op.startswith('ds_bpermute') or op.startswith('ds_swizzle') or op.startswith('ds_permute'):
                self.w = R(0); self.r = sum((R(i) for i in range(1, len(clean))), [])
            else:
                self.r = sum((R(i) for i in range(len(clean))), [])
            self.store_data = []
        elif op.startswith('buffer_') or op.startswith('global_'):
            self.kind = 'vmem'
            self.lds = bool(re.search(r'\blds\b', rest)) or '_lds_' in op
            is_store = 'store' in op or ('atomic' in op)
            self.is_store = is_store
            allr = [R(i) for i in range(len(clean))]
            if is_store:
                self.r = sum(allr, [])
                if op.startswith('buffer_'):
                    self.store_data = allr[0]
                else:
                    self.store_data = allr[1]
                self.wide = bool(re.search(r'x3|x4', op))
            elif self.lds:
                self.r = sum(allr, []) + [('m0', 0)]
            else:
                self.w = allr[0]; self.r = sum(allr[1:], [])
        elif op.startswith('s_'):
            self.kind = 'salu'
            if op.startswith('s_cmp') or op.startswith('s_bitcmp') or op.startswith('s_cbranch') or op in ('s_branch', 's_waitcnt', 's_barrier', 's_endpgm', 's_sleep', 's_setprio'):
                self.r = sum((R(i) for i in range(len(clean))), [])
            else:
                self.w = R(0); self.r = sum((R(i) for i in range(1, len(clean))), [])
                if 'saveexec' in op:
                    self.w += [('exec', 0)]
        else:
            raise ValueError('unknown op ' + text)

def need(p, c):
    n = 0
    pw = set(p.w)
    if p.kind == 'valu':
        vw = {x for x in pw if x[0] == 'v'}
        sw = {x for x in pw if x[0] in ('s', 'vcc')}
        if vw:
            if c.kind == 'mfma' and vw & set(c.r): n = max(n, 2)
            if c.kind == 'valu':
                if c.dpp and vw & set(c.r): n = max(n, 2)
                if c.permlane and vw & set(c.r): n = max(n, 2)
                if c.readlane and vw & set(c.r): n = max(n, 1)
                if p.trans and not c.trans and vw & set(c.r): n = max(n, 1)
        if sw:
            if c.kind == 'valu' and sw & set(c.r): n = max(n, 4 if c.readlane else 2)
            if c.kind == 'vmem' and sw & set(c.r): n = max(n, 5)
        if ('exec', 0) in pw:
            raise ValueError('VALU writes exec: not supported')
    if p.kind == 'mfma':
        D = set(p.w)
        big = {4: 8, 8: 12}[p.passes]
        if c.kind == 'mfma':
            if D & (set(c.rA) | set(c.rB)): n = max(n, big)
            if D & set(c.rC):
                if not (c.rC == p.w and c.passes == p.passes): n = max(n, {4: 6, 8: 10}[p.passes])
            if D & set(c.w) and not (c.rC == p.w):
                n = max(n, {4: 6, 8: 10}[p.passes])
        elif c.kind == 'valu':
            if D & (set(c.r) | set(c.w)): n = max(n, big)
        elif c.kind in ('vmem', 'ds'):
            if D & (set(c.r) | set(c.w)): n = max(n, big)
        if c.kind == 'valu' and set(p.rC) & set(c.w): n = max(n, {4: 3, 8: 7}[p.passes])
    if p.kind == 'salu':
        if ('m0', 0) in pw and c.kind == 'vmem' and getattr(c, 'lds', False): n = max(n, 1)
    if p.kind == 'vmem' and getattr(p, 'is_store', False) and getattr(p, 'wide', False):
        if c.kind == 'valu' and set(p.store_data) & set(c.w): n = max(n, 2)
        elif c.kind in ('vmem', 'ds', 'mfma') and set(p.store_data) & set(c.w): n = max(n, 1)
    return n

MAXLOOK = 16

class Asm:
    def __init__(self):
        self.out = []
        self.hist = []
        self.uid = 0
        self.ninst = 0
        self.nbytes_est = 0
    def _age(self, k):
        self.hist = [(i, d + k) for (i, d) in self.hist if d + k <= MAXLOOK]
    def raw(self, s):
        self.out.append(s)
    def comment(self, s):
        self.out.append('    ; ' + s)
    def __call__(self, text):
        for l in text.split('\n'):
            l = l.strip()
            if not l: continue
            if l.startswith(';'):
                self.out.append('    ' + l); continue
            self.emit(l)
    def emit(self, l):
        c = Inst(l)
        req = 0
        for (p, d) in self.hist:
            n = need(p, c)
            if n > d: req = max(req, n - d)
        if c.kind == 'nop':
            self.out.append('    ' + l); self._age(c.nop + 1); return
        while req > 0:
            k = min(req, 16)
            self.out.append(f'    s_nop {k-1}')
            self._age(k); req -= k
        self.out.append('    ' + l)
        self._age(1)
        self.hist.append((c, 0))
        self.ninst += 1
    def flush(self, maxn=None):
        req = 0
        for (p, d) in self.hist:
            worst = 0
            if p.kind == 'valu':
                worst = 2
                if any(x[0] in ('s', 'vcc') for x in p.w): worst = 5
            elif p.kind == 'mfma': worst = {4: 8, 8: 12}[p.passes]
            elif p.kind == 'salu' and ('m0', 0) in p.w: worst = 1
            elif p.kind == 'vmem' and getattr(p, 'is_store', False) and getattr(p, 'wide', False): worst = 2
            if worst > d: req = max(req, worst - d)
        if req > 0:
            self.out.append(f'    s_nop {req-1}')
            self._age(req)
        self.hist = []
    def label(self, name, flush=True):
        if flush: self.flush()
        self.out.append(name + ':')
    def branch(self, text, flush=True):
        if flush: self.flush()
        self.out.append('    ' + text)
        self._age(1)
    def new(self, prefix='L'):
        self.uid += 1
        return f'{prefix}_{self.uid}'
    def text(self):
        return '\n'.join(self.out) + '\n'
```

```python
import sys, os
sys.path.insert(0, os.path.dirname(os.path.abspath(__file__)))
from dsl import Asm

KNAME = "recurrent_scan__sliding_block_cached__dense_activation_relu__decode_kernel"
REF = "recurrent_scan__sliding_block_cached__dense_activation_relu__decode.s.ref"

V_BASE = 0
XN_BASE = 0
WQ_BASE = 131072
W1_BASE = 147456
P_BASE = 155648
P_STRIDE = 1088
Q_BASE = 160000
MX_BASE = 161024
LX_BASE = 161152
SC_BASE = 161280
CNT_BASE = 161312
LDS_SIZE = 163840
C_W, C_QS, C_KI, C_CLKQ, C_QRDY, C_M, C_P, C_SC = [4 * i for i in range(8)]
C_PROG = 32
C_Y = 48
QBUF = 0x10000
HBUF = 0x60000
MLBUF = 0xA0000
OBUF = 0xB0000
YBUF = 0x140000
SBUF = 0x200000
WS_USED = 0x300000
DIAG = 0x800000
TAGM = 0x3FF
LOG2E = 0x3fb8aa3b
SCALE = 0x3db504f3
EPS = 0x3727c5ac

class Cfg:
    KW = 4
    VW = 8
    K8_AT = 10
    KI_TARGET = 4
    ROT = "hash"
    STAMP = False
    LDS_LIMIT = 1 << 20
    G_LIMIT = 1 << 15
    NT = " nt"
    PRIO_AUX = 3
    PRIO_LD = 2
    POLL_SLEEP = 0

def build(cfg=Cfg):
    a = Asm()
    NT = cfg.NT
    stamp_idx = {}
    def stamp(i):
        if cfg.STAMP:
            a(f"s_memrealtime s[{64+2*i}:{65+2*i}]")
    def stamps_out(n):
        if cfg.STAMP:
            a("s_waitcnt lgkmcnt(0)")
            a("s_lshl_b32 s9, s2, 4")
            a("s_add_u32 s9, s9, s3")
            a("s_lshl_b32 s9, s9, 6")
            a(f"s_add_u32 s9, s9, {DIAG}")
            a("s_add_u32 s10, s36, s9"); a("s_addc_u32 s11, s37, 0")
            a("v_mov_b32 v4, 0")
            a("s_mov_b64 exec, 1")
            for i in range(n):
                a(f"v_mov_b32 v5, s{64+2*i}")
                a(f"global_store_dword v4, v5, s[10:11] offset:{4*i}")
            a("s_mov_b64 exec, -1")
    def fail_to(code):
        a(f"s_mov_b32 s61, {code}")
        a.branch("s_branch L_fail")
    def lds_wait(off, target, code, vt="v24", sleep=1, keep=None):
        L, D = a.new("Lw"), a.new("Ld")
        a("s_mov_b32 s60, 0")
        a.label(L)
        a(f"ds_read_b32 {vt}, v2 offset:{off}")
        a("s_waitcnt lgkmcnt(0)")
        a(f"v_readfirstlane_b32 s62, {vt}")
        a(f"s_cmp_ge_u32 s62, {target}")
        a.branch(f"s_cbranch_scc1 {D}")
        if sleep: a(f"s_sleep {sleep}")
        a("s_add_u32 s60, s60, 1")
        a(f"s_cmp_lt_u32 s60, {cfg.LDS_LIMIT}")
        a.branch(f"s_cbranch_scc1 {L}")
        fail_to(code)
        a.label(D)
    def prog_wait(target, code, vt=24, sleep=1):
        L, D = a.new("Lp"), a.new("Ld")
        a("s_mov_b32 s60, 0")
        a.label(L)
        a(f"ds_read_b128 v[{vt}:{vt+3}], v2 offset:{C_PROG}")
        a("s_waitcnt lgkmcnt(0)")
        a(f"v_min_u32 v{vt}, v{vt}, v{vt+1}")
        a(f"v_min3_u32 v{vt}, v{vt}, v{vt+2}, v{vt+3}")
        a(f"v_readfirstlane_b32 s62, v{vt}")
        a(f"s_cmp_ge_u32 s62, {target}")
        a.branch(f"s_cbranch_scc1 {D}")
        if sleep: a(f"s_sleep {sleep}")
        a("s_add_u32 s60, s60, 1")
        a(f"s_cmp_lt_u32 s60, {cfg.LDS_LIMIT}")
        a.branch(f"s_cbranch_scc1 {L}")
        fail_to(code)
        a.label(D)
    def lds_add1(off, vone):
        a("s_mov_b64 exec, 1")
        a(f"ds_add_u32 v2, {vone} offset:{off}")
        a("s_mov_b64 exec, -1")
    def srd(dst, lo, hi, size, add=None):
        if add is None:
            a(f"s_mov_b32 s{dst}, s{lo}"); a(f"s_mov_b32 s{dst+1}, s{hi}")
        else:
            a(f"s_add_u32 s{dst}, s{lo}, {add}"); a(f"s_addc_u32 s{dst+1}, s{hi}, 0")
        a(f"s_mov_b32 s{dst+2}, {size}")
        a(f"s_mov_b32 s{dst+3}, 0x20000")
    def tag4(regs, vtag):
        for r in regs: a(f"v_add_u32 v{r}, 0x200, v{r}")
        for r in regs: a(f"v_and_or_b32 v{r}, v{r}, s58, v{vtag}")
    def untag(regs, vtag, acc, first):
        for r in regs: a(f"v_xor_b32 v{r}, v{vtag}, v{r}")
        it = list(regs)
        if first:
            a(f"v_or3_b32 v{acc}, v{it[0]}, v{it[1]}, v{it[2]}"); it = it[3:]
        while len(it) >= 2:
            a(f"v_or3_b32 v{acc}, v{it[0]}, v{it[1]}, v{acc}"); it = it[2:]
        if it: a(f"v_or_b32 v{acc}, v{it[0]}, v{acc}")
    def poll(loads, regs, vtag, acc, code, pre=None):
        L, D = a.new("Lg"), a.new("Ld")
        a("s_mov_b32 s60, 0")
        a.label(L)
        if pre: pre()
        for l in loads: a(l)
        if pre: a("s_mov_b64 exec, -1")
        a("s_waitcnt vmcnt(0)")
        untag(regs, vtag, acc, True)
        a(f"v_and_b32 v{acc}, {TAGM}, v{acc}")
        a(f"v_cmp_ne_u32 vcc, 0, v{acc}")
        a("s_cmp_eq_u64 vcc, 0")
        a.branch(f"s_cbranch_scc1 {D}")
        if cfg.POLL_SLEEP: a(f"s_sleep {cfg.POLL_SLEEP}")
        a("s_add_u32 s60, s60, 1")
        a(f"s_cmp_lt_u32 s60, {cfg.G_LIMIT}")
        a.branch(f"s_cbranch_scc1 {L}")
        fail_to(code)
        a.label(D)
    def bf16r(dst, src, tmp=None):
        a(f"v_cvt_pk_bf16_f32 v{dst}, v{src}, v{src}")
        a(f"v_lshlrev_b32 v{dst}, 16, v{dst}")
    DPP = {"x1": "quad_perm:[1,0,3,2]", "x2": "quad_perm:[2,3,0,1]", "r4": "row_ror:4", "r8": "row_ror:8"}
    def dpp_op(op, reg, kind):
        a(f"{op}_dpp v{reg}, v{reg}, v{reg} {DPP[kind]} row_mask:0xf bank_mask:0xf")
    def allred_g(op, reg, tmp):
        for sw in ("v_permlane16_swap_b32", "v_permlane32_swap_b32"):
            a(f"v_mov_b32 v{tmp}, v{reg}")
            a(f"{sw} v{reg}, v{tmp}")
            a(f"{op} v{reg}, v{reg}, v{tmp}")
    def red8(r0, r1, r2, r3):
        a(f"v_permlane32_swap_b32 v{r0}, v{r1}")
        a(f"v_permlane32_swap_b32 v{r2}, v{r3}")
        a(f"v_add_f32 v{r0}, v{r0}, v{r1}")
        a(f"v_add_f32 v{r2}, v{r2}, v{r3}")
        a(f"v_permlane16_swap_b32 v{r0}, v{r2}")
        a(f"v_add_f32 v{r0}, v{r0}, v{r2}")
        for k in ("x2", "r4", "r8"): dpp_op("v_add_f32", r0, k)

    a("s_cmp_ge_u32 s2, 256")
    a.branch("s_cbranch_scc1 L_exit", flush=False)
    a("s_load_dwordx16 s[16:31], s[0:1], 0")
    a("s_load_dwordx4 s[32:35], s[0:1], 64")
    a("s_load_dwordx2 s[36:37], s[0:1], 80")
    stamp(0)
    a("v_lshrrev_b32 v1, 6, v0")
    a("v_and_b32 v0, 63, v0")
    a("v_readfirstlane_b32 s3, v1")
    a("s_and_b32 s4, s2, 7")
    a("s_lshr_b32 s5, s2, 3")
    a("s_lshr_b32 s6, s5, 3")
    a("s_and_b32 s7, s5, 7")
    if cfg.ROT == "hash":
        a("s_mul_i32 s8, s2, 0x9E3779B1")
        a("s_lshr_b32 s8, s8, 26")
    else:
        a("s_mov_b32 s8, 0")
    a(f"v_mov_b32 v2, {CNT_BASE}")
    a("v_mov_b32 v1, 1")
    a(f"s_mov_b32 s58, {(~TAGM) & 0xffffffff}")
    a("s_waitcnt lgkmcnt(0)")
    a("s_load_dword s38, s[36:37], 0")
    srd(52, 36, 37, WS_USED)
    a("s_cmp_lt_u32 s3, 4")
    a.branch("s_cbranch_scc1 L_aux")
    a("s_cmp_lt_u32 s3, 8")
    a.branch("s_cbranch_scc1 L_loader")

    def epoch_barrier():
        a("s_waitcnt lgkmcnt(0)")
        a("s_add_u32 s38, s38, 1")
        a(f"s_and_b32 s39, s38, {TAGM}")
        a("s_barrier")

    a("s_sub_u32 s12, s3, 8")
    a("s_lshl_b32 s9, s6, 3"); a("s_add_u32 s9, s9, s4"); a("s_lshl_b32 s9, s9, 22")
    a("s_lshl_b32 s10, s7, 17"); a("s_add_u32 s9, s9, s10"); a(f"s_add_u32 s9, s9, {12288*256}")
    srd(40, 18, 19, 131072, add="s9")
    a("v_and_b32 v4, 15, v0")
    a("v_lshrrev_b32 v5, 4, v0")
    a("v_lshrrev_b32 v6, 1, v4")
    a("v_lshlrev_b32 v6, 8, v6")
    a("v_and_b32 v7, 1, v4")
    a("v_lshl_add_u32 v6, v7, 6, v6")
    a("v_lshl_add_u32 v3, v5, 4, v6")
    a("s_lshl_b32 s13, s12, 3"); a("s_add_u32 s13, s13, s8")
    KREG = 64
    for i in range(16):
        m, s = i >> 1, i & 1
        if i == cfg.KW:
            epoch_barrier()
        if i >= cfg.KW:
            a(f"s_waitcnt vmcnt({cfg.KW-1})")
        if i == cfg.K8_AT:
            Lx = a.new("Lk")
            a("s_cmp_eq_u32 s12, 0")
            a.branch(f"s_cbranch_scc0 {Lx}")
            a(f"ds_write_b32 v2, v1 offset:{C_CLKQ}")
            a.label(Lx)
        if s == 0:
            a(f"s_add_u32 s10, s13, {m}")
            a("s_and_b32 s10, s10, 63")
            a("s_lshl_b32 s10, s10, 11")
        a(f"buffer_load_dwordx4 v[{KREG+4*i}:{KREG+4*i+3}], v3, s[40:43], s10 offen offset:{s*128}{NT}")
    lds_add1(C_KI, "v1")
    stamp(1)
    a("v_lshrrev_b32 v6, 1, v4"); a("v_and_b32 v6, 3, v6")
    a("v_lshlrev_b32 v8, 8, v6")
    a("v_lshl_add_u32 v8, v7, 6, v8")
    a("v_lshl_add_u32 v8, v5, 4, v8")
    a(f"v_add_u32 v8, {Q_BASE}, v8")
    a("s_mov_b32 s56, 0xaaaaaaaa"); a("s_mov_b32 s57, 0xaaaaaaaa")
    lds_wait(C_QRDY, 1, 0x101, vt="v24")
    a("ds_read_b128 v[12:15], v8 offset:128")
    a("ds_read_b128 v[8:11], v8")
    stamp(2)
    a("s_waitcnt lgkmcnt(0)")
    for m in range(8):
        a(f"s_waitcnt vmcnt({14-2*m})")
        D = 32 + 4 * m
        a(f"v_mfma_f32_16x16x32_bf16 v[{D}:{D+3}], v[{KREG+8*m}:{KREG+8*m+3}], v[8:11], 0")
        a(f"v_mfma_f32_16x16x32_bf16 v[{D}:{D+3}], v[{KREG+8*m+4}:{KREG+8*m+7}], v[12:15], v[{D}:{D+3}]")
    stamp(3)
    for m in range(8):
        D = 32 + 4 * m
        a(f"v_add_f32_dpp v24, v{D+1}, v{D} {DPP['x1']} row_mask:0xf bank_mask:0xf")
        a(f"v_add_f32_dpp v25, v{D+2}, v{D+3} {DPP['x1']} row_mask:0xf bank_mask:0xf")
        a(f"v_cndmask_b32 v{16+m}, v24, v25, s[56:57]")
    for m in range(0, 8, 2):
        x, y = 16 + m, 17 + m
        a(f"v_cvt_pk_bf16_f32 v24, v{x}, v{y}")
        a(f"v_lshlrev_b32 v{x}, 16, v24")
        a(f"v_and_b32 v{y}, 0xffff0000, v24")
        a(f"v_mul_f32 v{x}, {hex(SCALE)}, v{x}")
        a(f"v_mul_f32 v{y}, {hex(SCALE)}, v{y}")
        a(f"v_cvt_pk_bf16_f32 v24, v{x}, v{y}")
        a(f"v_lshlrev_b32 v{x}, 16, v24")
        a(f"v_and_b32 v{y}, 0xffff0000, v24")
    a("v_max3_f32 v24, v16, v17, v18"); a("v_max3_f32 v24, v24, v19, v20"); a("v_max3_f32 v24, v24, v21, v22"); a("v_max_f32 v24, v24, v23")
    dpp_op("v_max_f32", 24, "x1")
    allred_g("v_max_f32", 24, 25)
    a("v_lshlrev_b32 v26, 5, v6")
    a("s_lshl_b32 s9, s12, 2")
    a(f"s_add_u32 s9, s9, {MX_BASE}")
    a("v_add_u32 v27, s9, v26")
    a("ds_write_b32 v27, v24")
    a("s_waitcnt lgkmcnt(0)")
    lds_add1(C_M, "v1")
    lds_wait(C_M, 8, 0x102, vt="v25", sleep=0)
    a(f"v_add_u32 v28, {MX_BASE}, v26")
    a("ds_read_b128 v[32:35], v28")
    a("ds_read_b128 v[36:39], v28 offset:16")
    a("s_waitcnt lgkmcnt(0)")
    a("v_max3_f32 v24, v32, v33, v34"); a("v_max3_f32 v24, v24, v35, v36"); a("v_max3_f32 v24, v24, v37, v38"); a("v_max_f32 v24, v24, v39")
    for m in range(8):
        a(f"v_sub_f32 v{16+m}, v{16+m}, v24")
    for m in range(8):
        a(f"v_mul_f32 v{16+m}, {hex(LOG2E)}, v{16+m}")
    for m in range(8):
        a(f"v_exp_f32 v{16+m}, v{16+m}")
    a(f"v_mul_u32_u24 v29, {P_STRIDE}, v6")
    a("v_lshl_add_u32 v29, v5, 2, v29")
    a("v_lshl_add_u32 v29, v7, 1, v29")
    a("s_lshl_b32 s9, s12, 7"); a(f"s_add_u32 s9, s9, {P_BASE}")
    a("v_add_u32 v29, s9, v29")
    for m in range(8):
        a(f"v_cvt_pk_bf16_f32 v{32+m}, v{16+m}, v{16+m}")
        a(f"ds_write_b16 v29, v{32+m} offset:{16*m}")
    a("v_add_f32 v24, v16, v17"); a("v_add_f32 v25, v18, v19"); a("v_add_f32 v30, v20, v21"); a("v_add_f32 v31, v22, v23")
    a("v_add_f32 v24, v24, v25"); a("v_add_f32 v30, v30, v31"); a("v_add_f32 v24, v24, v30")
    dpp_op("v_add_f32", 24, "x1")
    allred_g("v_add_f32", 24, 25)
    a(f"v_add_u32 v27, {LX_BASE-MX_BASE}, v27")
    a("ds_write_b32 v27, v24")
    a("s_waitcnt lgkmcnt(0)")
    lds_add1(C_P, "v1")
    stamp(4)
    lds_wait(C_P, 8, 0x103, vt="v25", sleep=0)
    a("v_and_b32 v6, 3, v4")
    a(f"v_mul_u32_u24 v29, {P_STRIDE}, v6")
    a("v_lshl_add_u32 v29, v5, 4, v29")
    a(f"v_add_u32 v29, {P_BASE}, v29")
    for ks in range(16):
        a(f"ds_read_b128 v[{64+4*ks}:{64+4*ks+3}], v29 offset:{64*ks}")
    a("v_lshrrev_b32 v8, 2, v4")
    a("v_and_b32 v9, 3, v4")
    a("v_and_b32 v10, 1, v5")
    a("v_lshl_add_u32 v10, v10, 2, v8")
    a("v_xor_b32 v10, s12, v10")
    a("v_lshl_add_u32 v11, v5, 3, v8")
    a("v_lshlrev_b32 v11, 8, v11")
    a("v_lshl_add_u32 v11, v10, 5, v11")
    a("v_lshl_add_u32 v11, v9, 3, v11")
    a("v_add_u32 v12, 0x10000, v11")
    a("v_lshlrev_b32 v13, 14, v6")
    a("v_lshl_add_u32 v13, v5, 4, v13")
    a("s_lshl_b32 s9, s4, 4"); a("s_lshr_b32 s10, s12, 1"); a("s_add_u32 s9, s9, s10"); a("s_lshl_b32 s9, s9, 12")
    a("s_lshl_b32 s10, s5, 7"); a("s_add_u32 s9, s9, s10")
    a("s_and_b32 s10, s12, 1"); a("s_lshl_b32 s10, s10, 6"); a("s_add_u32 s9, s9, s10")
    a(f"s_add_u32 s14, s9, {OBUF}")
    a("v_mov_b32 v14, s39")
    a("s_mov_b32 s63, 0")
    a("s_waitcnt lgkmcnt(0)")
    stamp(5)
    for ks in range(16):
        Lok = a.new("Lok")
        if ks == 15:
            lds_wait(C_SC, 1, 0x104, vt="v24")
            a(f"v_lshlrev_b32 v24, 2, v6")
            a(f"v_add_u32 v24, {SC_BASE}, v24")
            a("ds_read_b32 v15, v24")
        a(f"s_cmp_ge_u32 s63, {ks+1}")
        a.branch(f"s_cbranch_scc1 {Lok}", flush=False)
        prog_wait(ks + 1, 0x105, vt=24, sleep=(1 if ks < 13 else 0))
        a("s_mov_b32 s63, s62")
        a.label(Lok, flush=False)
        ad = "v11" if ks < 8 else "v12"
        off = (ks & 7) * 8192
        A = 32 + 4 * (ks & 3)
        a(f"ds_read_b64_tr_b16 v[{A}:{A+1}], {ad} offset:{off}")
        a(f"ds_read_b64_tr_b16 v[{A+2}:{A+3}], {ad} offset:{off+1024}")
        a("s_waitcnt lgkmcnt(0)")
        a(f"v_mfma_f32_16x16x32_bf16 v[48:51], v[{A}:{A+3}], v[{64+4*ks}:{64+4*ks+3}], " + ("0" if ks == 0 else "v[48:51]"))
    stamp(6)
    for r in range(4): a(f"v_mul_f32 v{48+r}, v15, v{48+r}")
    tag4([48, 49, 50, 51], 14)
    a("s_mov_b32 s10, 0x000f000f")
    a("s_mov_b32 exec_lo, s10"); a("s_mov_b32 exec_hi, s10")
    a("buffer_store_dwordx4 v[48:51], v13, s[52:55], s14 offen sc1")
    a("s_mov_b64 exec, -1")
    stamp(7)
    stamps_out(8)
    a("s_endpgm")

    a.label("L_loader")
    if cfg.PRIO_LD: a(f"s_setprio {cfg.PRIO_LD}")
    a("s_sub_u32 s12, s3, 4")
    a("s_lshl_b32 s9, s6, 3"); a("s_add_u32 s9, s9, s4"); a("s_lshl_b32 s9, s9, 22")
    a("s_lshl_b32 s10, s7, 17"); a("s_add_u32 s9, s9, s10"); a(f"s_add_u32 s9, s9, {12288*256}")
    srd(40, 20, 21, 131072, add="s9")
    srd(44, 24, 25, 4096 * 1024)
    srd(48, 30, 31, 1792 * 1024)
    a("s_cmp_lt_u32 s2, 224")
    a("s_cselect_b32 s50, s50, 0")
    a("v_lshrrev_b32 v5, 4, v0")
    a("s_and_b32 s9, s12, 1"); a("s_lshl_b32 s9, s9, 2")
    a("v_or_b32 v6, s9, v5")
    a("v_lshlrev_b32 v6, 1, v6")
    a("v_and_b32 v7, 15, v0")
    a("v_xor_b32 v6, v6, v7")
    a("v_lshlrev_b32 v6, 4, v6")
    a("v_lshl_add_u32 v8, v5, 8, v6")
    a("v_lshl_add_u32 v9, v5, 10, v6")
    a("s_lshl_b32 s9, s12, 2")
    a(f"s_add_u32 s9, s9, {C_PROG}")
    a("v_add_u32 v10, s9, v2")
    epoch_barrier()
    lds_wait(C_KI, cfg.KI_TARGET, 0x201)
    lds_wait(C_QS, 4, 0x202)
    stamp(1)
    a("s_lshr_b32 s9, s2, 2"); a("s_lshl_b32 s9, s9, 5"); a("s_lshl_b32 s10, s12, 3"); a("s_add_u32 s9, s9, s10")
    a("s_lshl_b32 s9, s9, 10"); a("s_and_b32 s10, s2, 3"); a("s_lshl_b32 s10, s10, 8"); a("s_add_u32 s9, s9, s10")
    a("s_lshl_b32 s11, s12, 11")
    for i in range(2):
        a(f"s_add_u32 s13, s11, {W1_BASE + 1024*i}")
        a("s_mov_b32 m0, s13")
        a(f"s_add_u32 s10, s9, {4096*i}")
        a(f"buffer_load_dwordx4 v9, s[48:51], s10 offen{NT} lds")
    a("s_add_u32 s14, s8, s12")
    NP = cfg.VW // 2
    for ks in range(16):
        if ks + 1 >= NP:
            a(f"s_waitcnt vmcnt({cfg.VW-2})")
            done = ks + 1 - NP
            done = ks - (NP - 1)
            if done >= 1:
                a(f"v_mov_b32 v11, {done}")
                a("ds_write_b32 v10, v11")
        a(f"s_add_u32 s10, s14, {4*ks}")
        a("s_and_b32 s10, s10, 63")
        a("s_lshl_b32 s10, s10, 11")
        a(f"s_add_u32 s13, s11, {V_BASE + 8192*ks}")
        a("s_mov_b32 m0, s13")
        a("s_nop 0")
        a(f"buffer_load_dwordx4 v8, s[40:43], s10 offen{NT} lds")
        a(f"buffer_load_dwordx4 v8, s[40:43], s10 offen offset:1024{NT} lds")
    stamp(2)
    a("s_lshl_b32 s9, s4, 9"); a("s_lshr_b32 s10, s5, 1"); a("s_lshl_b32 s10, s10, 5"); a("s_add_u32 s9, s9, s10")
    a("s_lshl_b32 s10, s12, 3"); a("s_add_u32 s9, s9, s10"); a("s_lshl_b32 s9, s9, 10")
    a("s_and_b32 s10, s5, 1"); a("s_lshl_b32 s10, s10, 9"); a("s_add_u32 s9, s9, s10")
    for h2 in range(2):
        for i in range(2):
            a(f"s_add_u32 s13, s11, {WQ_BASE + 8192*h2 + 1024*i}")
            a("s_mov_b32 m0, s13")
            a(f"s_add_u32 s10, s9, {256*h2 + 4096*i}")
            a(f"buffer_load_dwordx4 v9, s[44:47], s10 offen{NT} lds")
    for k in range(NP - 1, -1, -1):
        a(f"s_waitcnt vmcnt({4 + 2*k})")
        a(f"v_mov_b32 v11, {16 - k}")
        a("ds_write_b32 v10, v11")
        if k == 0: stamp(3)
    a("s_waitcnt vmcnt(0)")
    a("v_mov_b32 v11, 17")
    a("ds_write_b32 v10, v11")
    stamp(4)
    stamps_out(5)
    a("s_waitcnt lgkmcnt(0)")
    a("s_endpgm")

    a.label("L_aux")
    if cfg.PRIO_AUX: a(f"s_setprio {cfg.PRIO_AUX}")
    srd(40, 16, 17, 4096)
    srd(44, 22, 23, 512 * 8192)
    srd(48, 28, 29, 512 * 3584)
    a("s_cmp_lt_u32 s2, 224")
    a("s_cselect_b32 s50, s50, 0")
    a("v_and_b32 v4, 15, v0")
    a("v_lshrrev_b32 v5, 4, v0")
    a("v_lshrrev_b32 v6, 2, v4")
    a("v_and_b32 v7, 3, v4")
    a("v_lshl_add_u32 v8, v7, 2, v5")
    a("v_lshlrev_b32 v8, 6, v8")
    a("v_lshl_add_u32 v8, v6, 10, v8")
    for i in range(4):
        a(f"buffer_load_dwordx4 v[{16+4*i}:{19+4*i}], v8, s[40:43], 0 offen offset:{16*i}")
    a("v_lshlrev_b32 v9, 4, v5")
    a("v_lshl_add_u32 v9, v6, 10, v9")
    a("s_lshr_b32 s12, s5, 3")
    a("s_and_b32 s13, s5, 7")
    a("s_and_b32 s14, s2, 7")
    a("s_lshr_b32 s15, s2, 3")
    a("s_lshl_b32 s9, s12, 8"); a("s_lshl_b32 s10, s3, 6"); a("s_add_u32 s9, s9, s10")
    a("buffer_load_dwordx4 v[32:35], v9, s[40:43], s9 offen")
    a("s_lshl_b32 s9, s14, 7"); a("s_and_b32 s10, s3, 1"); a("s_lshl_b32 s10, s10, 6"); a("s_add_u32 s9, s9, s10")
    a("buffer_load_dwordx4 v[36:39], v9, s[40:43], s9 offen")
    a("v_lshrrev_b32 v10, 3, v0"); a("v_and_b32 v11, 7, v0"); a("v_lshlrev_b32 v11, 4, v11")
    a("v_lshl_add_u32 v12, v10, 13, v11")
    a("v_mul_u32_u24 v13, 3584, v10"); a("v_add_u32 v13, v13, v11")
    a("s_lshl_b32 s9, s12, 7"); a("s_lshl_b32 s10, s3, 5"); a("s_add_u32 s9, s9, s10"); a("s_lshl_b32 s9, s9, 13")
    a("s_lshl_b32 s10, s4, 10"); a("s_add_u32 s9, s9, s10"); a("s_lshl_b32 s10, s13, 7"); a("s_add_u32 s9, s9, s10")
    a("s_lshl_b32 s11, s3, 12")
    for i in range(4):
        a(f"s_add_u32 s10, s11, {WQ_BASE + 1024*i}")
        a("s_mov_b32 m0, s10")
        a(f"s_add_u32 s10, s9, {8*8192*i}")
        a(f"buffer_load_dwordx4 v12, s[44:47], s10 offen{NT} lds")
    a("s_lshl_b32 s9, s14, 6"); a("s_lshl_b32 s10, s3, 4"); a("s_add_u32 s9, s9, s10"); a("s_mul_i32 s9, s9, 3584")
    a("s_lshl_b32 s10, s15, 7"); a("s_add_u32 s9, s9, s10")
    a("s_lshl_b32 s11, s3, 11")
    for i in range(2):
        a(f"s_add_u32 s10, s11, {W1_BASE + 1024*i}")
        a("s_mov_b32 m0, s10")
        a(f"s_add_u32 s10, s9, {8*3584*i}")
        a(f"buffer_load_dwordx4 v13, s[48:51], s10 offen{NT} lds")
    Lc = a.new("Lc")
    a("s_cmp_eq_u32 s3, 0")
    a.branch(f"s_cbranch_scc0 {Lc}")
    a("v_lshl_add_u32 v14, v0, 2, v2")
    a("v_mov_b32 v15, 0")
    a("ds_write_b32 v14, v15")
    a.label(Lc)
    epoch_barrier()
    a("v_mov_b32 v14, s39")
    stamp(1)
    a("s_waitcnt vmcnt(6)")
    acc = None
    for i in range(16):
        a(f"v_lshlrev_b32 v{64+2*i}, 16, v{16+i}")
        a(f"v_and_b32 v{65+2*i}, 0xffff0000, v{16+i}")
    a("v_add_f32 v40, v64, v65"); a("v_add_f32 v41, v66, v67"); a("v_add_f32 v42, v68, v69"); a("v_add_f32 v43, v70, v71")
    for i in range(8, 32, 4):
        for k in range(4): a(f"v_add_f32 v{40+k}, v{40+k}, v{64+i+k}")
    a("v_add_f32 v40, v40, v41"); a("v_add_f32 v42, v42, v43"); a("v_add_f32 v40, v40, v42")
    dpp_op("v_add_f32", 40, "x1"); dpp_op("v_add_f32", 40, "x2"); allred_g("v_add_f32", 40, 41)
    a("v_mul_f32 v40, 0x3b000000, v40")
    for i in range(32): a(f"v_sub_f32 v{64+i}, v{64+i}, v40")
    for k in range(4): a(f"v_mul_f32 v{42+k}, v{64+k}, v{64+k}")
    for i in range(4, 32, 4):
        for k in range(4): a(f"v_fmac_f32 v{42+k}, v{64+i+k}, v{64+i+k}")
    a("v_add_f32 v42, v42, v43"); a("v_add_f32 v44, v44, v45"); a("v_add_f32 v42, v42, v44")
    dpp_op("v_add_f32", 42, "x1"); dpp_op("v_add_f32", 42, "x2"); allred_g("v_add_f32", 42, 41)
    a("v_mul_f32 v42, 0x3b000000, v42")
    bf16r(40, 40)
    bf16r(42, 42)
    a(f"v_add_f32 v42, {hex(EPS)}, v42"); bf16r(42, 42)
    a("v_sqrt_f32 v42, v42"); bf16r(42, 42)
    a("v_rcp_f32 v42, v42")
    for d in range(32, 40):
        a(f"v_lshlrev_b32 v44, 16, v{d}")
        a(f"v_and_b32 v45, 0xffff0000, v{d}")
        a("v_sub_f32 v44, v44, v40"); a("v_sub_f32 v45, v45, v40")
        a("v_cvt_pk_bf16_f32 v46, v44, v45")
        a("v_lshlrev_b32 v44, 16, v46"); a("v_and_b32 v45, 0xffff0000, v46")
        a("v_mul_f32 v44, v44, v42"); a("v_mul_f32 v45, v45, v42")
        a(f"v_cvt_pk_bf16_f32 v{d}, v44, v45")
    a("v_lshlrev_b32 v15, 4, v0")
    a("s_lshl_b32 s9, s3, 10")
    a(f"s_add_u32 s9, s9, {XN_BASE}")
    a("v_add_u32 v44, s9, v15")
    a("ds_write_b128 v44, v[32:35]")
    a("s_and_b32 s9, s3, 1"); a("s_lshl_b32 s9, s9, 10"); a(f"s_add_u32 s9, s9, {XN_BASE + 4096}")
    a("v_add_u32 v44, s9, v15")
    a("ds_write_b128 v44, v[36:39]")
    stamp(2)
    a("s_waitcnt vmcnt(0) lgkmcnt(0)")
    lds_add1(C_W, "v1")
    lds_wait(C_W, 4, 0x301, sleep=0)
    stamp(3)
    if XN_BASE: a(f"v_add_u32 v15, {XN_BASE}, v15")
    for f in range(6):
        a(f"ds_read_b128 v[{32+4*f}:{35+4*f}], v15 offset:{1024*f}")
    a("v_lshrrev_b32 v8, 2, v4")
    a("v_lshl_add_u32 v9, v5, 3, v8")
    a("v_lshlrev_b32 v9, 7, v9")
    a("v_lshl_add_u32 v9, v7, 3, v9")
    a("s_lshl_b32 s9, s3, 5")
    a(f"s_add_u32 s10, s9, {WQ_BASE}")
    a("v_add_u32 v10, s10, v9")
    a(f"s_add_u32 s10, s9, {W1_BASE}")
    a("v_add_u32 v11, s10, v9")
    for ks in range(4):
        a(f"ds_read_b64_tr_b16 v[{64+4*ks}:{65+4*ks}], v10 offset:{4096*ks}")
        a(f"ds_read_b64_tr_b16 v[{66+4*ks}:{67+4*ks}], v10 offset:{4096*ks+512}")
    for ks in range(2):
        a(f"ds_read_b64_tr_b16 v[{80+4*ks}:{81+4*ks}], v11 offset:{4096*ks}")
        a(f"ds_read_b64_tr_b16 v[{82+4*ks}:{83+4*ks}], v11 offset:{4096*ks+512}")
    a("s_waitcnt lgkmcnt(0)")
    lds_add1(C_QS, "v1")
    for ks in range(4):
        a(f"v_mfma_f32_16x16x32_bf16 v[56:59], v[{64+4*ks}:{67+4*ks}], v[{32+4*ks}:{35+4*ks}], " + ("0" if ks == 0 else "v[56:59]"))
    for ks in range(2):
        a(f"v_mfma_f32_16x16x32_bf16 v[60:63], v[{80+4*ks}:{83+4*ks}], v[{48+4*ks}:{51+4*ks}], " + ("0" if ks == 0 else "v[60:63]"))
    a("v_lshlrev_b32 v8, 13, v6"); a("v_lshl_add_u32 v8, v5, 4, v8")
    a("s_lshl_b32 s9, s4, 15"); a("s_lshl_b32 s10, s12, 11"); a("s_add_u32 s9, s9, s10")
    a("s_lshl_b32 s10, s13, 8"); a("s_add_u32 s9, s9, s10"); a("s_lshl_b32 s10, s3, 6"); a("s_add_u32 s9, s9, s10")
    a(f"s_add_u32 s9, s9, {QBUF}")
    tag4([56, 57, 58, 59], 14)
    a("s_mov_b32 s10, 0x11111111")
    a("s_mov_b32 exec_lo, s10"); a("s_mov_b32 exec_hi, s10")
    a("buffer_store_dwordx4 v[56:59], v8, s[52:55], s9 offen sc1")
    a("s_mov_b64 exec, -1")
    Lnh = a.new("Lnh")
    a("s_cmp_lt_u32 s2, 224")
    a.branch(f"s_cbranch_scc0 {Lnh}")
    a("v_lshlrev_b32 v9, 10, v6"); a("v_lshl_add_u32 v9, v5, 4, v9")
    a("s_lshl_b32 s9, s15, 1"); a("s_lshr_b32 s10, s3, 1"); a("s_add_u32 s9, s9, s10"); a("s_lshl_b32 s9, s9, 12")
    a("s_lshl_b32 s10, s14, 7"); a("s_add_u32 s9, s9, s10")
    a("s_and_b32 s10, s3, 1"); a("s_lshl_b32 s10, s10, 6"); a("s_add_u32 s9, s9, s10")
    a(f"s_add_u32 s9, s9, {HBUF}")
    tag4([60, 61, 62, 63], 14)
    a("s_mov_b32 s10, 0x11111111")
    a("s_mov_b32 exec_lo, s10"); a("s_mov_b32 exec_hi, s10")
    a("buffer_store_dwordx4 v[60:63], v9, s[52:55], s9 offen sc1")
    a("s_mov_b64 exec, -1")
    a.label(Lnh)
    stamp(4)
    a("v_lshlrev_b32 v16, 10, v6"); a("v_lshl_add_u32 v16, v7, 7, v16"); a("v_lshl_add_u32 v16, v5, 5, v16")
    a("v_lshrrev_b32 v8, 2, v4")
    a("v_and_b32 v10, 1, v5")
    a("v_lshl_add_u32 v10, v10, 2, v8")
    a("v_lshl_add_u32 v17, v5, 3, v8")
    a("v_lshlrev_b32 v17, 8, v17")
    a("v_lshl_add_u32 v17, v10, 5, v17")
    a("v_lshl_add_u32 v17, v7, 3, v17")

    def gather8(soff, code, relu):
        loads = [f"buffer_load_dwordx4 v[{64+4*i}:{67+4*i}], v16, s[52:55], {soff} offen offset:{o} sc1" for i, o in enumerate((0, 16, 512, 528))]
        poll(loads, list(range(64, 80)), 14, 41, code)
        for k in range(8): a(f"v_add_f32 v{64+k}, v{64+k}, v{72+k}")
        for kind in ("x1", "x2"):
            for k in range(8): dpp_op("v_add_f32", 64 + k, kind)
        if relu:
            for k in range(8): a(f"v_max_f32 v{64+k}, 0, v{64+k}")
        for k in range(4): a(f"v_cvt_pk_bf16_f32 v{40+k}, v{64+2*k}, v{65+2*k}")
    def tile_frags(base_expr_sgpr, ct0, dst, ntile):
        for t in range(ntile):
            a(f"v_xor_b32 v18, {(t)<<5}, v17")
            a(f"v_xor_b32 v18, {ct0}, v18")
            a(f"v_add_u32 v18, {base_expr_sgpr}, v18")
            a(f"ds_read_b64_tr_b16 v[{dst+4*t}:{dst+4*t+1}], v18")
            a(f"ds_read_b64_tr_b16 v[{dst+4*t+2}:{dst+4*t+3}], v18 offset:1024")
    def mfma4_select(A, D):
        for t in range(4):
            a(f"v_mfma_f32_16x16x32_bf16 v[{D+4*t}:{D+4*t+3}], v[{A+4*t}:{A+4*t+3}], v[40:43], 0")
        for r in range(4):
            a(f"v_cndmask_b32 v{44+r}, v{D+r}, v{D+4+r}, s[56:57]")
        for r in range(4):
            a(f"v_cndmask_b32 v{D+r}, v{D+8+r}, v{D+12+r}, s[56:57]")
        for r in range(4):
            a(f"v_cndmask_b32 v{44+r}, v{44+r}, v{D+r}, s[62:63]")
    a("s_mov_b32 s56, 0xaaaaaaaa"); a("s_mov_b32 s57, 0xaaaaaaaa")

    a("s_cmp_eq_u32 s3, 1"); a.branch("s_cbranch_scc1 L_aux1")
    a("s_cmp_eq_u32 s3, 2"); a.branch("s_cbranch_scc1 L_aux2")
    a("s_cmp_eq_u32 s3, 3"); a.branch("s_cbranch_scc1 L_aux3")
    lds_wait(C_CLKQ, 1, 0x310)
    a("v_lshlrev_b32 v18, 5, v0")
    a("s_lshl_b32 s9, s4, 2"); a("s_add_u32 s9, s9, s6"); a("s_lshl_b32 s9, s9, 13"); a(f"s_add_u32 s9, s9, {QBUF}")
    loads = []
    for rb in range(4):
        for hf in range(2):
            loads.append((rb, hf))
    a(f"s_add_u32 s10, s9, 4096")
    ld = [f"buffer_load_dwordx4 v[{64+8*rb+4*hf}:{67+8*rb+4*hf}], v18, s[52:55], {'s9' if rb < 2 else 's10'} offen offset:{(rb&1)*2048+16*hf} sc1" for rb, hf in loads]
    poll(ld, list(range(64, 96)), 14, 41, 0x311)
    for k in range(8):
        a(f"v_add_f32 v{64+k}, v{64+k}, v{72+k}"); a(f"v_add_f32 v{80+k}, v{80+k}, v{88+k}")
    for k in range(8): a(f"v_add_f32 v{64+k}, v{64+k}, v{80+k}")
    for k in range(4): a(f"v_cvt_pk_bf16_f32 v{40+k}, v{64+2*k}, v{65+2*k}")
    a("v_lshlrev_b32 v18, 4, v0"); a(f"v_add_u32 v18, {Q_BASE}, v18")
    a("ds_write_b128 v18, v[40:43]")
    a("s_waitcnt lgkmcnt(0)")
    a(f"ds_write_b32 v2, v1 offset:{C_QRDY}")
    stamp(5)
    a.branch("s_branch L_wo")
    a.label("L_aux1")
    a("s_cmp_lt_u32 s2, 224")
    a.branch("s_cbranch_scc0 L_wo")
    lds_wait(C_CLKQ, 1, 0x320)
    a("s_lshr_b32 s12, s2, 2"); a("s_lshl_b32 s9, s12, 12"); a(f"s_add_u32 s9, s9, {HBUF}")
    gather8("s9", 0x321, relu=True)
    prog_wait(1, 0x322)
    a(f"s_mov_b32 s13, {W1_BASE}")
    tile_frags("s13", 0, 64, 8)
    a("s_waitcnt lgkmcnt(0)")
    a("v_lshlrev_b32 v19, 6, v6"); a("v_lshl_add_u32 v19, v7, 1, v19"); a("v_lshrrev_b32 v20, 1, v5"); a("v_add_u32 v19, v19, v20")
    a("v_lshlrev_b32 v19, 11, v19"); a("v_and_b32 v20, 1, v5"); a("v_lshl_add_u32 v19, v20, 4, v19")
    a("s_and_b32 s9, s2, 3"); a("s_lshl_b32 s9, s9, 15"); a("s_lshl_b32 s10, s12, 5"); a("s_add_u32 s9, s9, s10"); a(f"s_add_u32 s9, s9, {YBUF}")
    a("s_mov_b32 s62, 0xcccccccc"); a("s_mov_b32 s63, 0xcccccccc")
    for t in range(2):
        mfma4_select(64 + 16 * t, 96)
        tag4([44, 45, 46, 47], 14)
        if t == 1: a("s_add_u32 s9, s9, 0x4000")
        a("buffer_store_dwordx4 v[44:47], v19, s[52:55], s9 offen sc1")
    a(f"ds_write_b32 v2, v1 offset:{C_Y}")
    stamp(5)
    a.branch("s_branch L_wo")
    a.label("L_aux2")
    lds_wait(C_P, 8, 0x330)
    a(f"v_mov_b32 v18, {MX_BASE}")
    for h in range(4):
        a(f"ds_read_b128 v[{64+8*h}:{67+8*h}], v18 offset:{32*h}")
        a(f"ds_read_b128 v[{68+8*h}:{71+8*h}], v18 offset:{32*h+16}")
        a(f"ds_read_b128 v[{96+8*h}:{99+8*h}], v18 offset:{128+32*h}")
        a(f"ds_read_b128 v[{100+8*h}:{103+8*h}], v18 offset:{128+32*h+16}")
    a("s_waitcnt lgkmcnt(0)")
    for h in range(4):
        B = 64 + 8 * h
        a(f"v_max3_f32 v{44+h}, v{B}, v{B+1}, v{B+2}"); a(f"v_max3_f32 v{44+h}, v{44+h}, v{B+3}, v{B+4}")
        a(f"v_max3_f32 v{44+h}, v{44+h}, v{B+5}, v{B+6}"); a(f"v_max_f32 v{44+h}, v{44+h}, v{B+7}")
        B = 96 + 8 * h
        a(f"v_add_f32 v{48+h}, v{B}, v{B+1}")
        for k in range(2, 8): a(f"v_add_f32 v{48+h}, v{48+h}, v{B+k}")
    for h in range(4): a(f"v_cndmask_b32 v{52+h}, v{44+h}, v{48+h}, s[56:57]")
    tag4([52, 53, 54, 55], 14)
    a("s_lshl_b32 s9, s4, 2"); a("s_add_u32 s9, s9, s6"); a("s_lshl_b32 s9, s9, 8"); a(f"s_add_u32 s9, s9, {MLBUF}")
    a("s_lshl_b32 s10, s7, 5"); a("s_add_u32 s10, s10, s9")
    a("v_lshlrev_b32 v18, 4, v0")
    a("s_mov_b64 exec, 3")
    a("buffer_store_dwordx4 v[52:55], v18, s[52:55], s10 offen sc1")
    a("s_mov_b64 exec, -1")
    a("v_lshlrev_b32 v18, 4, v4")
    poll([f"buffer_load_dwordx4 v[64:67], v18, s[52:55], s9 offen sc1"], [64, 65, 66, 67], 14, 41, 0x331)
    for h in range(4):
        a(f"v_mov_b32_dpp v{68+h}, v{64+h} {DPP['x1']} row_mask:0xf bank_mask:0xf")
    for h in range(4):
        a(f"v_cndmask_b32 v{72+h}, v{64+h}, v{68+h}, s[56:57]")
        a(f"v_cndmask_b32 v{76+h}, v{68+h}, v{64+h}, s[56:57]")
    for h in range(4): a(f"v_mov_b32 v{80+h}, v{72+h}")
    for kind in ("x2", "r4", "r8"):
        for h in range(4): dpp_op("v_max_f32", 80 + h, kind)
    for h in range(4): a(f"v_sub_f32 v{72+h}, v{72+h}, v{80+h}")
    for h in range(4): a(f"v_mul_f32 v{72+h}, {hex(LOG2E)}, v{72+h}")
    for h in range(4): a(f"v_exp_f32 v{72+h}, v{72+h}")
    for h in range(4): a(f"v_mul_f32 v{72+h}, v{72+h}, v{76+h}")
    for kind in ("x2", "r4", "r8"):
        for h in range(4): dpp_op("v_add_f32", 72 + h, kind)
    for h in range(4): a(f"v_sub_f32 v{44+h}, v{44+h}, v{80+h}")
    for h in range(4): a(f"v_mul_f32 v{44+h}, {hex(LOG2E)}, v{44+h}")
    for h in range(4): a(f"v_exp_f32 v{44+h}, v{44+h}")
    for h in range(4): a(f"v_rcp_f32 v{72+h}, v{72+h}")
    for h in range(4): a(f"v_mul_f32 v{44+h}, v{44+h}, v{72+h}")
    a(f"v_mov_b32 v18, {SC_BASE}")
    a("ds_write_b128 v18, v[44:47]")
    a("s_waitcnt lgkmcnt(0)")
    a(f"ds_write_b32 v2, v1 offset:{C_SC}")
    stamp(5)
    a.branch("s_branch L_wo")
    a.label("L_aux3")
    Ly = a.new("Ly")
    a("s_cmp_lt_u32 s2, 224")
    a.branch(f"s_cbranch_scc0 {Ly}")
    lds_wait(C_Y, 1, 0x340)
    a.label(Ly)
    prog_wait(2, 0x341)
    a("v_lshlrev_b32 v18, 4, v0")
    a("s_lshl_b32 s9, s2, 11"); a(f"s_add_u32 s9, s9, {YBUF}")
    a("v_lshrrev_b32 v20, 1, v5"); a("v_and_b32 v21, 1, v5"); a("v_lshl_add_u32 v20, v21, 1, v20")
    a("v_and_b32 v21, 1, v0"); a("v_lshl_add_u32 v20, v21, 2, v20")
    a("s_lshl_b32 s10, s2, 3")
    a("v_add_u32 v20, s10, v20"); a("v_lshlrev_b32 v20, 1, v20")
    a("buffer_load_ushort v21, v20, s[40:43], 0 offen")
    def pre():
        for k in range(4): a(f"v_mov_b32 v{68+k}, v14")
    L, Dn = a.new("Lg"), a.new("Ld")
    a("s_mov_b32 s60, 0")
    a.label(L)
    pre()
    a("buffer_load_dwordx4 v[64:67], v18, s[52:55], s9 offen sc1")
    a("s_mov_b32 exec_hi, 0xffff")
    a("buffer_load_dwordx4 v[68:71], v18, s[52:55], s9 offen offset:1024 sc1")
    a("s_mov_b64 exec, -1")
    a("s_waitcnt vmcnt(0)")
    untag(list(range(64, 72)), 14, 41, True)
    a(f"v_and_b32 v41, {TAGM}, v41")
    a("v_cmp_ne_u32 vcc, 0, v41")
    a("s_cmp_eq_u64 vcc, 0")
    a.branch(f"s_cbranch_scc1 {Dn}")
    a("s_sleep 2")
    a("s_add_u32 s60, s60, 1"); a(f"s_cmp_lt_u32 s60, {cfg.G_LIMIT}")
    a.branch(f"s_cbranch_scc1 {L}")
    fail_to(0x342)
    a.label(Dn)
    for k in range(4): a(f"v_add_f32 v{64+k}, v{64+k}, v{68+k}")
    red8(64, 65, 66, 67)
    bf16r(64, 64)
    a(f"v_mul_f32 v65, {hex(LOG2E ^ 0x80000000)}, v64")
    a("v_exp_f32 v65, v65")
    a("v_add_f32 v65, 1.0, v65")
    a("v_rcp_f32 v65, v65")
    a("v_mul_f32 v65, v64, v65")
    bf16r(22, 65)
    a("v_lshlrev_b32 v21, 16, v21")
    stamp(5)
    a.label("L_wo")
    prog_wait(17, 0x350)
    stamp(6)
    a("s_lshr_b32 s9, s3, 1"); a("s_lshl_b32 s9, s9, 13"); a(f"s_add_u32 s13, s9, {WQ_BASE}")
    a("s_and_b32 s9, s3, 1"); a("s_lshl_b32 s12, s9, 7")
    tile_frags("s13", "s12", 96, 4)
    a("s_lshl_b32 s9, s4, 4"); a("s_lshr_b32 s10, s5, 1"); a("s_add_u32 s15, s9, s10")
    a("s_lshl_b32 s9, s15, 12"); a(f"s_add_u32 s9, s9, {OBUF}")
    a("v_lshlrev_b32 v19, 6, v6"); a("v_lshl_add_u32 v19, v7, 1, v19"); a("v_lshrrev_b32 v18, 1, v5"); a("v_add_u32 v19, v19, v18")
    a("v_lshlrev_b32 v19, 12, v19"); a("v_and_b32 v18, 1, v5"); a("v_lshl_add_u32 v19, v18, 4, v19")
    a("s_and_b32 s10, s5, 1"); a("s_lshl_b32 s10, s10, 5"); a("s_lshl_b32 s11, s3, 3"); a("s_add_u32 s10, s10, s11"); a("s_lshl_b32 s10, s10, 12")
    a("s_lshl_b32 s11, s15, 5"); a("s_add_u32 s10, s10, s11"); a(f"s_add_u32 s14, s10, {SBUF}")
    gather8("s9", 0x351, relu=False)
    stamp(7)
    a("s_mov_b32 s62, 0xcccccccc"); a("s_mov_b32 s63, 0xcccccccc")
    a("s_waitcnt lgkmcnt(0)")
    mfma4_select(96, 64)
    tag4([44, 45, 46, 47], 14)
    a("buffer_store_dwordx4 v[44:47], v19, s[52:55], s14 offen sc1")
    stamp(8)
    Lfin = a.new("Lfin")
    a("s_cmp_eq_u32 s3, 3")
    a.branch(f"s_cbranch_scc1 {Lfin}")
    stamps_out(9)
    a("s_endpgm")
    a.label(Lfin)
    a("v_lshlrev_b32 v18, 4, v0")
    a("s_lshl_b32 s9, s2, 12"); a(f"s_add_u32 s9, s9, {SBUF}")
    ld = [f"buffer_load_dwordx4 v[{64+4*i}:{67+4*i}], v18, s[52:55], s9 offen offset:{1024*i} sc1" for i in range(4)]
    poll(ld, list(range(64, 80)), 14, 41, 0x360)
    stamp(9)
    for k in range(4):
        a(f"v_add_f32 v{64+k}, v{64+k}, v{68+k}"); a(f"v_add_f32 v{72+k}, v{72+k}, v{76+k}")
    for k in range(4): a(f"v_add_f32 v{64+k}, v{64+k}, v{72+k}")
    red8(64, 65, 66, 67)
    bf16r(64, 64)
    a("v_mul_f32 v64, v64, v22"); bf16r(64, 64)
    a("v_add_f32 v64, v21, v64")
    a("v_cvt_pk_bf16_f32 v64, v64, v64")
    srd(44, 32, 33, 4096)
    a("s_mov_b32 s10, 0x00030003")
    a("s_mov_b32 exec_lo, s10"); a("s_mov_b32 exec_hi, s10")
    a("buffer_store_short v64, v20, s[44:47], 0 offen")
    a("s_mov_b64 exec, -1")
    Le = a.new("Le")
    a("s_cmp_eq_u32 s2, 0")
    a.branch(f"s_cbranch_scc0 {Le}")
    a("v_mov_b32 v4, s38"); a("v_mov_b32 v5, 0")
    a("s_mov_b64 exec, 1")
    a("buffer_store_dword v4, v5, s[52:55], 0 offen sc1")
    a("s_mov_b64 exec, -1")
    a.label(Le)
    stamp(10)
    stamps_out(11)
    a("s_endpgm")
    a.label("L_fail")
    a("v_mov_b32 v4, s61"); a("s_lshl_b32 s9, s3, 2"); a("v_mov_b32 v5, s9")
    a("s_mov_b64 exec, 1")
    a("global_store_dword v5, v4, s[34:35]")
    a.label("L_exit", flush=False)
    a("s_endpgm")
    return a

def wrap(a, lds=LDS_SIZE):
    hdr = open(REF).read().split("; Override launch geometry")[0]
    s = hdr
    s += "; Generated by gen/kern.py (hand-written schedule, see comments).\n"
    s += f"; @launch grid=(256,1,1) block=(1024,1,1) lds={lds}\n"
    s += '.amdgcn_target "amdgcn-amd-amdhsa--gfx950"\n.text\n'
    s += f".globl {KNAME}\n.p2align 8\n.type {KNAME},@function\n{KNAME}:\n"
    s += a.text()
    s += '.section .rodata,"a"\n.p2align 6\n'
    s += f".amdhsa_kernel {KNAME}\n"
    s += "  .amdhsa_next_free_vgpr 128\n  .amdhsa_next_free_sgpr 102\n  .amdhsa_accum_offset 128\n"
    s += "  .amdhsa_group_segment_fixed_size 0\n  .amdhsa_kernarg_size 88\n  .amdhsa_user_sgpr_count 2\n"
    s += "  .amdhsa_user_sgpr_kernarg_segment_ptr 1\n  .amdhsa_system_sgpr_workgroup_id_x 1\n"
    s += ".end_amdhsa_kernel\n"
    return s

if __name__ == "__main__":
    out = sys.argv[1] if len(sys.argv) > 1 else "k1.s"
    class C(Cfg): pass
    for kv in sys.argv[2:]:
        k, v = kv.split("=")
        cur = getattr(Cfg, k)
        setattr(C, k, (v == "1") if isinstance(cur, bool) else type(cur)(v) if not isinstance(cur, int) else int(v, 0))
    a = build(C)
    open(out, "w").write(wrap(a))
    print(out, "instructions:", a.ninst)
```

```python
import sys, os
sys.path.insert(0, os.path.dirname(os.path.abspath(__file__)))
from dsl import Asm

KNAME = "recurrent_scan__sliding_block_cached__dense_activation_relu__decode_kernel"
REF = "recurrent_scan__sliding_block_cached__dense_activation_relu__decode.s.ref"

V_BASE = 0
XN_BASE = 0
WQ_BASE = 131072
W1_BASE = 147456
P_BASE = 155648
P_STRIDE = 1088
Q_BASE = 160000
MX_BASE = 161024
LX_BASE = 161152
SC_BASE = 161280
CNT_BASE = 161312
LDS_SIZE = 163840
C_W, C_QS, C_KI, C_CLKQ, C_QRDY, C_M, C_P, C_SC = [4 * i for i in range(8)]
C_PROG = 32
C_Y = 48
QBUF = 0x10000
HBUF = 0x60000
MLBUF = 0xA0000
OBUF = 0xB0000
YBUF = 0x140000
SBUF = 0x200000
WS_USED = 0x300000
DIAG = 0x800000
TAGM = 0x3FF
LOG2E = 0x3fb8aa3b
SCALE = 0x3db504f3
EPS = 0x3727c5ac

class Cfg:
    KW = 4
    VW = 8
    K8_AT = 10
    KI_TARGET = 4
    ROT = "hash"
    STAMP = False
    DBGSTAMP = False
    LDS_LIMIT = 1 << 20
    G_LIMIT = 1 << 15
    NT = " nt"
    PRIO_AUX = 3
    PRIO_LD = 2
    POLL_SLEEP = 0

def build(cfg=Cfg):
    a = Asm()
    NT = cfg.NT
    stamp_idx = {}
    def stamp(i):
        if cfg.STAMP or cfg.DBGSTAMP:
            a(f"s_memrealtime s[{64+2*i}:{65+2*i}]")
    def stamps_out(n, dbgmap=None):
        if cfg.DBGSTAMP:
            a("s_waitcnt lgkmcnt(0)")
            a("s_mov_b64 exec, 1")
            a("v_mov_b32 v4, 0")
            a("s_not_b32 s9, s64")
            a("v_mov_b32 v5, s9")
            a("global_atomic_umax v4, v5, s[34:35]")
            for i, slot in dbgmap.items():
                a(f"v_mov_b32 v5, s{64+2*i}")
                a(f"global_atomic_umax v4, v5, s[34:35] offset:{4*slot}")
            a("s_mov_b64 exec, -1")
        if cfg.STAMP:
            a("s_waitcnt lgkmcnt(0)")
            a("s_lshl_b32 s9, s2, 4")
            a("s_add_u32 s9, s9, s3")
            a("s_lshl_b32 s9, s9, 6")
            a(f"s_add_u32 s9, s9, {DIAG}")
            a("s_add_u32 s10, s36, s9"); a("s_addc_u32 s11, s37, 0")
            a("v_mov_b32 v4, 0")
            a("s_mov_b64 exec, 1")
            for i in range(n):
                a(f"v_mov_b32 v5, s{64+2*i}")
                a(f"global_store_dword v4, v5, s[10:11] offset:{4*i}")
            a("s_mov_b64 exec, -1")
    def fail_to(code):
        a(f"s_mov_b32 s61, {code}")
        a.branch("s_branch L_fail")
    def lds_wait(off, target, code, vt="v24", sleep=1, keep=None):
        L, D = a.new("Lw"), a.new("Ld")
        a("s_mov_b32 s60, 0")
        a.label(L)
        a(f"ds_read_b32 {vt}, v2 offset:{off}")
        a("s_waitcnt lgkmcnt(0)")
        a(f"v_readfirstlane_b32 s62, {vt}")
        a(f"s_cmp_ge_u32 s62, {target}")
        a.branch(f"s_cbranch_scc1 {D}")
        if sleep: a(f"s_sleep {sleep}")
        a("s_add_u32 s60, s60, 1")
        a(f"s_cmp_lt_u32 s60, {cfg.LDS_LIMIT}")
        a.branch(f"s_cbranch_scc1 {L}")
        fail_to(code)
        a.label(D)
    def prog_wait(target, code, vt=24, sleep=1):
        L, D = a.new("Lp"), a.new("Ld")
        a("s_mov_b32 s60, 0")
        a.label(L)
        a(f"ds_read_b128 v[{vt}:{vt+3}], v2 offset:{C_PROG}")
        a("s_waitcnt lgkmcnt(0)")
        a(f"v_min_u32 v{vt}, v{vt}, v{vt+1}")
        a(f"v_min3_u32 v{vt}, v{vt}, v{vt+2}, v{vt+3}")
        a(f"v_readfirstlane_b32 s62, v{vt}")
        a(f"s_cmp_ge_u32 s62, {target}")
        a.branch(f"s_cbranch_scc1 {D}")
        if sleep: a(f"s_sleep {sleep}")
        a("s_add_u32 s60, s60, 1")
        a(f"s_cmp_lt_u32 s60, {cfg.LDS_LIMIT}")
        a.branch(f"s_cbranch_scc1 {L}")
        fail_to(code)
        a.label(D)
    def lds_add1(off, vone):
        a("s_mov_b64 exec, 1")
        a(f"ds_add_u32 v2, {vone} offset:{off}")
        a("s_mov_b64 exec, -1")
    def srd(dst, lo, hi, size, add=None):
        if add is None:
            a(f"s_mov_b32 s{dst}, s{lo}"); a(f"s_mov_b32 s{dst+1}, s{hi}")
        else:
            a(f"s_add_u32 s{dst}, s{lo}, {add}"); a(f"s_addc_u32 s{dst+1}, s{hi}, 0")
        a(f"s_mov_b32 s{dst+2}, {size}")
        a(f"s_mov_b32 s{dst+3}, 0x20000")
    def tag4(regs, vtag):
        for r in regs: a(f"v_add_u32 v{r}, 0x200, v{r}")
        for r in regs: a(f"v_and_or_b32 v{r}, v{r}, s58, v{vtag}")
    def untag(regs, vtag, acc, first):
        for r in regs: a(f"v_xor_b32 v{r}, v{vtag}, v{r}")
        it = list(regs)
        if first:
            a(f"v_or3_b32 v{acc}, v{it[0]}, v{it[1]}, v{it[2]}"); it = it[3:]
        while len(it) >= 2:
            a(f"v_or3_b32 v{acc}, v{it[0]}, v{it[1]}, v{acc}"); it = it[2:]
        if it: a(f"v_or_b32 v{acc}, v{it[0]}, v{acc}")
    def poll(loads, regs, vtag, acc, code, pre=None):
        L, D = a.new("Lg"), a.new("Ld")
        a("s_mov_b32 s60, 0")
        a.label(L)
        if pre: pre()
        for l in loads: a(l)
        if pre: a("s_mov_b64 exec, -1")
        a("s_waitcnt vmcnt(0)")
        untag(regs, vtag, acc, True)
        a(f"v_and_b32 v{acc}, {TAGM}, v{acc}")
        a(f"v_cmp_ne_u32 vcc, 0, v{acc}")
        a("s_cmp_eq_u64 vcc, 0")
        a.branch(f"s_cbranch_scc1 {D}")
        if cfg.POLL_SLEEP: a(f"s_sleep {cfg.POLL_SLEEP}")
        a("s_add_u32 s60, s60, 1")
        a(f"s_cmp_lt_u32 s60, {cfg.G_LIMIT}")
        a.branch(f"s_cbranch_scc1 {L}")
        fail_to(code)
        a.label(D)
    def bf16r(dst, src, tmp=None):
        a(f"v_cvt_pk_bf16_f32 v{dst}, v{src}, v{src}")
        a(f"v_lshlrev_b32 v{dst}, 16, v{dst}")
    DPP = {"x1": "quad_perm:[1,0,3,2]", "x2": "quad_perm:[2,3,0,1]", "r4": "row_ror:4", "r8": "row_ror:8"}
    def dpp_op(op, reg, kind):
        a(f"{op}_dpp v{reg}, v{reg}, v{reg} {DPP[kind]} row_mask:0xf bank_mask:0xf")
    def allred_g(op, reg, tmp):
        for sw in ("v_permlane16_swap_b32", "v_permlane32_swap_b32"):
            a(f"v_mov_b32 v{tmp}, v{reg}")
            a(f"{sw} v{reg}, v{tmp}")
            a(f"{op} v{reg}, v{reg}, v{tmp}")
    def red8(r0, r1, r2, r3):
        a(f"v_permlane32_swap_b32 v{r0}, v{r1}")
        a(f"v_permlane32_swap_b32 v{r2}, v{r3}")
        a(f"v_add_f32 v{r0}, v{r0}, v{r1}")
        a(f"v_add_f32 v{r2}, v{r2}, v{r3}")
        a(f"v_permlane16_swap_b32 v{r0}, v{r2}")
        a(f"v_add_f32 v{r0}, v{r0}, v{r2}")
        for k in ("x2", "r4", "r8"): dpp_op("v_add_f32", r0, k)

    a("s_cmp_ge_u32 s2, 256")
    a.branch("s_cbranch_scc1 L_exit", flush=False)
    a("s_load_dwordx16 s[16:31], s[0:1], 0")
    a("s_load_dwordx4 s[32:35], s[0:1], 64")
    a("s_load_dwordx2 s[36:37], s[0:1], 80")
    stamp(0)
    a("v_lshrrev_b32 v1, 6, v0")
    a("v_and_b32 v0, 63, v0")
    a("v_readfirstlane_b32 s3, v1")
    a("s_and_b32 s4, s2, 7")
    a("s_lshr_b32 s5, s2, 3")
    a("s_lshr_b32 s6, s5, 3")
    a("s_and_b32 s7, s5, 7")
    if cfg.ROT == "hash":
        a("s_mul_i32 s8, s2, 0x9E3779B1")
        a("s_lshr_b32 s8, s8, 26")
    else:
        a("s_mov_b32 s8, 0")
    a(f"v_mov_b32 v2, {CNT_BASE}")
    a("v_mov_b32 v1, 1")
    a(f"s_mov_b32 s58, {(~TAGM) & 0xffffffff}")
    a("s_waitcnt lgkmcnt(0)")
    a("s_load_dword s38, s[36:37], 0")
    srd(52, 36, 37, WS_USED)
    a("s_cmp_lt_u32 s3, 4")
    a.branch("s_cbranch_scc1 L_aux")
    a("s_cmp_lt_u32 s3, 8")
    a.branch("s_cbranch_scc1 L_loader")

    def epoch_barrier():
        a("s_waitcnt lgkmcnt(0)")
        a("s_add_u32 s38, s38, 1")
        a(f"s_and_b32 s39, s38, {TAGM}")
        a("s_barrier")

    a("s_sub_u32 s12, s3, 8")
    a("s_lshl_b32 s9, s6, 3"); a("s_add_u32 s9, s9, s4"); a("s_lshl_b32 s9, s9, 22")
    a("s_lshl_b32 s10, s7, 17"); a("s_add_u32 s9, s9, s10"); a(f"s_add_u32 s9, s9, {12288*256}")
    srd(40, 18, 19, 131072, add="s9")
    a("v_and_b32 v4, 15, v0")
    a("v_lshrrev_b32 v5, 4, v0")
    a("v_lshrrev_b32 v6, 1, v4")
    a("v_lshlrev_b32 v6, 8, v6")
    a("v_and_b32 v7, 1, v4")
    a("v_lshl_add_u32 v6, v7, 6, v6")
    a("v_lshl_add_u32 v3, v5, 4, v6")
    a("s_lshl_b32 s13, s12, 3"); a("s_add_u32 s13, s13, s8")
    KREG = 64
    for i in range(16):
        m, s = i >> 1, i & 1
        if i == cfg.KW:
            epoch_barrier()
        if i >= cfg.KW:
            a(f"s_waitcnt vmcnt({cfg.KW-1})")
        if i == cfg.K8_AT:
            Lx = a.new("Lk")
            a("s_cmp_eq_u32 s12, 0")
            a.branch(f"s_cbranch_scc0 {Lx}")
            a(f"ds_write_b32 v2, v1 offset:{C_CLKQ}")
            a.label(Lx)
        if s == 0:
            a(f"s_add_u32 s10, s13, {m}")
            a("s_and_b32 s10, s10, 63")
            a("s_lshl_b32 s10, s10, 11")
        a(f"buffer_load_dwordx4 v[{KREG+4*i}:{KREG+4*i+3}], v3, s[40:43], s10 offen offset:{s*128}{NT}")
    lds_add1(C_KI, "v1")
    stamp(1)
    a("v_lshrrev_b32 v6, 1, v4"); a("v_and_b32 v6, 3, v6")
    a("v_lshlrev_b32 v8, 8, v6")
    a("v_lshl_add_u32 v8, v7, 6, v8")
    a("v_lshl_add_u32 v8, v5, 4, v8")
    a(f"v_add_u32 v8, {Q_BASE}, v8")
    a("s_mov_b32 s56, 0xaaaaaaaa"); a("s_mov_b32 s57, 0xaaaaaaaa")
    lds_wait(C_QRDY, 1, 0x101, vt="v24")
    a("ds_read_b128 v[12:15], v8 offset:128")
    a("ds_read_b128 v[8:11], v8")
    stamp(2)
    a("s_waitcnt lgkmcnt(0)")
    for m in range(8):
        a(f"s_waitcnt vmcnt({14-2*m})")
        D = 32 + 4 * m
        a(f"v_mfma_f32_16x16x32_bf16 v[{D}:{D+3}], v[{KREG+8*m}:{KREG+8*m+3}], v[8:11], 0")
        a(f"v_mfma_f32_16x16x32_bf16 v[{D}:{D+3}], v[{KREG+8*m+4}:{KREG+8*m+7}], v[12:15], v[{D}:{D+3}]")
    stamp(3)
    for m in range(8):
        D = 32 + 4 * m
        a(f"v_add_f32_dpp v24, v{D+1}, v{D} {DPP['x1']} row_mask:0xf bank_mask:0xf")
        a(f"v_add_f32_dpp v25, v{D+2}, v{D+3} {DPP['x1']} row_mask:0xf bank_mask:0xf")
        a(f"v_cndmask_b32 v{16+m}, v24, v25, s[56:57]")
    for m in range(0, 8, 2):
        x, y = 16 + m, 17 + m
        a(f"v_cvt_pk_bf16_f32 v24, v{x}, v{y}")
        a(f"v_lshlrev_b32 v{x}, 16, v24")
        a(f"v_and_b32 v{y}, 0xffff0000, v24")
        a(f"v_mul_f32 v{x}, {hex(SCALE)}, v{x}")
        a(f"v_mul_f32 v{y}, {hex(SCALE)}, v{y}")
        a(f"v_cvt_pk_bf16_f32 v24, v{x}, v{y}")
        a(f"v_lshlrev_b32 v{x}, 16, v24")
        a(f"v_and_b32 v{y}, 0xffff0000, v24")
    a("v_max3_f32 v24, v16, v17, v18"); a("v_max3_f32 v24, v24, v19, v20"); a("v_max3_f32 v24, v24, v21, v22"); a("v_max_f32 v24, v24, v23")
    dpp_op("v_max_f32", 24, "x1")
    allred_g("v_max_f32", 24, 25)
    a("v_lshlrev_b32 v26, 5, v6")
    a("s_lshl_b32 s9, s12, 2")
    a(f"s_add_u32 s9, s9, {MX_BASE}")
    a("v_add_u32 v27, s9, v26")
    a("ds_write_b32 v27, v24")
    a("s_waitcnt lgkmcnt(0)")
    lds_add1(C_M, "v1")
    lds_wait(C_M, 8, 0x102, vt="v25", sleep=0)
    a(f"v_add_u32 v28, {MX_BASE}, v26")
    a("ds_read_b128 v[32:35], v28")
    a("ds_read_b128 v[36:39], v28 offset:16")
    a("s_waitcnt lgkmcnt(0)")
    a("v_max3_f32 v24, v32, v33, v34"); a("v_max3_f32 v24, v24, v35, v36"); a("v_max3_f32 v24, v24, v37, v38"); a("v_max_f32 v24, v24, v39")
    for m in range(8):
        a(f"v_sub_f32 v{16+m}, v{16+m}, v24")
    for m in range(8):
        a(f"v_mul_f32 v{16+m}, {hex(LOG2E)}, v{16+m}")
    for m in range(8):
        a(f"v_exp_f32 v{16+m}, v{16+m}")
    a(f"v_mul_u32_u24 v29, {P_STRIDE}, v6")
    a("v_lshl_add_u32 v29, v5, 2, v29")
    a("v_lshl_add_u32 v29, v7, 1, v29")
    a("s_lshl_b32 s9, s12, 7"); a(f"s_add_u32 s9, s9, {P_BASE}")
    a("v_add_u32 v29, s9, v29")
    for m in range(8):
        a(f"v_cvt_pk_bf16_f32 v{32+m}, v{16+m}, v{16+m}")
        a(f"ds_write_b16 v29, v{32+m} offset:{16*m}")
    a("v_add_f32 v24, v16, v17"); a("v_add_f32 v25, v18, v19"); a("v_add_f32 v30, v20, v21"); a("v_add_f32 v31, v22, v23")
    a("v_add_f32 v24, v24, v25"); a("v_add_f32 v30, v30, v31"); a("v_add_f32 v24, v24, v30")
    dpp_op("v_add_f32", 24, "x1")
    allred_g("v_add_f32", 24, 25)
    a(f"v_add_u32 v27, {LX_BASE-MX_BASE}, v27")
    a("ds_write_b32 v27, v24")
    a("s_waitcnt lgkmcnt(0)")
    lds_add1(C_P, "v1")
    stamp(4)
    lds_wait(C_P, 8, 0x103, vt="v25", sleep=0)
    a("v_and_b32 v6, 3, v4")
    a(f"v_mul_u32_u24 v29, {P_STRIDE}, v6")
    a("v_lshl_add_u32 v29, v5, 4, v29")
    a(f"v_add_u32 v29, {P_BASE}, v29")
    for ks in range(16):
        a(f"ds_read_b128 v[{64+4*ks}:{64+4*ks+3}], v29 offset:{64*ks}")
    a("v_lshrrev_b32 v8, 2, v4")
    a("v_and_b32 v9, 3, v4")
    a("v_and_b32 v10, 1, v5")
    a("v_lshl_add_u32 v10, v10, 2, v8")
    a("v_xor_b32 v10, s12, v10")
    a("v_lshl_add_u32 v11, v5, 3, v8")
    a("v_lshlrev_b32 v11, 8, v11")
    a("v_lshl_add_u32 v11, v10, 5, v11")
    a("v_lshl_add_u32 v11, v9, 3, v11")
    a("v_add_u32 v12, 0x10000, v11")
    a("v_lshlrev_b32 v13, 14, v6")
    a("v_lshl_add_u32 v13, v5, 4, v13")
    a("s_lshl_b32 s9, s4, 4"); a("s_lshr_b32 s10, s12, 1"); a("s_add_u32 s9, s9, s10"); a("s_lshl_b32 s9, s9, 12")
    a("s_lshl_b32 s10, s5, 7"); a("s_add_u32 s9, s9, s10")
    a("s_and_b32 s10, s12, 1"); a("s_lshl_b32 s10, s10, 6"); a("s_add_u32 s9, s9, s10")
    a(f"s_add_u32 s14, s9, {OBUF}")
    a("v_mov_b32 v14, s39")
    a("s_mov_b32 s63, 0")
    a("s_waitcnt lgkmcnt(0)")
    stamp(5)
    for ks in range(16):
        Lok = a.new("Lok")
        if ks == 15:
            lds_wait(C_SC, 1, 0x104, vt="v24")
            a(f"v_lshlrev_b32 v24, 2, v6")
            a(f"v_add_u32 v24, {SC_BASE}, v24")
            a("ds_read_b32 v15, v24")
        a(f"s_cmp_ge_u32 s63, {ks+1}")
        a.branch(f"s_cbranch_scc1 {Lok}", flush=False)
        prog_wait(ks + 1, 0x105, vt=24, sleep=(1 if ks < 13 else 0))
        a("s_mov_b32 s63, s62")
        a.label(Lok, flush=False)
        ad = "v11" if ks < 8 else "v12"
        off = (ks & 7) * 8192
        A = 32 + 4 * (ks & 3)
        a(f"ds_read_b64_tr_b16 v[{A}:{A+1}], {ad} offset:{off}")
        a(f"ds_read_b64_tr_b16 v[{A+2}:{A+3}], {ad} offset:{off+1024}")
        a("s_waitcnt lgkmcnt(0)")
        a(f"v_mfma_f32_16x16x32_bf16 v[48:51], v[{A}:{A+3}], v[{64+4*ks}:{64+4*ks+3}], " + ("0" if ks == 0 else "v[48:51]"))
    stamp(6)
    for r in range(4): a(f"v_mul_f32 v{48+r}, v15, v{48+r}")
    tag4([48, 49, 50, 51], 14)
    a("s_mov_b32 s10, 0x000f000f")
    a("s_mov_b32 exec_lo, s10"); a("s_mov_b32 exec_hi, s10")
    a("buffer_store_dwordx4 v[48:51], v13, s[52:55], s14 offen sc1")
    a("s_mov_b64 exec, -1")
    stamp(7)
    stamps_out(8, {1: 1, 4: 2, 7: 3})
    a("s_endpgm")

    a.label("L_loader")
    if cfg.PRIO_LD: a(f"s_setprio {cfg.PRIO_LD}")
    a("s_sub_u32 s12, s3, 4")
    a("s_lshl_b32 s9, s6, 3"); a("s_add_u32 s9, s9, s4"); a("s_lshl_b32 s9, s9, 22")
    a("s_lshl_b32 s10, s7, 17"); a("s_add_u32 s9, s9, s10"); a(f"s_add_u32 s9, s9, {12288*256}")
    srd(40, 20, 21, 131072, add="s9")
    srd(44, 24, 25, 4096 * 1024)
    srd(48, 30, 31, 1792 * 1024)
    a("s_cmp_lt_u32 s2, 224")
    a("s_cselect_b32 s50, s50, 0")
    a("v_lshrrev_b32 v5, 4, v0")
    a("s_and_b32 s9, s12, 1"); a("s_lshl_b32 s9, s9, 2")
    a("v_or_b32 v6, s9, v5")
    a("v_lshlrev_b32 v6, 1, v6")
    a("v_and_b32 v7, 15, v0")
    a("v_xor_b32 v6, v6, v7")
    a("v_lshlrev_b32 v6, 4, v6")
    a("v_lshl_add_u32 v8, v5, 8, v6")
    a("v_lshl_add_u32 v9, v5, 10, v6")
    a("s_lshl_b32 s9, s12, 2")
    a(f"s_add_u32 s9, s9, {C_PROG}")
    a("v_add_u32 v10, s9, v2")
    epoch_barrier()
    lds_wait(C_KI, cfg.KI_TARGET, 0x201)
    lds_wait(C_QS, 4, 0x202)
    stamp(1)
    a("s_lshr_b32 s9, s2, 2"); a("s_lshl_b32 s9, s9, 5"); a("s_lshl_b32 s10, s12, 3"); a("s_add_u32 s9, s9, s10")
    a("s_lshl_b32 s9, s9, 10"); a("s_and_b32 s10, s2, 3"); a("s_lshl_b32 s10, s10, 8"); a("s_add_u32 s9, s9, s10")
    a("s_lshl_b32 s11, s12, 11")
    for i in range(2):
        a(f"s_add_u32 s13, s11, {W1_BASE + 1024*i}")
        a("s_mov_b32 m0, s13")
        a(f"s_add_u32 s10, s9, {4096*i}")
        a(f"buffer_load_dwordx4 v9, s[48:51], s10 offen{NT} lds")
    a("s_add_u32 s14, s8, s12")
    NP = cfg.VW // 2
    for ks in range(16):
        if ks + 1 >= NP:
            a(f"s_waitcnt vmcnt({cfg.VW-2})")
            done = ks + 1 - NP
            done = ks - (NP - 1)
            if done >= 1:
                a(f"v_mov_b32 v11, {done}")
                a("ds_write_b32 v10, v11")
        a(f"s_add_u32 s10, s14, {4*ks}")
        a("s_and_b32 s10, s10, 63")
        a("s_lshl_b32 s10, s10, 11")
        a(f"s_add_u32 s13, s11, {V_BASE + 8192*ks}")
        a("s_mov_b32 m0, s13")
        a("s_nop 0")
        a(f"buffer_load_dwordx4 v8, s[40:43], s10 offen{NT} lds")
        a(f"buffer_load_dwordx4 v8, s[40:43], s10 offen offset:1024{NT} lds")
    stamp(2)
    a("s_lshl_b32 s9, s4, 9"); a("s_lshr_b32 s10, s5, 1"); a("s_lshl_b32 s10, s10, 5"); a("s_add_u32 s9, s9, s10")
    a("s_lshl_b32 s10, s12, 3"); a("s_add_u32 s9, s9, s10"); a("s_lshl_b32 s9, s9, 10")
    a("s_and_b32 s10, s5, 1"); a("s_lshl_b32 s10, s10, 9"); a("s_add_u32 s9, s9, s10")
    for h2 in range(2):
        for i in range(2):
            a(f"s_add_u32 s13, s11, {WQ_BASE + 8192*h2 + 1024*i}")
            a("s_mov_b32 m0, s13")
            a(f"s_add_u32 s10, s9, {256*h2 + 4096*i}")
            a(f"buffer_load_dwordx4 v9, s[44:47], s10 offen{NT} lds")
    for k in range(NP - 1, -1, -1):
        a(f"s_waitcnt vmcnt({4 + 2*k})")
        a(f"v_mov_b32 v11, {16 - k}")
        a("ds_write_b32 v10, v11")
        if k == 0: stamp(3)
    a("s_waitcnt vmcnt(0)")
    a("v_mov_b32 v11, 17")
    a("ds_write_b32 v10, v11")
    stamp(4)
    stamps_out(5, {3: 4, 4: 5})
    a("s_waitcnt lgkmcnt(0)")
    a("s_endpgm")

    a.label("L_aux")
    if cfg.PRIO_AUX: a(f"s_setprio {cfg.PRIO_AUX}")
    srd(40, 16, 17, 4096)
    srd(44, 22, 23, 512 * 8192)
    srd(48, 28, 29, 512 * 3584)
    a("s_cmp_lt_u32 s2, 224")
    a("s_cselect_b32 s50, s50, 0")
    a("v_and_b32 v4, 15, v0")
    a("v_lshrrev_b32 v5, 4, v0")
    a("v_lshrrev_b32 v6, 2, v4")
    a("v_and_b32 v7, 3, v4")
    a("v_lshl_add_u32 v8, v7, 2, v5")
    a("v_lshlrev_b32 v8, 6, v8")
    a("v_lshl_add_u32 v8, v6, 10, v8")
    for i in range(4):
        a(f"buffer_load_dwordx4 v[{16+4*i}:{19+4*i}], v8, s[40:43], 0 offen offset:{16*i}")
    a("v_lshlrev_b32 v9, 4, v5")
    a("v_lshl_add_u32 v9, v6, 10, v9")
    a("s_lshr_b32 s12, s5, 3")
    a("s_and_b32 s13, s5, 7")
    a("s_and_b32 s14, s2, 7")
    a("s_lshr_b32 s15, s2, 3")
    a("s_lshl_b32 s9, s12, 8"); a("s_lshl_b32 s10, s3, 6"); a("s_add_u32 s9, s9, s10")
    a("buffer_load_dwordx4 v[32:35], v9, s[40:43], s9 offen")
    a("s_lshl_b32 s9, s14, 7"); a("s_and_b32 s10, s3, 1"); a("s_lshl_b32 s10, s10, 6"); a("s_add_u32 s9, s9, s10")
    a("buffer_load_dwordx4 v[36:39], v9, s[40:43], s9 offen")
    a("v_lshrrev_b32 v10, 3, v0"); a("v_and_b32 v11, 7, v0"); a("v_lshlrev_b32 v11, 4, v11")
    a("v_lshl_add_u32 v12, v10, 13, v11")
    a("v_mul_u32_u24 v13, 3584, v10"); a("v_add_u32 v13, v13, v11")
    a("s_lshl_b32 s9, s12, 7"); a("s_lshl_b32 s10, s3, 5"); a("s_add_u32 s9, s9, s10"); a("s_lshl_b32 s9, s9, 13")
    a("s_lshl_b32 s10, s4, 10"); a("s_add_u32 s9, s9, s10"); a("s_lshl_b32 s10, s13, 7"); a("s_add_u32 s9, s9, s10")
    a("s_lshl_b32 s11, s3, 12")
    for i in range(4):
        a(f"s_add_u32 s10, s11, {WQ_BASE + 1024*i}")
        a("s_mov_b32 m0, s10")
        a(f"s_add_u32 s10, s9, {8*8192*i}")
        a(f"buffer_load_dwordx4 v12, s[44:47], s10 offen{NT} lds")
    a("s_lshl_b32 s9, s14, 6"); a("s_lshl_b32 s10, s3, 4"); a("s_add_u32 s9, s9, s10"); a("s_mul_i32 s9, s9, 3584")
    a("s_lshl_b32 s10, s15, 7"); a("s_add_u32 s9, s9, s10")
    a("s_lshl_b32 s11, s3, 11")
    for i in range(2):
        a(f"s_add_u32 s10, s11, {W1_BASE + 1024*i}")
        a("s_mov_b32 m0, s10")
        a(f"s_add_u32 s10, s9, {8*3584*i}")
        a(f"buffer_load_dwordx4 v13, s[48:51], s10 offen{NT} lds")
    Lc = a.new("Lc")
    a("s_cmp_eq_u32 s3, 0")
    a.branch(f"s_cbranch_scc0 {Lc}")
    a("v_lshl_add_u32 v14, v0, 2, v2")
    a("v_mov_b32 v15, 0")
    a("ds_write_b32 v14, v15")
    a.label(Lc)
    epoch_barrier()
    a("v_mov_b32 v14, s39")
    stamp(1)
    a("s_waitcnt vmcnt(6)")
    acc = None
    for i in range(16):
        a(f"v_lshlrev_b32 v{64+2*i}, 16, v{16+i}")
        a(f"v_and_b32 v{65+2*i}, 0xffff0000, v{16+i}")
    a("v_add_f32 v40, v64, v65"); a("v_add_f32 v41, v66, v67"); a("v_add_f32 v42, v68, v69"); a("v_add_f32 v43, v70, v71")
    for i in range(8, 32, 4):
        for k in range(4): a(f"v_add_f32 v{40+k}, v{40+k}, v{64+i+k}")
    a("v_add_f32 v40, v40, v41"); a("v_add_f32 v42, v42, v43"); a("v_add_f32 v40, v40, v42")
    dpp_op("v_add_f32", 40, "x1"); dpp_op("v_add_f32", 40, "x2"); allred_g("v_add_f32", 40, 41)
    a("v_mul_f32 v40, 0x3b000000, v40")
    for i in range(32): a(f"v_sub_f32 v{64+i}, v{64+i}, v40")
    for k in range(4): a(f"v_mul_f32 v{42+k}, v{64+k}, v{64+k}")
    for i in range(4, 32, 4):
        for k in range(4): a(f"v_fmac_f32 v{42+k}, v{64+i+k}, v{64+i+k}")
    a("v_add_f32 v42, v42, v43"); a("v_add_f32 v44, v44, v45"); a("v_add_f32 v42, v42, v44")
    dpp_op("v_add_f32", 42, "x1"); dpp_op("v_add_f32", 42, "x2"); allred_g("v_add_f32", 42, 41)
    a("v_mul_f32 v42, 0x3b000000, v42")
    bf16r(40, 40)
    bf16r(42, 42)
    a(f"v_add_f32 v42, {hex(EPS)}, v42"); bf16r(42, 42)
    a("v_sqrt_f32 v42, v42"); bf16r(42, 42)
    a("v_rcp_f32 v42, v42")
    for d in range(32, 40):
        a(f"v_lshlrev_b32 v44, 16, v{d}")
        a(f"v_and_b32 v45, 0xffff0000, v{d}")
        a("v_sub_f32 v44, v44, v40"); a("v_sub_f32 v45, v45, v40")
        a("v_cvt_pk_bf16_f32 v46, v44, v45")
        a("v_lshlrev_b32 v44, 16, v46"); a("v_and_b32 v45, 0xffff0000, v46")
        a("v_mul_f32 v44, v44, v42"); a("v_mul_f32 v45, v45, v42")
        a(f"v_cvt_pk_bf16_f32 v{d}, v44, v45")
    a("v_lshlrev_b32 v15, 4, v0")
    a("s_lshl_b32 s9, s3, 10")
    a(f"s_add_u32 s9, s9, {XN_BASE}")
    a("v_add_u32 v44, s9, v15")
    a("ds_write_b128 v44, v[32:35]")
    a("s_and_b32 s9, s3, 1"); a("s_lshl_b32 s9, s9, 10"); a(f"s_add_u32 s9, s9, {XN_BASE + 4096}")
    a("v_add_u32 v44, s9, v15")
    a("ds_write_b128 v44, v[36:39]")
    stamp(2)
    a("s_waitcnt vmcnt(0) lgkmcnt(0)")
    lds_add1(C_W, "v1")
    lds_wait(C_W, 4, 0x301, sleep=0)
    stamp(3)
    if XN_BASE: a(f"v_add_u32 v15, {XN_BASE}, v15")
    for f in range(6):
        a(f"ds_read_b128 v[{32+4*f}:{35+4*f}], v15 offset:{1024*f}")
    a("v_lshrrev_b32 v8, 2, v4")
    a("v_lshl_add_u32 v9, v5, 3, v8")
    a("v_lshlrev_b32 v9, 7, v9")
    a("v_lshl_add_u32 v9, v7, 3, v9")
    a("s_lshl_b32 s9, s3, 5")
    a(f"s_add_u32 s10, s9, {WQ_BASE}")
    a("v_add_u32 v10, s10, v9")
    a(f"s_add_u32 s10, s9, {W1_BASE}")
    a("v_add_u32 v11, s10, v9")
    for ks in range(4):
        a(f"ds_read_b64_tr_b16 v[{64+4*ks}:{65+4*ks}], v10 offset:{4096*ks}")
        a(f"ds_read_b64_tr_b16 v[{66+4*ks}:{67+4*ks}], v10 offset:{4096*ks+512}")
    for ks in range(2):
        a(f"ds_read_b64_tr_b16 v[{80+4*ks}:{81+4*ks}], v11 offset:{4096*ks}")
        a(f"ds_read_b64_tr_b16 v[{82+4*ks}:{83+4*ks}], v11 offset:{4096*ks+512}")
    a("s_waitcnt lgkmcnt(0)")
    lds_add1(C_QS, "v1")
    for ks in range(4):
        a(f"v_mfma_f32_16x16x32_bf16 v[56:59], v[{64+4*ks}:{67+4*ks}], v[{32+4*ks}:{35+4*ks}], " + ("0" if ks == 0 else "v[56:59]"))
    for ks in range(2):
        a(f"v_mfma_f32_16x16x32_bf16 v[60:63], v[{80+4*ks}:{83+4*ks}], v[{48+4*ks}:{51+4*ks}], " + ("0" if ks == 0 else "v[60:63]"))
    a("v_lshlrev_b32 v8, 13, v6"); a("v_lshl_add_u32 v8, v5, 4, v8")
    a("s_lshl_b32 s9, s4, 15"); a("s_lshl_b32 s10, s12, 11"); a("s_add_u32 s9, s9, s10")
    a("s_lshl_b32 s10, s13, 8"); a("s_add_u32 s9, s9, s10"); a("s_lshl_b32 s10, s3, 6"); a("s_add_u32 s9, s9, s10")
    a(f"s_add_u32 s9, s9, {QBUF}")
    tag4([56, 57, 58, 59], 14)
    a("s_mov_b32 s10, 0x11111111")
    a("s_mov_b32 exec_lo, s10"); a("s_mov_b32 exec_hi, s10")
    a("buffer_store_dwordx4 v[56:59], v8, s[52:55], s9 offen sc1")
    a("s_mov_b64 exec, -1")
    Lnh = a.new("Lnh")
    a("s_cmp_lt_u32 s2, 224")
    a.branch(f"s_cbranch_scc0 {Lnh}")
    a("v_lshlrev_b32 v9, 10, v6"); a("v_lshl_add_u32 v9, v5, 4, v9")
    a("s_lshl_b32 s9, s15, 1"); a("s_lshr_b32 s10, s3, 1"); a("s_add_u32 s9, s9, s10"); a("s_lshl_b32 s9, s9, 12")
    a("s_lshl_b32 s10, s14, 7"); a("s_add_u32 s9, s9, s10")
    a("s_and_b32 s10, s3, 1"); a("s_lshl_b32 s10, s10, 6"); a("s_add_u32 s9, s9, s10")
    a(f"s_add_u32 s9, s9, {HBUF}")
    tag4([60, 61, 62, 63], 14)
    a("s_mov_b32 s10, 0x11111111")
    a("s_mov_b32 exec_lo, s10"); a("s_mov_b32 exec_hi, s10")
    a("buffer_store_dwordx4 v[60:63], v9, s[52:55], s9 offen sc1")
    a("s_mov_b64 exec, -1")
    a.label(Lnh)
    stamp(4)
    a("v_lshlrev_b32 v16, 10, v6"); a("v_lshl_add_u32 v16, v7, 7, v16"); a("v_lshl_add_u32 v16, v5, 5, v16")
    a("v_lshrrev_b32 v8, 2, v4")
    a("v_and_b32 v10, 1, v5")
    a("v_lshl_add_u32 v10, v10, 2, v8")
    a("v_lshl_add_u32 v17, v5, 3, v8")
    a("v_lshlrev_b32 v17, 8, v17")
    a("v_lshl_add_u32 v17, v10, 5, v17")
    a("v_lshl_add_u32 v17, v7, 3, v17")

    def gather8(soff, code, relu):
        loads = [f"buffer_load_dwordx4 v[{64+4*i}:{67+4*i}], v16, s[52:55], {soff} offen offset:{o} sc1" for i, o in enumerate((0, 16, 512, 528))]
        poll(loads, list(range(64, 80)), 14, 41, code)
        for k in range(8): a(f"v_add_f32 v{64+k}, v{64+k}, v{72+k}")
        for kind in ("x1", "x2"):
            for k in range(8): dpp_op("v_add_f32", 64 + k, kind)
        if relu:
            for k in range(8): a(f"v_max_f32 v{64+k}, 0, v{64+k}")
        for k in range(4): a(f"v_cvt_pk_bf16_f32 v{40+k}, v{64+2*k}, v{65+2*k}")
    def tile_frags(base_expr_sgpr, ct0, dst, ntile):
        for t in range(ntile):
            a(f"v_xor_b32 v18, {(t)<<5}, v17")
            a(f"v_xor_b32 v18, {ct0}, v18")
            a(f"v_add_u32 v18, {base_expr_sgpr}, v18")
            a(f"ds_read_b64_tr_b16 v[{dst+4*t}:{dst+4*t+1}], v18")
            a(f"ds_read_b64_tr_b16 v[{dst+4*t+2}:{dst+4*t+3}], v18 offset:1024")
    def mfma4_select(A, D):
        for t in range(4):
            a(f"v_mfma_f32_16x16x32_bf16 v[{D+4*t}:{D+4*t+3}], v[{A+4*t}:{A+4*t+3}], v[40:43], 0")
        for r in range(4):
            a(f"v_cndmask_b32 v{44+r}, v{D+r}, v{D+4+r}, s[56:57]")
        for r in range(4):
            a(f"v_cndmask_b32 v{D+r}, v{D+8+r}, v{D+12+r}, s[56:57]")
        for r in range(4):
            a(f"v_cndmask_b32 v{44+r}, v{44+r}, v{D+r}, s[62:63]")
    a("s_mov_b32 s56, 0xaaaaaaaa"); a("s_mov_b32 s57, 0xaaaaaaaa")

    a("s_cmp_eq_u32 s3, 1"); a.branch("s_cbranch_scc1 L_aux1")
    a("s_cmp_eq_u32 s3, 2"); a.branch("s_cbranch_scc1 L_aux2")
    a("s_cmp_eq_u32 s3, 3"); a.branch("s_cbranch_scc1 L_aux3")
    lds_wait(C_CLKQ, 1, 0x310)
    a("v_lshlrev_b32 v18, 5, v0")
    a("s_lshl_b32 s9, s4, 2"); a("s_add_u32 s9, s9, s6"); a("s_lshl_b32 s9, s9, 13"); a(f"s_add_u32 s9, s9, {QBUF}")
    loads = []
    for rb in range(4):
        for hf in range(2):
            loads.append((rb, hf))
    a(f"s_add_u32 s10, s9, 4096")
    ld = [f"buffer_load_dwordx4 v[{64+8*rb+4*hf}:{67+8*rb+4*hf}], v18, s[52:55], {'s9' if rb < 2 else 's10'} offen offset:{(rb&1)*2048+16*hf} sc1" for rb, hf in loads]
    poll(ld, list(range(64, 96)), 14, 41, 0x311)
    for k in range(8):
        a(f"v_add_f32 v{64+k}, v{64+k}, v{72+k}"); a(f"v_add_f32 v{80+k}, v{80+k}, v{88+k}")
    for k in range(8): a(f"v_add_f32 v{64+k}, v{64+k}, v{80+k}")
    for k in range(4): a(f"v_cvt_pk_bf16_f32 v{40+k}, v{64+2*k}, v{65+2*k}")
    a("v_lshlrev_b32 v18, 4, v0"); a(f"v_add_u32 v18, {Q_BASE}, v18")
    a("ds_write_b128 v18, v[40:43]")
    a("s_waitcnt lgkmcnt(0)")
    a(f"ds_write_b32 v2, v1 offset:{C_QRDY}")
    stamp(5)
    a.branch("s_branch L_wo")
    a.label("L_aux1")
    a("s_cmp_lt_u32 s2, 224")
    a.branch("s_cbranch_scc0 L_wo")
    lds_wait(C_CLKQ, 1, 0x320)
    a("s_lshr_b32 s12, s2, 2"); a("s_lshl_b32 s9, s12, 12"); a(f"s_add_u32 s9, s9, {HBUF}")
    gather8("s9", 0x321, relu=True)
    prog_wait(1, 0x322)
    a(f"s_mov_b32 s13, {W1_BASE}")
    tile_frags("s13", 0, 64, 8)
    a("s_waitcnt lgkmcnt(0)")
    a("v_lshlrev_b32 v19, 6, v6"); a("v_lshl_add_u32 v19, v7, 1, v19"); a("v_lshrrev_b32 v20, 1, v5"); a("v_add_u32 v19, v19, v20")
    a("v_lshlrev_b32 v19, 11, v19"); a("v_and_b32 v20, 1, v5"); a("v_lshl_add_u32 v19, v20, 4, v19")
    a("s_and_b32 s9, s2, 3"); a("s_lshl_b32 s9, s9, 15"); a("s_lshl_b32 s10, s12, 5"); a("s_add_u32 s9, s9, s10"); a(f"s_add_u32 s9, s9, {YBUF}")
    a("s_mov_b32 s62, 0xcccccccc"); a("s_mov_b32 s63, 0xcccccccc")
    for t in range(2):
        mfma4_select(64 + 16 * t, 96)
        tag4([44, 45, 46, 47], 14)
        if t == 1: a("s_add_u32 s9, s9, 0x4000")
        a("buffer_store_dwordx4 v[44:47], v19, s[52:55], s9 offen sc1")
    a(f"ds_write_b32 v2, v1 offset:{C_Y}")
    stamp(5)
    a.branch("s_branch L_wo")
    a.label("L_aux2")
    lds_wait(C_P, 8, 0x330)
    a(f"v_mov_b32 v18, {MX_BASE}")
    for h in range(4):
        a(f"ds_read_b128 v[{64+8*h}:{67+8*h}], v18 offset:{32*h}")
        a(f"ds_read_b128 v[{68+8*h}:{71+8*h}], v18 offset:{32*h+16}")
        a(f"ds_read_b128 v[{96+8*h}:{99+8*h}], v18 offset:{128+32*h}")
        a(f"ds_read_b128 v[{100+8*h}:{103+8*h}], v18 offset:{128+32*h+16}")
    a("s_waitcnt lgkmcnt(0)")
    for h in range(4):
        B = 64 + 8 * h
        a(f"v_max3_f32 v{44+h}, v{B}, v{B+1}, v{B+2}"); a(f"v_max3_f32 v{44+h}, v{44+h}, v{B+3}, v{B+4}")
        a(f"v_max3_f32 v{44+h}, v{44+h}, v{B+5}, v{B+6}"); a(f"v_max_f32 v{44+h}, v{44+h}, v{B+7}")
        B = 96 + 8 * h
        a(f"v_add_f32 v{48+h}, v{B}, v{B+1}")
        for k in range(2, 8): a(f"v_add_f32 v{48+h}, v{48+h}, v{B+k}")
    for h in range(4): a(f"v_cndmask_b32 v{52+h}, v{44+h}, v{48+h}, s[56:57]")
    tag4([52, 53, 54, 55], 14)
    a("s_lshl_b32 s9, s4, 2"); a("s_add_u32 s9, s9, s6"); a("s_lshl_b32 s9, s9, 8"); a(f"s_add_u32 s9, s9, {MLBUF}")
    a("s_lshl_b32 s10, s7, 5"); a("s_add_u32 s10, s10, s9")
    a("v_lshlrev_b32 v18, 4, v0")
    a("s_mov_b64 exec, 3")
    a("buffer_store_dwordx4 v[52:55], v18, s[52:55], s10 offen sc1")
    a("s_mov_b64 exec, -1")
    a("v_lshlrev_b32 v18, 4, v4")
    poll([f"buffer_load_dwordx4 v[64:67], v18, s[52:55], s9 offen sc1"], [64, 65, 66, 67], 14, 41, 0x331)
    for h in range(4):
        a(f"v_mov_b32_dpp v{68+h}, v{64+h} {DPP['x1']} row_mask:0xf bank_mask:0xf")
    for h in range(4):
        a(f"v_cndmask_b32 v{72+h}, v{64+h}, v{68+h}, s[56:57]")
        a(f"v_cndmask_b32 v{76+h}, v{68+h}, v{64+h}, s[56:57]")
    for h in range(4): a(f"v_mov_b32 v{80+h}, v{72+h}")
    for kind in ("x2", "r4", "r8"):
        for h in range(4): dpp_op("v_max_f32", 80 + h, kind)
    for h in range(4): a(f"v_sub_f32 v{72+h}, v{72+h}, v{80+h}")
    for h in range(4): a(f"v_mul_f32 v{72+h}, {hex(LOG2E)}, v{72+h}")
    for h in range(4): a(f"v_exp_f32 v{72+h}, v{72+h}")
    for h in range(4): a(f"v_mul_f32 v{72+h}, v{72+h}, v{76+h}")
    for kind in ("x2", "r4", "r8"):
        for h in range(4): dpp_op("v_add_f32", 72 + h, kind)
    for h in range(4): a(f"v_sub_f32 v{44+h}, v{44+h}, v{80+h}")
    for h in range(4): a(f"v_mul_f32 v{44+h}, {hex(LOG2E)}, v{44+h}")
    for h in range(4): a(f"v_exp_f32 v{44+h}, v{44+h}")
    for h in range(4): a(f"v_rcp_f32 v{72+h}, v{72+h}")
    for h in range(4): a(f"v_mul_f32 v{44+h}, v{44+h}, v{72+h}")
    a(f"v_mov_b32 v18, {SC_BASE}")
    a("ds_write_b128 v18, v[44:47]")
    a("s_waitcnt lgkmcnt(0)")
    a(f"ds_write_b32 v2, v1 offset:{C_SC}")
    stamp(5)
    a.branch("s_branch L_wo")
    a.label("L_aux3")
    Ly = a.new("Ly")
    a("s_cmp_lt_u32 s2, 224")
    a.branch(f"s_cbranch_scc0 {Ly}")
    lds_wait(C_Y, 1, 0x340)
    a.label(Ly)
    prog_wait(2, 0x341)
    a("v_lshlrev_b32 v18, 4, v0")
    a("s_lshl_b32 s9, s2, 11"); a(f"s_add_u32 s9, s9, {YBUF}")
    a("v_lshrrev_b32 v20, 1, v5"); a("v_and_b32 v21, 1, v5"); a("v_lshl_add_u32 v20, v21, 1, v20")
    a("v_and_b32 v21, 1, v0"); a("v_lshl_add_u32 v20, v21, 2, v20")
    a("s_lshl_b32 s10, s2, 3")
    a("v_add_u32 v20, s10, v20"); a("v_lshlrev_b32 v20, 1, v20")
    a("buffer_load_ushort v21, v20, s[40:43], 0 offen")
    def pre():
        for k in range(4): a(f"v_mov_b32 v{68+k}, v14")
    L, Dn = a.new("Lg"), a.new("Ld")
    a("s_mov_b32 s60, 0")
    a.label(L)
    pre()
    a("buffer_load_dwordx4 v[64:67], v18, s[52:55], s9 offen sc1")
    a("s_mov_b32 exec_hi, 0xffff")
    a("buffer_load_dwordx4 v[68:71], v18, s[52:55], s9 offen offset:1024 sc1")
    a("s_mov_b64 exec, -1")
    a("s_waitcnt vmcnt(0)")
    untag(list(range(64, 72)), 14, 41, True)
    a(f"v_and_b32 v41, {TAGM}, v41")
    a("v_cmp_ne_u32 vcc, 0, v41")
    a("s_cmp_eq_u64 vcc, 0")
    a.branch(f"s_cbranch_scc1 {Dn}")
    a("s_sleep 2")
    a("s_add_u32 s60, s60, 1"); a(f"s_cmp_lt_u32 s60, {cfg.G_LIMIT}")
    a.branch(f"s_cbranch_scc1 {L}")
    fail_to(0x342)
    a.label(Dn)
    for k in range(4): a(f"v_add_f32 v{64+k}, v{64+k}, v{68+k}")
    red8(64, 65, 66, 67)
    bf16r(64, 64)
    a(f"v_mul_f32 v65, {hex(LOG2E ^ 0x80000000)}, v64")
    a("v_exp_f32 v65, v65")
    a("v_add_f32 v65, 1.0, v65")
    a("v_rcp_f32 v65, v65")
    a("v_mul_f32 v65, v64, v65")
    bf16r(22, 65)
    a("v_lshlrev_b32 v21, 16, v21")
    stamp(5)
    a.label("L_wo")
    prog_wait(17, 0x350)
    stamp(6)
    a("s_lshr_b32 s9, s3, 1"); a("s_lshl_b32 s9, s9, 13"); a(f"s_add_u32 s13, s9, {WQ_BASE}")
    a("s_and_b32 s9, s3, 1"); a("s_lshl_b32 s12, s9, 7")
    tile_frags("s13", "s12", 96, 4)
    a("s_lshl_b32 s9, s4, 4"); a("s_lshr_b32 s10, s5, 1"); a("s_add_u32 s15, s9, s10")
    a("s_lshl_b32 s9, s15, 12"); a(f"s_add_u32 s9, s9, {OBUF}")
    a("v_lshlrev_b32 v19, 6, v6"); a("v_lshl_add_u32 v19, v7, 1, v19"); a("v_lshrrev_b32 v18, 1, v5"); a("v_add_u32 v19, v19, v18")
    a("v_lshlrev_b32 v19, 12, v19"); a("v_and_b32 v18, 1, v5"); a("v_lshl_add_u32 v19, v18, 4, v19")
    a("s_and_b32 s10, s5, 1"); a("s_lshl_b32 s10, s10, 5"); a("s_lshl_b32 s11, s3, 3"); a("s_add_u32 s10, s10, s11"); a("s_lshl_b32 s10, s10, 12")
    a("s_lshl_b32 s11, s15, 5"); a("s_add_u32 s10, s10, s11"); a(f"s_add_u32 s14, s10, {SBUF}")
    gather8("s9", 0x351, relu=False)
    stamp(7)
    a("s_mov_b32 s62, 0xcccccccc"); a("s_mov_b32 s63, 0xcccccccc")
    a("s_waitcnt lgkmcnt(0)")
    mfma4_select(96, 64)
    tag4([44, 45, 46, 47], 14)
    a("buffer_store_dwordx4 v[44:47], v19, s[52:55], s14 offen sc1")
    stamp(8)
    Lfin = a.new("Lfin")
    a("s_cmp_eq_u32 s3, 3")
    a.branch(f"s_cbranch_scc1 {Lfin}")
    stamps_out(9, {4: 6, 5: 7, 7: 8, 8: 9})
    a("s_endpgm")
    a.label(Lfin)
    a("v_lshlrev_b32 v18, 4, v0")
    a("s_lshl_b32 s9, s2, 12"); a(f"s_add_u32 s9, s9, {SBUF}")
    ld = [f"buffer_load_dwordx4 v[{64+4*i}:{67+4*i}], v18, s[52:55], s9 offen offset:{1024*i} sc1" for i in range(4)]
    poll(ld, list(range(64, 80)), 14, 41, 0x360)
    stamp(9)
    for k in range(4):
        a(f"v_add_f32 v{64+k}, v{64+k}, v{68+k}"); a(f"v_add_f32 v{72+k}, v{72+k}, v{76+k}")
    for k in range(4): a(f"v_add_f32 v{64+k}, v{64+k}, v{72+k}")
    red8(64, 65, 66, 67)
    bf16r(64, 64)
    a("v_mul_f32 v64, v64, v22"); bf16r(64, 64)
    a("v_add_f32 v64, v21, v64")
    a("v_cvt_pk_bf16_f32 v64, v64, v64")
    srd(44, 32, 33, 4096)
    a("s_mov_b32 s10, 0x00030003")
    a("s_mov_b32 exec_lo, s10"); a("s_mov_b32 exec_hi, s10")
    a("buffer_store_short v64, v20, s[44:47], 0 offen")
    a("s_mov_b64 exec, -1")
    Le = a.new("Le")
    a("s_cmp_eq_u32 s2, 0")
    a.branch(f"s_cbranch_scc0 {Le}")
    a("v_mov_b32 v4, s38"); a("v_mov_b32 v5, 0")
    a("s_mov_b64 exec, 1")
    a("buffer_store_dword v4, v5, s[52:55], 0 offen sc1")
    a("s_mov_b64 exec, -1")
    a.label(Le)
    stamp(10)
    stamps_out(11, {4: 6, 5: 7, 7: 8, 8: 9, 9: 10, 10: 11})
    a("s_endpgm")
    a.label("L_fail")
    a("v_mov_b32 v4, s61"); a("s_lshl_b32 s9, s3, 2"); a("v_mov_b32 v5, s9")
    a("s_mov_b64 exec, 1")
    a("global_store_dword v5, v4, s[34:35]")
    a.label("L_exit", flush=False)
    a("s_endpgm")
    return a

def wrap(a, lds=LDS_SIZE):
    hdr = open(REF).read().split("; Override launch geometry")[0]
    s = hdr
    s += "; Generated by gen/kern.py (hand-written schedule, see comments).\n"
    s += f"; @launch grid=(256,1,1) block=(1024,1,1) lds={lds}\n"
    s += '.amdgcn_target "amdgcn-amd-amdhsa--gfx950"\n.text\n'
    s += f".globl {KNAME}\n.p2align 8\n.type {KNAME},@function\n{KNAME}:\n"
    s += a.text()
    s += '.section .rodata,"a"\n.p2align 6\n'
    s += f".amdhsa_kernel {KNAME}\n"
    s += "  .amdhsa_next_free_vgpr 128\n  .amdhsa_next_free_sgpr 102\n  .amdhsa_accum_offset 128\n"
    s += "  .amdhsa_group_segment_fixed_size 0\n  .amdhsa_kernarg_size 88\n  .amdhsa_user_sgpr_count 2\n"
    s += "  .amdhsa_user_sgpr_kernarg_segment_ptr 1\n  .amdhsa_system_sgpr_workgroup_id_x 1\n"
    s += ".end_amdhsa_kernel\n"
    return s

if __name__ == "__main__":
    out = sys.argv[1] if len(sys.argv) > 1 else "k1.s"
    class C(Cfg): pass
    for kv in sys.argv[2:]:
        k, v = kv.split("=")
        cur = getattr(Cfg, k)
        setattr(C, k, (v == "1") if isinstance(cur, bool) else type(cur)(v) if not isinstance(cur, int) else int(v, 0))
    a = build(C)
    open(out, "w").write(wrap(a))
    print(out, "instructions:", a.ninst)
```

```python
import sys, os
sys.path.insert(0, os.path.dirname(os.path.abspath(__file__)))
from dsl import Asm

KNAME = "recurrent_scan__sliding_block_cached__dense_activation_relu__decode_kernel"
REF = "recurrent_scan__sliding_block_cached__dense_activation_relu__decode.s.ref"

V_BASE = 0
XN_BASE = 0
WQ_BASE = 131072
W1_BASE = 147456
P_BASE = 155648
P_STRIDE = 1088
Q_BASE = 160000
MX_BASE = 161024
LX_BASE = 161152
SC_BASE = 161280
CNT_BASE = 161312
LDS_SIZE = 163840
C_W, C_QS, C_KI, C_CLKQ, C_QRDY, C_M, C_P, C_SC = [4 * i for i in range(8)]
C_PROG = 32
C_Y = 48
QBUF = 0x10000
HBUF = 0x60000
MLBUF = 0xA0000
OBUF = 0xB0000
YBUF = 0x140000
SBUF = 0x200000
WS_USED = 0x300000
DIAG = 0x800000
TAGM = 0x3FF
LOG2E = 0x3fb8aa3b
SCALE = 0x3db504f3
EPS = 0x3727c5ac

class Cfg:
    KW = 4
    VW = 8
    K8_AT = 10
    KI_TARGET = 4
    ROT = "hash"
    STAMP = False
    DBGSTAMP = False
    DBGWG = 100
    LDS_LIMIT = 1 << 20
    G_LIMIT = 1 << 15
    NT = " nt"
    PRIO_AUX = 3
    PRIO_LD = 2
    POLL_SLEEP = 0

def build(cfg=Cfg):
    a = Asm()
    NT = cfg.NT
    stamp_idx = {}
    def stamp(i):
        if cfg.STAMP or cfg.DBGSTAMP:
            a(f"s_memrealtime s[{64+2*i}:{65+2*i}]")
    def stamps_out(n, dbgmap=None):
        if cfg.DBGSTAMP and dbgmap is not None:
            a("s_waitcnt lgkmcnt(0)")
            a("s_mov_b64 exec, 1")
            a("v_mov_b32 v4, 0")
            a("s_not_b32 s9, s64")
            a("v_mov_b32 v5, s9")
            a("global_atomic_umax v4, v5, s[34:35]")
            a(f"v_mov_b32 v5, s{64+2*10}")
            a("global_atomic_umax v4, v5, s[34:35] offset:4")
            Lq = a.new("Lq")
            a(f"s_cmp_eq_u32 s2, {cfg.DBGWG}")
            a.branch(f"s_cbranch_scc0 {Lq}")
            for i in range(11):
                a(f"v_mov_b32 v5, s{64+2*i}")
                a(f"global_store_dword v4, v5, s[34:35] offset:{4*(2+i)}")
            a.label(Lq)
            a("s_mov_b64 exec, -1")
        if cfg.STAMP:
            a("s_waitcnt lgkmcnt(0)")
            a("s_lshl_b32 s9, s2, 4")
            a("s_add_u32 s9, s9, s3")
            a("s_lshl_b32 s9, s9, 6")
            a(f"s_add_u32 s9, s9, {DIAG}")
            a("s_add_u32 s10, s36, s9"); a("s_addc_u32 s11, s37, 0")
            a("v_mov_b32 v4, 0")
            a("s_mov_b64 exec, 1")
            for i in range(n):
                a(f"v_mov_b32 v5, s{64+2*i}")
                a(f"global_store_dword v4, v5, s[10:11] offset:{4*i}")
            a("s_mov_b64 exec, -1")
    def fail_to(code):
        a(f"s_mov_b32 s61, {code}")
        a.branch("s_branch L_fail")
    def lds_wait(off, target, code, vt="v24", sleep=1, keep=None):
        L, D = a.new("Lw"), a.new("Ld")
        a("s_mov_b32 s60, 0")
        a.label(L)
        a(f"ds_read_b32 {vt}, v2 offset:{off}")
        a("s_waitcnt lgkmcnt(0)")
        a(f"v_readfirstlane_b32 s62, {vt}")
        a(f"s_cmp_ge_u32 s62, {target}")
        a.branch(f"s_cbranch_scc1 {D}")
        if sleep: a(f"s_sleep {sleep}")
        a("s_add_u32 s60, s60, 1")
        a(f"s_cmp_lt_u32 s60, {cfg.LDS_LIMIT}")
        a.branch(f"s_cbranch_scc1 {L}")
        fail_to(code)
        a.label(D)
    def prog_wait(target, code, vt=24, sleep=1):
        L, D = a.new("Lp"), a.new("Ld")
        a("s_mov_b32 s60, 0")
        a.label(L)
        a(f"ds_read_b128 v[{vt}:{vt+3}], v2 offset:{C_PROG}")
        a("s_waitcnt lgkmcnt(0)")
        a(f"v_min_u32 v{vt}, v{vt}, v{vt+1}")
        a(f"v_min3_u32 v{vt}, v{vt}, v{vt+2}, v{vt+3}")
        a(f"v_readfirstlane_b32 s62, v{vt}")
        a(f"s_cmp_ge_u32 s62, {target}")
        a.branch(f"s_cbranch_scc1 {D}")
        if sleep: a(f"s_sleep {sleep}")
        a("s_add_u32 s60, s60, 1")
        a(f"s_cmp_lt_u32 s60, {cfg.LDS_LIMIT}")
        a.branch(f"s_cbranch_scc1 {L}")
        fail_to(code)
        a.label(D)
    def lds_add1(off, vone):
        a("s_mov_b64 exec, 1")
        a(f"ds_add_u32 v2, {vone} offset:{off}")
        a("s_mov_b64 exec, -1")
    def srd(dst, lo, hi, size, add=None):
        if add is None:
            a(f"s_mov_b32 s{dst}, s{lo}"); a(f"s_mov_b32 s{dst+1}, s{hi}")
        else:
            a(f"s_add_u32 s{dst}, s{lo}, {add}"); a(f"s_addc_u32 s{dst+1}, s{hi}, 0")
        a(f"s_mov_b32 s{dst+2}, {size}")
        a(f"s_mov_b32 s{dst+3}, 0x20000")
    def tag4(regs, vtag):
        for r in regs: a(f"v_add_u32 v{r}, 0x200, v{r}")
        for r in regs: a(f"v_and_or_b32 v{r}, v{r}, s58, v{vtag}")
    def untag(regs, vtag, acc, first):
        for r in regs: a(f"v_xor_b32 v{r}, v{vtag}, v{r}")
        it = list(regs)
        if first:
            a(f"v_or3_b32 v{acc}, v{it[0]}, v{it[1]}, v{it[2]}"); it = it[3:]
        while len(it) >= 2:
            a(f"v_or3_b32 v{acc}, v{it[0]}, v{it[1]}, v{acc}"); it = it[2:]
        if it: a(f"v_or_b32 v{acc}, v{it[0]}, v{acc}")
    def poll(loads, regs, vtag, acc, code, pre=None):
        L, D = a.new("Lg"), a.new("Ld")
        a("s_mov_b32 s60, 0")
        a.label(L)
        if pre: pre()
        for l in loads: a(l)
        if pre: a("s_mov_b64 exec, -1")
        a("s_waitcnt vmcnt(0)")
        untag(regs, vtag, acc, True)
        a(f"v_and_b32 v{acc}, {TAGM}, v{acc}")
        a(f"v_cmp_ne_u32 vcc, 0, v{acc}")
        a("s_cmp_eq_u64 vcc, 0")
        a.branch(f"s_cbranch_scc1 {D}")
        if cfg.POLL_SLEEP: a(f"s_sleep {cfg.POLL_SLEEP}")
        a("s_add_u32 s60, s60, 1")
        a(f"s_cmp_lt_u32 s60, {cfg.G_LIMIT}")
        a.branch(f"s_cbranch_scc1 {L}")
        fail_to(code)
        a.label(D)
    def bf16r(dst, src, tmp=None):
        a(f"v_cvt_pk_bf16_f32 v{dst}, v{src}, v{src}")
        a(f"v_lshlrev_b32 v{dst}, 16, v{dst}")
    DPP = {"x1": "quad_perm:[1,0,3,2]", "x2": "quad_perm:[2,3,0,1]", "r4": "row_ror:4", "r8": "row_ror:8"}
    def dpp_op(op, reg, kind):
        a(f"{op}_dpp v{reg}, v{reg}, v{reg} {DPP[kind]} row_mask:0xf bank_mask:0xf")
    def allred_g(op, reg, tmp):
        for sw in ("v_permlane16_swap_b32", "v_permlane32_swap_b32"):
            a(f"v_mov_b32 v{tmp}, v{reg}")
            a(f"{sw} v{reg}, v{tmp}")
            a(f"{op} v{reg}, v{reg}, v{tmp}")
    def red8(r0, r1, r2, r3):
        a(f"v_permlane32_swap_b32 v{r0}, v{r1}")
        a(f"v_permlane32_swap_b32 v{r2}, v{r3}")
        a(f"v_add_f32 v{r0}, v{r0}, v{r1}")
        a(f"v_add_f32 v{r2}, v{r2}, v{r3}")
        a(f"v_permlane16_swap_b32 v{r0}, v{r2}")
        a(f"v_add_f32 v{r0}, v{r0}, v{r2}")
        for k in ("x2", "r4", "r8"): dpp_op("v_add_f32", r0, k)

    a("s_cmp_ge_u32 s2, 256")
    a.branch("s_cbranch_scc1 L_exit", flush=False)
    a("s_load_dwordx16 s[16:31], s[0:1], 0")
    a("s_load_dwordx4 s[32:35], s[0:1], 64")
    a("s_load_dwordx2 s[36:37], s[0:1], 80")
    stamp(0)
    a("v_lshrrev_b32 v1, 6, v0")
    a("v_and_b32 v0, 63, v0")
    a("v_readfirstlane_b32 s3, v1")
    a("s_and_b32 s4, s2, 7")
    a("s_lshr_b32 s5, s2, 3")
    a("s_lshr_b32 s6, s5, 3")
    a("s_and_b32 s7, s5, 7")
    if cfg.ROT == "hash":
        a("s_mul_i32 s8, s2, 0x9E3779B1")
        a("s_lshr_b32 s8, s8, 26")
    else:
        a("s_mov_b32 s8, 0")
    a(f"v_mov_b32 v2, {CNT_BASE}")
    a("v_mov_b32 v1, 1")
    a(f"s_mov_b32 s58, {(~TAGM) & 0xffffffff}")
    a("s_waitcnt lgkmcnt(0)")
    a("s_load_dword s38, s[36:37], 0")
    srd(52, 36, 37, WS_USED)
    a("s_cmp_lt_u32 s3, 4")
    a.branch("s_cbranch_scc1 L_aux")
    a("s_cmp_lt_u32 s3, 8")
    a.branch("s_cbranch_scc1 L_loader")

    def epoch_barrier():
        a("s_waitcnt lgkmcnt(0)")
        a("s_add_u32 s38, s38, 1")
        a(f"s_and_b32 s39, s38, {TAGM}")
        a("s_barrier")

    a("s_sub_u32 s12, s3, 8")
    a("s_lshl_b32 s9, s6, 3"); a("s_add_u32 s9, s9, s4"); a("s_lshl_b32 s9, s9, 22")
    a("s_lshl_b32 s10, s7, 17"); a("s_add_u32 s9, s9, s10"); a(f"s_add_u32 s9, s9, {12288*256}")
    srd(40, 18, 19, 131072, add="s9")
    a("v_and_b32 v4, 15, v0")
    a("v_lshrrev_b32 v5, 4, v0")
    a("v_lshrrev_b32 v6, 1, v4")
    a("v_lshlrev_b32 v6, 8, v6")
    a("v_and_b32 v7, 1, v4")
    a("v_lshl_add_u32 v6, v7, 6, v6")
    a("v_lshl_add_u32 v3, v5, 4, v6")
    a("s_lshl_b32 s13, s12, 3"); a("s_add_u32 s13, s13, s8")
    KREG = 64
    for i in range(16):
        m, s = i >> 1, i & 1
        if i == cfg.KW:
            epoch_barrier()
        if i >= cfg.KW:
            a(f"s_waitcnt vmcnt({cfg.KW-1})")
        if i == cfg.K8_AT:
            Lx = a.new("Lk")
            a("s_cmp_eq_u32 s12, 0")
            a.branch(f"s_cbranch_scc0 {Lx}")
            a(f"ds_write_b32 v2, v1 offset:{C_CLKQ}")
            a.label(Lx)
        if s == 0:
            a(f"s_add_u32 s10, s13, {m}")
            a("s_and_b32 s10, s10, 63")
            a("s_lshl_b32 s10, s10, 11")
        a(f"buffer_load_dwordx4 v[{KREG+4*i}:{KREG+4*i+3}], v3, s[40:43], s10 offen offset:{s*128}{NT}")
    lds_add1(C_KI, "v1")
    stamp(1)
    a("v_lshrrev_b32 v6, 1, v4"); a("v_and_b32 v6, 3, v6")
    a("v_lshlrev_b32 v8, 8, v6")
    a("v_lshl_add_u32 v8, v7, 6, v8")
    a("v_lshl_add_u32 v8, v5, 4, v8")
    a(f"v_add_u32 v8, {Q_BASE}, v8")
    a("s_mov_b32 s56, 0xaaaaaaaa"); a("s_mov_b32 s57, 0xaaaaaaaa")
    lds_wait(C_QRDY, 1, 0x101, vt="v24")
    a("ds_read_b128 v[12:15], v8 offset:128")
    a("ds_read_b128 v[8:11], v8")
    stamp(2)
    a("s_waitcnt lgkmcnt(0)")
    for m in range(8):
        a(f"s_waitcnt vmcnt({14-2*m})")
        D = 32 + 4 * m
        a(f"v_mfma_f32_16x16x32_bf16 v[{D}:{D+3}], v[{KREG+8*m}:{KREG+8*m+3}], v[8:11], 0")
        a(f"v_mfma_f32_16x16x32_bf16 v[{D}:{D+3}], v[{KREG+8*m+4}:{KREG+8*m+7}], v[12:15], v[{D}:{D+3}]")
    stamp(3)
    for m in range(8):
        D = 32 + 4 * m
        a(f"v_add_f32_dpp v24, v{D+1}, v{D} {DPP['x1']} row_mask:0xf bank_mask:0xf")
        a(f"v_add_f32_dpp v25, v{D+2}, v{D+3} {DPP['x1']} row_mask:0xf bank_mask:0xf")
        a(f"v_cndmask_b32 v{16+m}, v24, v25, s[56:57]")
    for m in range(0, 8, 2):
        x, y = 16 + m, 17 + m
        a(f"v_cvt_pk_bf16_f32 v24, v{x}, v{y}")
        a(f"v_lshlrev_b32 v{x}, 16, v24")
        a(f"v_and_b32 v{y}, 0xffff0000, v24")
        a(f"v_mul_f32 v{x}, {hex(SCALE)}, v{x}")
        a(f"v_mul_f32 v{y}, {hex(SCALE)}, v{y}")
        a(f"v_cvt_pk_bf16_f32 v24, v{x}, v{y}")
        a(f"v_lshlrev_b32 v{x}, 16, v24")
        a(f"v_and_b32 v{y}, 0xffff0000, v24")
    a("v_max3_f32 v24, v16, v17, v18"); a("v_max3_f32 v24, v24, v19, v20"); a("v_max3_f32 v24, v24, v21, v22"); a("v_max_f32 v24, v24, v23")
    dpp_op("v_max_f32", 24, "x1")
    allred_g("v_max_f32", 24, 25)
    a("v_lshlrev_b32 v26, 5, v6")
    a("s_lshl_b32 s9, s12, 2")
    a(f"s_add_u32 s9, s9, {MX_BASE}")
    a("v_add_u32 v27, s9, v26")
    a("ds_write_b32 v27, v24")
    a("s_waitcnt lgkmcnt(0)")
    lds_add1(C_M, "v1")
    lds_wait(C_M, 8, 0x102, vt="v25", sleep=0)
    a(f"v_add_u32 v28, {MX_BASE}, v26")
    a("ds_read_b128 v[32:35], v28")
    a("ds_read_b128 v[36:39], v28 offset:16")
    a("s_waitcnt lgkmcnt(0)")
    a("v_max3_f32 v24, v32, v33, v34"); a("v_max3_f32 v24, v24, v35, v36"); a("v_max3_f32 v24, v24, v37, v38"); a("v_max_f32 v24, v24, v39")
    for m in range(8):
        a(f"v_sub_f32 v{16+m}, v{16+m}, v24")
    for m in range(8):
        a(f"v_mul_f32 v{16+m}, {hex(LOG2E)}, v{16+m}")
    for m in range(8):
        a(f"v_exp_f32 v{16+m}, v{16+m}")
    a(f"v_mul_u32_u24 v29, {P_STRIDE}, v6")
    a("v_lshl_add_u32 v29, v5, 2, v29")
    a("v_lshl_add_u32 v29, v7, 1, v29")
    a("s_lshl_b32 s9, s12, 7"); a(f"s_add_u32 s9, s9, {P_BASE}")
    a("v_add_u32 v29, s9, v29")
    for m in range(8):
        a(f"v_cvt_pk_bf16_f32 v{32+m}, v{16+m}, v{16+m}")
        a(f"ds_write_b16 v29, v{32+m} offset:{16*m}")
    a("v_add_f32 v24, v16, v17"); a("v_add_f32 v25, v18, v19"); a("v_add_f32 v30, v20, v21"); a("v_add_f32 v31, v22, v23")
    a("v_add_f32 v24, v24, v25"); a("v_add_f32 v30, v30, v31"); a("v_add_f32 v24, v24, v30")
    dpp_op("v_add_f32", 24, "x1")
    allred_g("v_add_f32", 24, 25)
    a(f"v_add_u32 v27, {LX_BASE-MX_BASE}, v27")
    a("ds_write_b32 v27, v24")
    a("s_waitcnt lgkmcnt(0)")
    lds_add1(C_P, "v1")
    stamp(4)
    lds_wait(C_P, 8, 0x103, vt="v25", sleep=0)
    a("v_and_b32 v6, 3, v4")
    a(f"v_mul_u32_u24 v29, {P_STRIDE}, v6")
    a("v_lshl_add_u32 v29, v5, 4, v29")
    a(f"v_add_u32 v29, {P_BASE}, v29")
    for ks in range(16):
        a(f"ds_read_b128 v[{64+4*ks}:{64+4*ks+3}], v29 offset:{64*ks}")
    a("v_lshrrev_b32 v8, 2, v4")
    a("v_and_b32 v9, 3, v4")
    a("v_and_b32 v10, 1, v5")
    a("v_lshl_add_u32 v10, v10, 2, v8")
    a("v_xor_b32 v10, s12, v10")
    a("v_lshl_add_u32 v11, v5, 3, v8")
    a("v_lshlrev_b32 v11, 8, v11")
    a("v_lshl_add_u32 v11, v10, 5, v11")
    a("v_lshl_add_u32 v11, v9, 3, v11")
    a("v_add_u32 v12, 0x10000, v11")
    a("v_lshlrev_b32 v13, 14, v6")
    a("v_lshl_add_u32 v13, v5, 4, v13")
    a("s_lshl_b32 s9, s4, 4"); a("s_lshr_b32 s10, s12, 1"); a("s_add_u32 s9, s9, s10"); a("s_lshl_b32 s9, s9, 12")
    a("s_lshl_b32 s10, s5, 7"); a("s_add_u32 s9, s9, s10")
    a("s_and_b32 s10, s12, 1"); a("s_lshl_b32 s10, s10, 6"); a("s_add_u32 s9, s9, s10")
    a(f"s_add_u32 s14, s9, {OBUF}")
    a("v_mov_b32 v14, s39")
    a("s_mov_b32 s63, 0")
    a("s_waitcnt lgkmcnt(0)")
    stamp(5)
    for ks in range(16):
        Lok = a.new("Lok")
        if ks == 15:
            lds_wait(C_SC, 1, 0x104, vt="v24")
            a(f"v_lshlrev_b32 v24, 2, v6")
            a(f"v_add_u32 v24, {SC_BASE}, v24")
            a("ds_read_b32 v15, v24")
        a(f"s_cmp_ge_u32 s63, {ks+1}")
        a.branch(f"s_cbranch_scc1 {Lok}", flush=False)
        prog_wait(ks + 1, 0x105, vt=24, sleep=(1 if ks < 13 else 0))
        a("s_mov_b32 s63, s62")
        a.label(Lok, flush=False)
        ad = "v11" if ks < 8 else "v12"
        off = (ks & 7) * 8192
        A = 32 + 4 * (ks & 3)
        a(f"ds_read_b64_tr_b16 v[{A}:{A+1}], {ad} offset:{off}")
        a(f"ds_read_b64_tr_b16 v[{A+2}:{A+3}], {ad} offset:{off+1024}")
        a("s_waitcnt lgkmcnt(0)")
        a(f"v_mfma_f32_16x16x32_bf16 v[48:51], v[{A}:{A+3}], v[{64+4*ks}:{64+4*ks+3}], " + ("0" if ks == 0 else "v[48:51]"))
    stamp(6)
    for r in range(4): a(f"v_mul_f32 v{48+r}, v15, v{48+r}")
    tag4([48, 49, 50, 51], 14)
    a("s_mov_b32 s10, 0x000f000f")
    a("s_mov_b32 exec_lo, s10"); a("s_mov_b32 exec_hi, s10")
    a("buffer_store_dwordx4 v[48:51], v13, s[52:55], s14 offen sc1")
    a("s_mov_b64 exec, -1")
    stamp(7)
    stamps_out(8)
    a("s_endpgm")

    a.label("L_loader")
    if cfg.PRIO_LD: a(f"s_setprio {cfg.PRIO_LD}")
    a("s_sub_u32 s12, s3, 4")
    a("s_lshl_b32 s9, s6, 3"); a("s_add_u32 s9, s9, s4"); a("s_lshl_b32 s9, s9, 22")
    a("s_lshl_b32 s10, s7, 17"); a("s_add_u32 s9, s9, s10"); a(f"s_add_u32 s9, s9, {12288*256}")
    srd(40, 20, 21, 131072, add="s9")
    srd(44, 24, 25, 4096 * 1024)
    srd(48, 30, 31, 1792 * 1024)
    a("s_cmp_lt_u32 s2, 224")
    a("s_cselect_b32 s50, s50, 0")
    a("v_lshrrev_b32 v5, 4, v0")
    a("s_and_b32 s9, s12, 1"); a("s_lshl_b32 s9, s9, 2")
    a("v_or_b32 v6, s9, v5")
    a("v_lshlrev_b32 v6, 1, v6")
    a("v_and_b32 v7, 15, v0")
    a("v_xor_b32 v6, v6, v7")
    a("v_lshlrev_b32 v6, 4, v6")
    a("v_lshl_add_u32 v8, v5, 8, v6")
    a("v_lshl_add_u32 v9, v5, 10, v6")
    a("s_lshl_b32 s9, s12, 2")
    a(f"s_add_u32 s9, s9, {C_PROG}")
    a("v_add_u32 v10, s9, v2")
    epoch_barrier()
    lds_wait(C_KI, cfg.KI_TARGET, 0x201)
    lds_wait(C_QS, 4, 0x202)
    stamp(1)
    a("s_lshr_b32 s9, s2, 2"); a("s_lshl_b32 s9, s9, 5"); a("s_lshl_b32 s10, s12, 3"); a("s_add_u32 s9, s9, s10")
    a("s_lshl_b32 s9, s9, 10"); a("s_and_b32 s10, s2, 3"); a("s_lshl_b32 s10, s10, 8"); a("s_add_u32 s9, s9, s10")
    a("s_lshl_b32 s11, s12, 11")
    for i in range(2):
        a(f"s_add_u32 s13, s11, {W1_BASE + 1024*i}")
        a("s_mov_b32 m0, s13")
        a(f"s_add_u32 s10, s9, {4096*i}")
        a(f"buffer_load_dwordx4 v9, s[48:51], s10 offen{NT} lds")
    a("s_add_u32 s14, s8, s12")
    NP = cfg.VW // 2
    for ks in range(16):
        if ks + 1 >= NP:
            a(f"s_waitcnt vmcnt({cfg.VW-2})")
            done = ks + 1 - NP
            done = ks - (NP - 1)
            if done >= 1:
                a(f"v_mov_b32 v11, {done}")
                a("ds_write_b32 v10, v11")
        a(f"s_add_u32 s10, s14, {4*ks}")
        a("s_and_b32 s10, s10, 63")
        a("s_lshl_b32 s10, s10, 11")
        a(f"s_add_u32 s13, s11, {V_BASE + 8192*ks}")
        a("s_mov_b32 m0, s13")
        a("s_nop 0")
        a(f"buffer_load_dwordx4 v8, s[40:43], s10 offen{NT} lds")
        a(f"buffer_load_dwordx4 v8, s[40:43], s10 offen offset:1024{NT} lds")
    stamp(2)
    a("s_lshl_b32 s9, s4, 9"); a("s_lshr_b32 s10, s5, 1"); a("s_lshl_b32 s10, s10, 5"); a("s_add_u32 s9, s9, s10")
    a("s_lshl_b32 s10, s12, 3"); a("s_add_u32 s9, s9, s10"); a("s_lshl_b32 s9, s9, 10")
    a("s_and_b32 s10, s5, 1"); a("s_lshl_b32 s10, s10, 9"); a("s_add_u32 s9, s9, s10")
    for h2 in range(2):
        for i in range(2):
            a(f"s_add_u32 s13, s11, {WQ_BASE + 8192*h2 + 1024*i}")
            a("s_mov_b32 m0, s13")
            a(f"s_add_u32 s10, s9, {256*h2 + 4096*i}")
            a(f"buffer_load_dwordx4 v9, s[44:47], s10 offen{NT} lds")
    for k in range(NP - 1, -1, -1):
        a(f"s_waitcnt vmcnt({4 + 2*k})")
        a(f"v_mov_b32 v11, {16 - k}")
        a("ds_write_b32 v10, v11")
        if k == 0: stamp(3)
    a("s_waitcnt vmcnt(0)")
    a("v_mov_b32 v11, 17")
    a("ds_write_b32 v10, v11")
    stamp(4)
    stamps_out(5)
    a("s_waitcnt lgkmcnt(0)")
    a("s_endpgm")

    a.label("L_aux")
    if cfg.PRIO_AUX: a(f"s_setprio {cfg.PRIO_AUX}")
    srd(40, 16, 17, 4096)
    srd(44, 22, 23, 512 * 8192)
    srd(48, 28, 29, 512 * 3584)
    a("s_cmp_lt_u32 s2, 224")
    a("s_cselect_b32 s50, s50, 0")
    a("v_and_b32 v4, 15, v0")
    a("v_lshrrev_b32 v5, 4, v0")
    a("v_lshrrev_b32 v6, 2, v4")
    a("v_and_b32 v7, 3, v4")
    a("v_lshl_add_u32 v8, v7, 2, v5")
    a("v_lshlrev_b32 v8, 6, v8")
    a("v_lshl_add_u32 v8, v6, 10, v8")
    for i in range(4):
        a(f"buffer_load_dwordx4 v[{16+4*i}:{19+4*i}], v8, s[40:43], 0 offen offset:{16*i}")
    a("v_lshlrev_b32 v9, 4, v5")
    a("v_lshl_add_u32 v9, v6, 10, v9")
    a("s_lshr_b32 s12, s5, 3")
    a("s_and_b32 s13, s5, 7")
    a("s_and_b32 s14, s2, 7")
    a("s_lshr_b32 s15, s2, 3")
    a("s_lshl_b32 s9, s12, 8"); a("s_lshl_b32 s10, s3, 6"); a("s_add_u32 s9, s9, s10")
    a("buffer_load_dwordx4 v[32:35], v9, s[40:43], s9 offen")
    a("s_lshl_b32 s9, s14, 7"); a("s_and_b32 s10, s3, 1"); a("s_lshl_b32 s10, s10, 6"); a("s_add_u32 s9, s9, s10")
    a("buffer_load_dwordx4 v[36:39], v9, s[40:43], s9 offen")
    a("v_lshrrev_b32 v10, 3, v0"); a("v_and_b32 v11, 7, v0"); a("v_lshlrev_b32 v11, 4, v11")
    a("v_lshl_add_u32 v12, v10, 13, v11")
    a("v_mul_u32_u24 v13, 3584, v10"); a("v_add_u32 v13, v13, v11")
    a("s_lshl_b32 s9, s12, 7"); a("s_lshl_b32 s10, s3, 5"); a("s_add_u32 s9, s9, s10"); a("s_lshl_b32 s9, s9, 13")
    a("s_lshl_b32 s10, s4, 10"); a("s_add_u32 s9, s9, s10"); a("s_lshl_b32 s10, s13, 7"); a("s_add_u32 s9, s9, s10")
    a("s_lshl_b32 s11, s3, 12")
    for i in range(4):
        a(f"s_add_u32 s10, s11, {WQ_BASE + 1024*i}")
        a("s_mov_b32 m0, s10")
        a(f"s_add_u32 s10, s9, {8*8192*i}")
        a(f"buffer_load_dwordx4 v12, s[44:47], s10 offen{NT} lds")
    a("s_lshl_b32 s9, s14, 6"); a("s_lshl_b32 s10, s3, 4"); a("s_add_u32 s9, s9, s10"); a("s_mul_i32 s9, s9, 3584")
    a("s_lshl_b32 s10, s15, 7"); a("s_add_u32 s9, s9, s10")
    a("s_lshl_b32 s11, s3, 11")
    for i in range(2):
        a(f"s_add_u32 s10, s11, {W1_BASE + 1024*i}")
        a("s_mov_b32 m0, s10")
        a(f"s_add_u32 s10, s9, {8*3584*i}")
        a(f"buffer_load_dwordx4 v13, s[48:51], s10 offen{NT} lds")
    Lc = a.new("Lc")
    a("s_cmp_eq_u32 s3, 0")
    a.branch(f"s_cbranch_scc0 {Lc}")
    a("v_lshl_add_u32 v14, v0, 2, v2")
    a("v_mov_b32 v15, 0")
    a("ds_write_b32 v14, v15")
    a.label(Lc)
    epoch_barrier()
    a("v_mov_b32 v14, s39")
    stamp(1)
    a("s_waitcnt vmcnt(6)")
    acc = None
    for i in range(16):
        a(f"v_lshlrev_b32 v{64+2*i}, 16, v{16+i}")
        a(f"v_and_b32 v{65+2*i}, 0xffff0000, v{16+i}")
    a("v_add_f32 v40, v64, v65"); a("v_add_f32 v41, v66, v67"); a("v_add_f32 v42, v68, v69"); a("v_add_f32 v43, v70, v71")
    for i in range(8, 32, 4):
        for k in range(4): a(f"v_add_f32 v{40+k}, v{40+k}, v{64+i+k}")
    a("v_add_f32 v40, v40, v41"); a("v_add_f32 v42, v42, v43"); a("v_add_f32 v40, v40, v42")
    dpp_op("v_add_f32", 40, "x1"); dpp_op("v_add_f32", 40, "x2"); allred_g("v_add_f32", 40, 41)
    a("v_mul_f32 v40, 0x3b000000, v40")
    for i in range(32): a(f"v_sub_f32 v{64+i}, v{64+i}, v40")
    for k in range(4): a(f"v_mul_f32 v{42+k}, v{64+k}, v{64+k}")
    for i in range(4, 32, 4):
        for k in range(4): a(f"v_fmac_f32 v{42+k}, v{64+i+k}, v{64+i+k}")
    a("v_add_f32 v42, v42, v43"); a("v_add_f32 v44, v44, v45"); a("v_add_f32 v42, v42, v44")
    dpp_op("v_add_f32", 42, "x1"); dpp_op("v_add_f32", 42, "x2"); allred_g("v_add_f32", 42, 41)
    a("v_mul_f32 v42, 0x3b000000, v42")
    bf16r(40, 40)
    bf16r(42, 42)
    a(f"v_add_f32 v42, {hex(EPS)}, v42"); bf16r(42, 42)
    a("v_sqrt_f32 v42, v42"); bf16r(42, 42)
    a("v_rcp_f32 v42, v42")
    for d in range(32, 40):
        a(f"v_lshlrev_b32 v44, 16, v{d}")
        a(f"v_and_b32 v45, 0xffff0000, v{d}")
        a("v_sub_f32 v44, v44, v40"); a("v_sub_f32 v45, v45, v40")
        a("v_cvt_pk_bf16_f32 v46, v44, v45")
        a("v_lshlrev_b32 v44, 16, v46"); a("v_and_b32 v45, 0xffff0000, v46")
        a("v_mul_f32 v44, v44, v42"); a("v_mul_f32 v45, v45, v42")
        a(f"v_cvt_pk_bf16_f32 v{d}, v44, v45")
    a("v_lshlrev_b32 v15, 4, v0")
    a("s_lshl_b32 s9, s3, 10")
    a(f"s_add_u32 s9, s9, {XN_BASE}")
    a("v_add_u32 v44, s9, v15")
    a("ds_write_b128 v44, v[32:35]")
    a("s_and_b32 s9, s3, 1"); a("s_lshl_b32 s9, s9, 10"); a(f"s_add_u32 s9, s9, {XN_BASE + 4096}")
    a("v_add_u32 v44, s9, v15")
    a("ds_write_b128 v44, v[36:39]")
    stamp(2)
    a("s_waitcnt vmcnt(0) lgkmcnt(0)")
    lds_add1(C_W, "v1")
    lds_wait(C_W, 4, 0x301, sleep=0)
    stamp(3)
    if XN_BASE: a(f"v_add_u32 v15, {XN_BASE}, v15")
    for f in range(6):
        a(f"ds_read_b128 v[{32+4*f}:{35+4*f}], v15 offset:{1024*f}")
    a("v_lshrrev_b32 v8, 2, v4")
    a("v_lshl_add_u32 v9, v5, 3, v8")
    a("v_lshlrev_b32 v9, 7, v9")
    a("v_lshl_add_u32 v9, v7, 3, v9")
    a("s_lshl_b32 s9, s3, 5")
    a(f"s_add_u32 s10, s9, {WQ_BASE}")
    a("v_add_u32 v10, s10, v9")
    a(f"s_add_u32 s10, s9, {W1_BASE}")
    a("v_add_u32 v11, s10, v9")
    for ks in range(4):
        a(f"ds_read_b64_tr_b16 v[{64+4*ks}:{65+4*ks}], v10 offset:{4096*ks}")
        a(f"ds_read_b64_tr_b16 v[{66+4*ks}:{67+4*ks}], v10 offset:{4096*ks+512}")
    for ks in range(2):
        a(f"ds_read_b64_tr_b16 v[{80+4*ks}:{81+4*ks}], v11 offset:{4096*ks}")
        a(f"ds_read_b64_tr_b16 v[{82+4*ks}:{83+4*ks}], v11 offset:{4096*ks+512}")
    a("s_waitcnt lgkmcnt(0)")
    lds_add1(C_QS, "v1")
    for ks in range(4):
        a(f"v_mfma_f32_16x16x32_bf16 v[56:59], v[{64+4*ks}:{67+4*ks}], v[{32+4*ks}:{35+4*ks}], " + ("0" if ks == 0 else "v[56:59]"))
    for ks in range(2):
        a(f"v_mfma_f32_16x16x32_bf16 v[60:63], v[{80+4*ks}:{83+4*ks}], v[{48+4*ks}:{51+4*ks}], " + ("0" if ks == 0 else "v[60:63]"))
    a("v_lshlrev_b32 v8, 13, v6"); a("v_lshl_add_u32 v8, v5, 4, v8")
    a("s_lshl_b32 s9, s4, 15"); a("s_lshl_b32 s10, s12, 11"); a("s_add_u32 s9, s9, s10")
    a("s_lshl_b32 s10, s13, 8"); a("s_add_u32 s9, s9, s10"); a("s_lshl_b32 s10, s3, 6"); a("s_add_u32 s9, s9, s10")
    a(f"s_add_u32 s9, s9, {QBUF}")
    tag4([56, 57, 58, 59], 14)
    a("s_mov_b32 s10, 0x11111111")
    a("s_mov_b32 exec_lo, s10"); a("s_mov_b32 exec_hi, s10")
    a("buffer_store_dwordx4 v[56:59], v8, s[52:55], s9 offen sc1")
    a("s_mov_b64 exec, -1")
    Lnh = a.new("Lnh")
    a("s_cmp_lt_u32 s2, 224")
    a.branch(f"s_cbranch_scc0 {Lnh}")
    a("v_lshlrev_b32 v9, 10, v6"); a("v_lshl_add_u32 v9, v5, 4, v9")
    a("s_lshl_b32 s9, s15, 1"); a("s_lshr_b32 s10, s3, 1"); a("s_add_u32 s9, s9, s10"); a("s_lshl_b32 s9, s9, 12")
    a("s_lshl_b32 s10, s14, 7"); a("s_add_u32 s9, s9, s10")
    a("s_and_b32 s10, s3, 1"); a("s_lshl_b32 s10, s10, 6"); a("s_add_u32 s9, s9, s10")
    a(f"s_add_u32 s9, s9, {HBUF}")
    tag4([60, 61, 62, 63], 14)
    a("s_mov_b32 s10, 0x11111111")
    a("s_mov_b32 exec_lo, s10"); a("s_mov_b32 exec_hi, s10")
    a("buffer_store_dwordx4 v[60:63], v9, s[52:55], s9 offen sc1")
    a("s_mov_b64 exec, -1")
    a.label(Lnh)
    stamp(4)
    a("v_lshlrev_b32 v16, 10, v6"); a("v_lshl_add_u32 v16, v7, 7, v16"); a("v_lshl_add_u32 v16, v5, 5, v16")
    a("v_lshrrev_b32 v8, 2, v4")
    a("v_and_b32 v10, 1, v5")
    a("v_lshl_add_u32 v10, v10, 2, v8")
    a("v_lshl_add_u32 v17, v5, 3, v8")
    a("v_lshlrev_b32 v17, 8, v17")
    a("v_lshl_add_u32 v17, v10, 5, v17")
    a("v_lshl_add_u32 v17, v7, 3, v17")

    def gather8(soff, code, relu):
        loads = [f"buffer_load_dwordx4 v[{64+4*i}:{67+4*i}], v16, s[52:55], {soff} offen offset:{o} sc1" for i, o in enumerate((0, 16, 512, 528))]
        poll(loads, list(range(64, 80)), 14, 41, code)
        for k in range(8): a(f"v_add_f32 v{64+k}, v{64+k}, v{72+k}")
        for kind in ("x1", "x2"):
            for k in range(8): dpp_op("v_add_f32", 64 + k, kind)
        if relu:
            for k in range(8): a(f"v_max_f32 v{64+k}, 0, v{64+k}")
        for k in range(4): a(f"v_cvt_pk_bf16_f32 v{40+k}, v{64+2*k}, v{65+2*k}")
    def tile_frags(base_expr_sgpr, ct0, dst, ntile):
        for t in range(ntile):
            a(f"v_xor_b32 v18, {(t)<<5}, v17")
            a(f"v_xor_b32 v18, {ct0}, v18")
            a(f"v_add_u32 v18, {base_expr_sgpr}, v18")
            a(f"ds_read_b64_tr_b16 v[{dst+4*t}:{dst+4*t+1}], v18")
            a(f"ds_read_b64_tr_b16 v[{dst+4*t+2}:{dst+4*t+3}], v18 offset:1024")
    def mfma4_select(A, D):
        for t in range(4):
            a(f"v_mfma_f32_16x16x32_bf16 v[{D+4*t}:{D+4*t+3}], v[{A+4*t}:{A+4*t+3}], v[40:43], 0")
        for r in range(4):
            a(f"v_cndmask_b32 v{44+r}, v{D+r}, v{D+4+r}, s[56:57]")
        for r in range(4):
            a(f"v_cndmask_b32 v{D+r}, v{D+8+r}, v{D+12+r}, s[56:57]")
        for r in range(4):
            a(f"v_cndmask_b32 v{44+r}, v{44+r}, v{D+r}, s[62:63]")
    a("s_mov_b32 s56, 0xaaaaaaaa"); a("s_mov_b32 s57, 0xaaaaaaaa")

    a("s_cmp_eq_u32 s3, 1"); a.branch("s_cbranch_scc1 L_aux1")
    a("s_cmp_eq_u32 s3, 2"); a.branch("s_cbranch_scc1 L_aux2")
    a("s_cmp_eq_u32 s3, 3"); a.branch("s_cbranch_scc1 L_aux3")
    lds_wait(C_CLKQ, 1, 0x310)
    a("v_lshlrev_b32 v18, 5, v0")
    a("s_lshl_b32 s9, s4, 2"); a("s_add_u32 s9, s9, s6"); a("s_lshl_b32 s9, s9, 13"); a(f"s_add_u32 s9, s9, {QBUF}")
    loads = []
    for rb in range(4):
        for hf in range(2):
            loads.append((rb, hf))
    a(f"s_add_u32 s10, s9, 4096")
    ld = [f"buffer_load_dwordx4 v[{64+8*rb+4*hf}:{67+8*rb+4*hf}], v18, s[52:55], {'s9' if rb < 2 else 's10'} offen offset:{(rb&1)*2048+16*hf} sc1" for rb, hf in loads]
    poll(ld, list(range(64, 96)), 14, 41, 0x311)
    for k in range(8):
        a(f"v_add_f32 v{64+k}, v{64+k}, v{72+k}"); a(f"v_add_f32 v{80+k}, v{80+k}, v{88+k}")
    for k in range(8): a(f"v_add_f32 v{64+k}, v{64+k}, v{80+k}")
    for k in range(4): a(f"v_cvt_pk_bf16_f32 v{40+k}, v{64+2*k}, v{65+2*k}")
    a("v_lshlrev_b32 v18, 4, v0"); a(f"v_add_u32 v18, {Q_BASE}, v18")
    a("ds_write_b128 v18, v[40:43]")
    a("s_waitcnt lgkmcnt(0)")
    a(f"ds_write_b32 v2, v1 offset:{C_QRDY}")
    stamp(5)
    a.branch("s_branch L_wo")
    a.label("L_aux1")
    a("s_cmp_lt_u32 s2, 224")
    a.branch("s_cbranch_scc0 L_wo")
    lds_wait(C_CLKQ, 1, 0x320)
    a("s_lshr_b32 s12, s2, 2"); a("s_lshl_b32 s9, s12, 12"); a(f"s_add_u32 s9, s9, {HBUF}")
    gather8("s9", 0x321, relu=True)
    prog_wait(1, 0x322)
    a(f"s_mov_b32 s13, {W1_BASE}")
    tile_frags("s13", 0, 64, 8)
    a("s_waitcnt lgkmcnt(0)")
    a("v_lshlrev_b32 v19, 6, v6"); a("v_lshl_add_u32 v19, v7, 1, v19"); a("v_lshrrev_b32 v20, 1, v5"); a("v_add_u32 v19, v19, v20")
    a("v_lshlrev_b32 v19, 11, v19"); a("v_and_b32 v20, 1, v5"); a("v_lshl_add_u32 v19, v20, 4, v19")
    a("s_and_b32 s9, s2, 3"); a("s_lshl_b32 s9, s9, 15"); a("s_lshl_b32 s10, s12, 5"); a("s_add_u32 s9, s9, s10"); a(f"s_add_u32 s9, s9, {YBUF}")
    a("s_mov_b32 s62, 0xcccccccc"); a("s_mov_b32 s63, 0xcccccccc")
    for t in range(2):
        mfma4_select(64 + 16 * t, 96)
        tag4([44, 45, 46, 47], 14)
        if t == 1: a("s_add_u32 s9, s9, 0x4000")
        a("buffer_store_dwordx4 v[44:47], v19, s[52:55], s9 offen sc1")
    a(f"ds_write_b32 v2, v1 offset:{C_Y}")
    stamp(5)
    a.branch("s_branch L_wo")
    a.label("L_aux2")
    lds_wait(C_P, 8, 0x330)
    a(f"v_mov_b32 v18, {MX_BASE}")
    for h in range(4):
        a(f"ds_read_b128 v[{64+8*h}:{67+8*h}], v18 offset:{32*h}")
        a(f"ds_read_b128 v[{68+8*h}:{71+8*h}], v18 offset:{32*h+16}")
        a(f"ds_read_b128 v[{96+8*h}:{99+8*h}], v18 offset:{128+32*h}")
        a(f"ds_read_b128 v[{100+8*h}:{103+8*h}], v18 offset:{128+32*h+16}")
    a("s_waitcnt lgkmcnt(0)")
    for h in range(4):
        B = 64 + 8 * h
        a(f"v_max3_f32 v{44+h}, v{B}, v{B+1}, v{B+2}"); a(f"v_max3_f32 v{44+h}, v{44+h}, v{B+3}, v{B+4}")
        a(f"v_max3_f32 v{44+h}, v{44+h}, v{B+5}, v{B+6}"); a(f"v_max_f32 v{44+h}, v{44+h}, v{B+7}")
        B = 96 + 8 * h
        a(f"v_add_f32 v{48+h}, v{B}, v{B+1}")
        for k in range(2, 8): a(f"v_add_f32 v{48+h}, v{48+h}, v{B+k}")
    for h in range(4): a(f"v_cndmask_b32 v{52+h}, v{44+h}, v{48+h}, s[56:57]")
    tag4([52, 53, 54, 55], 14)
    a("s_lshl_b32 s9, s4, 2"); a("s_add_u32 s9, s9, s6"); a("s_lshl_b32 s9, s9, 8"); a(f"s_add_u32 s9, s9, {MLBUF}")
    a("s_lshl_b32 s10, s7, 5"); a("s_add_u32 s10, s10, s9")
    a("v_lshlrev_b32 v18, 4, v0")
    a("s_mov_b64 exec, 3")
    a("buffer_store_dwordx4 v[52:55], v18, s[52:55], s10 offen sc1")
    a("s_mov_b64 exec, -1")
    a("v_lshlrev_b32 v18, 4, v4")
    poll([f"buffer_load_dwordx4 v[64:67], v18, s[52:55], s9 offen sc1"], [64, 65, 66, 67], 14, 41, 0x331)
    for h in range(4):
        a(f"v_mov_b32_dpp v{68+h}, v{64+h} {DPP['x1']} row_mask:0xf bank_mask:0xf")
    for h in range(4):
        a(f"v_cndmask_b32 v{72+h}, v{64+h}, v{68+h}, s[56:57]")
        a(f"v_cndmask_b32 v{76+h}, v{68+h}, v{64+h}, s[56:57]")
    for h in range(4): a(f"v_mov_b32 v{80+h}, v{72+h}")
    for kind in ("x2", "r4", "r8"):
        for h in range(4): dpp_op("v_max_f32", 80 + h, kind)
    for h in range(4): a(f"v_sub_f32 v{72+h}, v{72+h}, v{80+h}")
    for h in range(4): a(f"v_mul_f32 v{72+h}, {hex(LOG2E)}, v{72+h}")
    for h in range(4): a(f"v_exp_f32 v{72+h}, v{72+h}")
    for h in range(4): a(f"v_mul_f32 v{72+h}, v{72+h}, v{76+h}")
    for kind in ("x2", "r4", "r8"):
        for h in range(4): dpp_op("v_add_f32", 72 + h, kind)
    for h in range(4): a(f"v_sub_f32 v{44+h}, v{44+h}, v{80+h}")
    for h in range(4): a(f"v_mul_f32 v{44+h}, {hex(LOG2E)}, v{44+h}")
    for h in range(4): a(f"v_exp_f32 v{44+h}, v{44+h}")
    for h in range(4): a(f"v_rcp_f32 v{72+h}, v{72+h}")
    for h in range(4): a(f"v_mul_f32 v{44+h}, v{44+h}, v{72+h}")
    a(f"v_mov_b32 v18, {SC_BASE}")
    a("ds_write_b128 v18, v[44:47]")
    a("s_waitcnt lgkmcnt(0)")
    a(f"ds_write_b32 v2, v1 offset:{C_SC}")
    stamp(5)
    a.branch("s_branch L_wo")
    a.label("L_aux3")
    Ly = a.new("Ly")
    a("s_cmp_lt_u32 s2, 224")
    a.branch(f"s_cbranch_scc0 {Ly}")
    lds_wait(C_Y, 1, 0x340)
    a.label(Ly)
    prog_wait(2, 0x341)
    a("v_lshlrev_b32 v18, 4, v0")
    a("s_lshl_b32 s9, s2, 11"); a(f"s_add_u32 s9, s9, {YBUF}")
    a("v_lshrrev_b32 v20, 1, v5"); a("v_and_b32 v21, 1, v5"); a("v_lshl_add_u32 v20, v21, 1, v20")
    a("v_and_b32 v21, 1, v0"); a("v_lshl_add_u32 v20, v21, 2, v20")
    a("s_lshl_b32 s10, s2, 3")
    a("v_add_u32 v20, s10, v20"); a("v_lshlrev_b32 v20, 1, v20")
    a("buffer_load_ushort v21, v20, s[40:43], 0 offen")
    def pre():
        for k in range(4): a(f"v_mov_b32 v{68+k}, v14")
    L, Dn = a.new("Lg"), a.new("Ld")
    a("s_mov_b32 s60, 0")
    a.label(L)
    pre()
    a("buffer_load_dwordx4 v[64:67], v18, s[52:55], s9 offen sc1")
    a("s_mov_b32 exec_hi, 0xffff")
    a("buffer_load_dwordx4 v[68:71], v18, s[52:55], s9 offen offset:1024 sc1")
    a("s_mov_b64 exec, -1")
    a("s_waitcnt vmcnt(0)")
    untag(list(range(64, 72)), 14, 41, True)
    a(f"v_and_b32 v41, {TAGM}, v41")
    a("v_cmp_ne_u32 vcc, 0, v41")
    a("s_cmp_eq_u64 vcc, 0")
    a.branch(f"s_cbranch_scc1 {Dn}")
    a("s_sleep 2")
    a("s_add_u32 s60, s60, 1"); a(f"s_cmp_lt_u32 s60, {cfg.G_LIMIT}")
    a.branch(f"s_cbranch_scc1 {L}")
    fail_to(0x342)
    a.label(Dn)
    for k in range(4): a(f"v_add_f32 v{64+k}, v{64+k}, v{68+k}")
    red8(64, 65, 66, 67)
    bf16r(64, 64)
    a(f"v_mul_f32 v65, {hex(LOG2E ^ 0x80000000)}, v64")
    a("v_exp_f32 v65, v65")
    a("v_add_f32 v65, 1.0, v65")
    a("v_rcp_f32 v65, v65")
    a("v_mul_f32 v65, v64, v65")
    bf16r(22, 65)
    a("v_lshlrev_b32 v21, 16, v21")
    stamp(5)
    a.label("L_wo")
    prog_wait(17, 0x350)
    stamp(6)
    a("s_lshr_b32 s9, s3, 1"); a("s_lshl_b32 s9, s9, 13"); a(f"s_add_u32 s13, s9, {WQ_BASE}")
    a("s_and_b32 s9, s3, 1"); a("s_lshl_b32 s12, s9, 7")
    tile_frags("s13", "s12", 96, 4)
    a("s_lshl_b32 s9, s4, 4"); a("s_lshr_b32 s10, s5, 1"); a("s_add_u32 s15, s9, s10")
    a("s_lshl_b32 s9, s15, 12"); a(f"s_add_u32 s9, s9, {OBUF}")
    a("v_lshlrev_b32 v19, 6, v6"); a("v_lshl_add_u32 v19, v7, 1, v19"); a("v_lshrrev_b32 v18, 1, v5"); a("v_add_u32 v19, v19, v18")
    a("v_lshlrev_b32 v19, 12, v19"); a("v_and_b32 v18, 1, v5"); a("v_lshl_add_u32 v19, v18, 4, v19")
    a("s_and_b32 s10, s5, 1"); a("s_lshl_b32 s10, s10, 5"); a("s_lshl_b32 s11, s3, 3"); a("s_add_u32 s10, s10, s11"); a("s_lshl_b32 s10, s10, 12")
    a("s_lshl_b32 s11, s15, 5"); a("s_add_u32 s10, s10, s11"); a(f"s_add_u32 s14, s10, {SBUF}")
    gather8("s9", 0x351, relu=False)
    stamp(7)
    a("s_mov_b32 s62, 0xcccccccc"); a("s_mov_b32 s63, 0xcccccccc")
    a("s_waitcnt lgkmcnt(0)")
    mfma4_select(96, 64)
    tag4([44, 45, 46, 47], 14)
    a("buffer_store_dwordx4 v[44:47], v19, s[52:55], s14 offen sc1")
    stamp(8)
    Lfin = a.new("Lfin")
    a("s_cmp_eq_u32 s3, 3")
    a.branch(f"s_cbranch_scc1 {Lfin}")
    stamps_out(9)
    a("s_endpgm")
    a.label(Lfin)
    a("v_lshlrev_b32 v18, 4, v0")
    a("s_lshl_b32 s9, s2, 12"); a(f"s_add_u32 s9, s9, {SBUF}")
    ld = [f"buffer_load_dwordx4 v[{64+4*i}:{67+4*i}], v18, s[52:55], s9 offen offset:{1024*i} sc1" for i in range(4)]
    poll(ld, list(range(64, 80)), 14, 41, 0x360)
    stamp(9)
    for k in range(4):
        a(f"v_add_f32 v{64+k}, v{64+k}, v{68+k}"); a(f"v_add_f32 v{72+k}, v{72+k}, v{76+k}")
    for k in range(4): a(f"v_add_f32 v{64+k}, v{64+k}, v{72+k}")
    red8(64, 65, 66, 67)
    bf16r(64, 64)
    a("v_mul_f32 v64, v64, v22"); bf16r(64, 64)
    a("v_add_f32 v64, v21, v64")
    a("v_cvt_pk_bf16_f32 v64, v64, v64")
    srd(44, 32, 33, 4096)
    a("s_mov_b32 s10, 0x00030003")
    a("s_mov_b32 exec_lo, s10"); a("s_mov_b32 exec_hi, s10")
    a("buffer_store_short v64, v20, s[44:47], 0 offen")
    a("s_mov_b64 exec, -1")
    Le = a.new("Le")
    a("s_cmp_eq_u32 s2, 0")
    a.branch(f"s_cbranch_scc0 {Le}")
    a("v_mov_b32 v4, s38"); a("v_mov_b32 v5, 0")
    a("s_mov_b64 exec, 1")
    a("buffer_store_dword v4, v5, s[52:55], 0 offen sc1")
    a("s_mov_b64 exec, -1")
    a.label(Le)
    stamp(10)
    stamps_out(11, {4: 6, 5: 7, 7: 8, 8: 9, 9: 10, 10: 11})
    a("s_endpgm")
    a.label("L_fail")
    a("v_mov_b32 v4, s61"); a("s_lshl_b32 s9, s3, 2"); a("v_mov_b32 v5, s9")
    a("s_mov_b64 exec, 1")
    a("global_store_dword v5, v4, s[34:35]")
    a.label("L_exit", flush=False)
    a("s_endpgm")
    return a

def wrap(a, lds=LDS_SIZE):
    hdr = open(REF).read().split("; Override launch geometry")[0]
    s = hdr
    s += "; Generated by gen/kern.py (hand-written schedule, see comments).\n"
    s += f"; @launch grid=(256,1,1) block=(1024,1,1) lds={lds}\n"
    s += '.amdgcn_target "amdgcn-amd-amdhsa--gfx950"\n.text\n'
    s += f".globl {KNAME}\n.p2align 8\n.type {KNAME},@function\n{KNAME}:\n"
    s += a.text()
    s += '.section .rodata,"a"\n.p2align 6\n'
    s += f".amdhsa_kernel {KNAME}\n"
    s += "  .amdhsa_next_free_vgpr 128\n  .amdhsa_next_free_sgpr 102\n  .amdhsa_accum_offset 128\n"
    s += "  .amdhsa_group_segment_fixed_size 0\n  .amdhsa_kernarg_size 88\n  .amdhsa_user_sgpr_count 2\n"
    s += "  .amdhsa_user_sgpr_kernarg_segment_ptr 1\n  .amdhsa_system_sgpr_workgroup_id_x 1\n"
    s += ".end_amdhsa_kernel\n"
    return s

if __name__ == "__main__":
    out = sys.argv[1] if len(sys.argv) > 1 else "k1.s"
    class C(Cfg): pass
    for kv in sys.argv[2:]:
        k, v = kv.split("=")
        cur = getattr(Cfg, k)
        setattr(C, k, (v == "1") if isinstance(cur, bool) else type(cur)(v) if not isinstance(cur, int) else int(v, 0))
    a = build(C)
    open(out, "w").write(wrap(a))
    print(out, "instructions:", a.ninst)
```

```python
import sys, os
sys.path.insert(0, os.path.dirname(os.path.abspath(__file__)))
from dsl import Asm

KNAME = "recurrent_scan__sliding_block_cached__dense_activation_relu__decode_kernel"
REF = "recurrent_scan__sliding_block_cached__dense_activation_relu__decode.s.ref"

V_BASE = 0
XN_BASE = 0
WQ_BASE = 131072
W1_BASE = 147456
P_BASE = 155648
P_STRIDE = 1088
Q_BASE = 160000
MX_BASE = 161024
LX_BASE = 161152
SC_BASE = 161280
CNT_BASE = 161312
LDS_SIZE = 163840
C_W, C_QS, C_KI, C_CLKQ, C_QRDY, C_M, C_P, C_SC = [4 * i for i in range(8)]
C_PROG = 32
C_Y = 48
QBUF = 0x10000
HBUF = 0x60000
MLBUF = 0xA0000
OBUF = 0xB0000
YBUF = 0x140000
SBUF = 0x200000
WS_USED = 0x300000
DIAG = 0x800000
TAGM = 0x3FF
LOG2E = 0x3fb8aa3b
SCALE = 0x3db504f3
EPS = 0x3727c5ac

class Cfg:
    KW = 4
    VW = 8
    K8_AT = 10
    KI_TARGET = 4
    ROT = "hash"
    STAMP = False
    DBGSTAMP = False
    DBGWG = 100
    TRIP = 0
    LDS_LIMIT = 1 << 20
    G_LIMIT = 1 << 15
    NT = " nt"
    PRIO_AUX = 3
    PRIO_LD = 2
    POLL_SLEEP = 0

def build(cfg=Cfg):
    a = Asm()
    NT = cfg.NT
    stamp_idx = {}
    def stamp(i):
        if cfg.STAMP or cfg.DBGSTAMP or (cfg.TRIP and i in (0, 9)):
            a(f"s_memrealtime s[{64+2*i}:{65+2*i}]")
    def stamps_out(n, dbgmap=None):
        if cfg.DBGSTAMP and dbgmap is not None:
            a("s_waitcnt lgkmcnt(0)")
            a("s_mov_b64 exec, 1")
            a("v_mov_b32 v4, 0")
            a("s_not_b32 s9, s64")
            a("v_mov_b32 v5, s9")
            a("global_atomic_umax v4, v5, s[34:35]")
            a(f"v_mov_b32 v5, s{64+2*10}")
            a("global_atomic_umax v4, v5, s[34:35] offset:4")
            Lq = a.new("Lq")
            a(f"s_cmp_eq_u32 s2, {cfg.DBGWG}")
            a.branch(f"s_cbranch_scc0 {Lq}")
            for i in range(11):
                a(f"v_mov_b32 v5, s{64+2*i}")
                a(f"global_store_dword v4, v5, s[34:35] offset:{4*(2+i)}")
            a.label(Lq)
            a("s_mov_b64 exec, -1")
        if cfg.STAMP:
            a("s_waitcnt lgkmcnt(0)")
            a("s_lshl_b32 s9, s2, 4")
            a("s_add_u32 s9, s9, s3")
            a("s_lshl_b32 s9, s9, 6")
            a(f"s_add_u32 s9, s9, {DIAG}")
            a("s_add_u32 s10, s36, s9"); a("s_addc_u32 s11, s37, 0")
            a("v_mov_b32 v4, 0")
            a("s_mov_b64 exec, 1")
            for i in range(n):
                a(f"v_mov_b32 v5, s{64+2*i}")
                a(f"global_store_dword v4, v5, s[10:11] offset:{4*i}")
            a("s_mov_b64 exec, -1")
    def fail_to(code):
        a(f"s_mov_b32 s61, {code}")
        a.branch("s_branch L_fail")
    def lds_wait(off, target, code, vt="v24", sleep=1, keep=None):
        L, D = a.new("Lw"), a.new("Ld")
        a("s_mov_b32 s60, 0")
        a.label(L)
        a(f"ds_read_b32 {vt}, v2 offset:{off}")
        a("s_waitcnt lgkmcnt(0)")
        a(f"v_readfirstlane_b32 s62, {vt}")
        a(f"s_cmp_ge_u32 s62, {target}")
        a.branch(f"s_cbranch_scc1 {D}")
        if sleep: a(f"s_sleep {sleep}")
        a("s_add_u32 s60, s60, 1")
        a(f"s_cmp_lt_u32 s60, {cfg.LDS_LIMIT}")
        a.branch(f"s_cbranch_scc1 {L}")
        fail_to(code)
        a.label(D)
    def prog_wait(target, code, vt=24, sleep=1):
        L, D = a.new("Lp"), a.new("Ld")
        a("s_mov_b32 s60, 0")
        a.label(L)
        a(f"ds_read_b128 v[{vt}:{vt+3}], v2 offset:{C_PROG}")
        a("s_waitcnt lgkmcnt(0)")
        a(f"v_min_u32 v{vt}, v{vt}, v{vt+1}")
        a(f"v_min3_u32 v{vt}, v{vt}, v{vt+2}, v{vt+3}")
        a(f"v_readfirstlane_b32 s62, v{vt}")
        a(f"s_cmp_ge_u32 s62, {target}")
        a.branch(f"s_cbranch_scc1 {D}")
        if sleep: a(f"s_sleep {sleep}")
        a("s_add_u32 s60, s60, 1")
        a(f"s_cmp_lt_u32 s60, {cfg.LDS_LIMIT}")
        a.branch(f"s_cbranch_scc1 {L}")
        fail_to(code)
        a.label(D)
    def lds_add1(off, vone):
        a("s_mov_b64 exec, 1")
        a(f"ds_add_u32 v2, {vone} offset:{off}")
        a("s_mov_b64 exec, -1")
    def srd(dst, lo, hi, size, add=None):
        if add is None:
            a(f"s_mov_b32 s{dst}, s{lo}"); a(f"s_mov_b32 s{dst+1}, s{hi}")
        else:
            a(f"s_add_u32 s{dst}, s{lo}, {add}"); a(f"s_addc_u32 s{dst+1}, s{hi}, 0")
        a(f"s_mov_b32 s{dst+2}, {size}")
        a(f"s_mov_b32 s{dst+3}, 0x20000")
    def tag4(regs, vtag):
        for r in regs: a(f"v_add_u32 v{r}, 0x200, v{r}")
        for r in regs: a(f"v_and_or_b32 v{r}, v{r}, s58, v{vtag}")
    def untag(regs, vtag, acc, first):
        for r in regs: a(f"v_xor_b32 v{r}, v{vtag}, v{r}")
        it = list(regs)
        if first:
            a(f"v_or3_b32 v{acc}, v{it[0]}, v{it[1]}, v{it[2]}"); it = it[3:]
        while len(it) >= 2:
            a(f"v_or3_b32 v{acc}, v{it[0]}, v{it[1]}, v{acc}"); it = it[2:]
        if it: a(f"v_or_b32 v{acc}, v{it[0]}, v{acc}")
    def poll(loads, regs, vtag, acc, code, pre=None):
        L, D = a.new("Lg"), a.new("Ld")
        a("s_mov_b32 s60, 0")
        a.label(L)
        if pre: pre()
        for l in loads: a(l)
        if pre: a("s_mov_b64 exec, -1")
        a("s_waitcnt vmcnt(0)")
        untag(regs, vtag, acc, True)
        a(f"v_and_b32 v{acc}, {TAGM}, v{acc}")
        a(f"v_cmp_ne_u32 vcc, 0, v{acc}")
        a("s_cmp_eq_u64 vcc, 0")
        a.branch(f"s_cbranch_scc1 {D}")
        if cfg.POLL_SLEEP: a(f"s_sleep {cfg.POLL_SLEEP}")
        a("s_add_u32 s60, s60, 1")
        a(f"s_cmp_lt_u32 s60, {cfg.G_LIMIT}")
        a.branch(f"s_cbranch_scc1 {L}")
        fail_to(code)
        a.label(D)
    def bf16r(dst, src, tmp=None):
        a(f"v_cvt_pk_bf16_f32 v{dst}, v{src}, v{src}")
        a(f"v_lshlrev_b32 v{dst}, 16, v{dst}")
    DPP = {"x1": "quad_perm:[1,0,3,2]", "x2": "quad_perm:[2,3,0,1]", "r4": "row_ror:4", "r8": "row_ror:8"}
    def dpp_op(op, reg, kind):
        a(f"{op}_dpp v{reg}, v{reg}, v{reg} {DPP[kind]} row_mask:0xf bank_mask:0xf")
    def allred_g(op, reg, tmp):
        for sw in ("v_permlane16_swap_b32", "v_permlane32_swap_b32"):
            a(f"v_mov_b32 v{tmp}, v{reg}")
            a(f"{sw} v{reg}, v{tmp}")
            a(f"{op} v{reg}, v{reg}, v{tmp}")
    def red8(r0, r1, r2, r3):
        a(f"v_permlane32_swap_b32 v{r0}, v{r1}")
        a(f"v_permlane32_swap_b32 v{r2}, v{r3}")
        a(f"v_add_f32 v{r0}, v{r0}, v{r1}")
        a(f"v_add_f32 v{r2}, v{r2}, v{r3}")
        a(f"v_permlane16_swap_b32 v{r0}, v{r2}")
        a(f"v_add_f32 v{r0}, v{r0}, v{r2}")
        for k in ("x2", "r4", "r8"): dpp_op("v_add_f32", r0, k)

    a("s_cmp_ge_u32 s2, 256")
    a.branch("s_cbranch_scc1 L_exit", flush=False)
    a("s_load_dwordx16 s[16:31], s[0:1], 0")
    a("s_load_dwordx4 s[32:35], s[0:1], 64")
    a("s_load_dwordx2 s[36:37], s[0:1], 80")
    stamp(0)
    a("v_lshrrev_b32 v1, 6, v0")
    a("v_and_b32 v0, 63, v0")
    a("v_readfirstlane_b32 s3, v1")
    a("s_and_b32 s4, s2, 7")
    a("s_lshr_b32 s5, s2, 3")
    a("s_lshr_b32 s6, s5, 3")
    a("s_and_b32 s7, s5, 7")
    if cfg.ROT == "hash":
        a("s_mul_i32 s8, s2, 0x9E3779B1")
        a("s_lshr_b32 s8, s8, 26")
    else:
        a("s_mov_b32 s8, 0")
    a(f"v_mov_b32 v2, {CNT_BASE}")
    a("v_mov_b32 v1, 1")
    a(f"s_mov_b32 s58, {(~TAGM) & 0xffffffff}")
    a("s_waitcnt lgkmcnt(0)")
    a("s_load_dword s38, s[36:37], 0")
    srd(52, 36, 37, WS_USED)
    a("s_cmp_lt_u32 s3, 4")
    a.branch("s_cbranch_scc1 L_aux")
    a("s_cmp_lt_u32 s3, 8")
    a.branch("s_cbranch_scc1 L_loader")

    def epoch_barrier():
        a("s_waitcnt lgkmcnt(0)")
        a("s_add_u32 s38, s38, 1")
        a(f"s_and_b32 s39, s38, {TAGM}")
        a("s_barrier")

    a("s_sub_u32 s12, s3, 8")
    a("s_lshl_b32 s9, s6, 3"); a("s_add_u32 s9, s9, s4"); a("s_lshl_b32 s9, s9, 22")
    a("s_lshl_b32 s10, s7, 17"); a("s_add_u32 s9, s9, s10"); a(f"s_add_u32 s9, s9, {12288*256}")
    srd(40, 18, 19, 131072, add="s9")
    a("v_and_b32 v4, 15, v0")
    a("v_lshrrev_b32 v5, 4, v0")
    a("v_lshrrev_b32 v6, 1, v4")
    a("v_lshlrev_b32 v6, 8, v6")
    a("v_and_b32 v7, 1, v4")
    a("v_lshl_add_u32 v6, v7, 6, v6")
    a("v_lshl_add_u32 v3, v5, 4, v6")
    a("s_lshl_b32 s13, s12, 3"); a("s_add_u32 s13, s13, s8")
    KREG = 64
    for i in range(16):
        m, s = i >> 1, i & 1
        if i == cfg.KW:
            epoch_barrier()
        if i >= cfg.KW:
            a(f"s_waitcnt vmcnt({cfg.KW-1})")
        if i == cfg.K8_AT:
            Lx = a.new("Lk")
            a("s_cmp_eq_u32 s12, 0")
            a.branch(f"s_cbranch_scc0 {Lx}")
            a(f"ds_write_b32 v2, v1 offset:{C_CLKQ}")
            a.label(Lx)
        if s == 0:
            a(f"s_add_u32 s10, s13, {m}")
            a("s_and_b32 s10, s10, 63")
            a("s_lshl_b32 s10, s10, 11")
        a(f"buffer_load_dwordx4 v[{KREG+4*i}:{KREG+4*i+3}], v3, s[40:43], s10 offen offset:{s*128}{NT}")
    lds_add1(C_KI, "v1")
    stamp(1)
    a("v_lshrrev_b32 v6, 1, v4"); a("v_and_b32 v6, 3, v6")
    a("v_lshlrev_b32 v8, 8, v6")
    a("v_lshl_add_u32 v8, v7, 6, v8")
    a("v_lshl_add_u32 v8, v5, 4, v8")
    a(f"v_add_u32 v8, {Q_BASE}, v8")
    a("s_mov_b32 s56, 0xaaaaaaaa"); a("s_mov_b32 s57, 0xaaaaaaaa")
    lds_wait(C_QRDY, 1, 0x101, vt="v24")
    a("ds_read_b128 v[12:15], v8 offset:128")
    a("ds_read_b128 v[8:11], v8")
    stamp(2)
    a("s_waitcnt lgkmcnt(0)")
    for m in range(8):
        a(f"s_waitcnt vmcnt({14-2*m})")
        D = 32 + 4 * m
        a(f"v_mfma_f32_16x16x32_bf16 v[{D}:{D+3}], v[{KREG+8*m}:{KREG+8*m+3}], v[8:11], 0")
        a(f"v_mfma_f32_16x16x32_bf16 v[{D}:{D+3}], v[{KREG+8*m+4}:{KREG+8*m+7}], v[12:15], v[{D}:{D+3}]")
    stamp(3)
    for m in range(8):
        D = 32 + 4 * m
        a(f"v_add_f32_dpp v24, v{D+1}, v{D} {DPP['x1']} row_mask:0xf bank_mask:0xf")
        a(f"v_add_f32_dpp v25, v{D+2}, v{D+3} {DPP['x1']} row_mask:0xf bank_mask:0xf")
        a(f"v_cndmask_b32 v{16+m}, v24, v25, s[56:57]")
    for m in range(0, 8, 2):
        x, y = 16 + m, 17 + m
        a(f"v_cvt_pk_bf16_f32 v24, v{x}, v{y}")
        a(f"v_lshlrev_b32 v{x}, 16, v24")
        a(f"v_and_b32 v{y}, 0xffff0000, v24")
        a(f"v_mul_f32 v{x}, {hex(SCALE)}, v{x}")
        a(f"v_mul_f32 v{y}, {hex(SCALE)}, v{y}")
        a(f"v_cvt_pk_bf16_f32 v24, v{x}, v{y}")
        a(f"v_lshlrev_b32 v{x}, 16, v24")
        a(f"v_and_b32 v{y}, 0xffff0000, v24")
    a("v_max3_f32 v24, v16, v17, v18"); a("v_max3_f32 v24, v24, v19, v20"); a("v_max3_f32 v24, v24, v21, v22"); a("v_max_f32 v24, v24, v23")
    dpp_op("v_max_f32", 24, "x1")
    allred_g("v_max_f32", 24, 25)
    a("v_lshlrev_b32 v26, 5, v6")
    a("s_lshl_b32 s9, s12, 2")
    a(f"s_add_u32 s9, s9, {MX_BASE}")
    a("v_add_u32 v27, s9, v26")
    a("ds_write_b32 v27, v24")
    a("s_waitcnt lgkmcnt(0)")
    lds_add1(C_M, "v1")
    lds_wait(C_M, 8, 0x102, vt="v25", sleep=0)
    a(f"v_add_u32 v28, {MX_BASE}, v26")
    a("ds_read_b128 v[32:35], v28")
    a("ds_read_b128 v[36:39], v28 offset:16")
    a("s_waitcnt lgkmcnt(0)")
    a("v_max3_f32 v24, v32, v33, v34"); a("v_max3_f32 v24, v24, v35, v36"); a("v_max3_f32 v24, v24, v37, v38"); a("v_max_f32 v24, v24, v39")
    for m in range(8):
        a(f"v_sub_f32 v{16+m}, v{16+m}, v24")
    for m in range(8):
        a(f"v_mul_f32 v{16+m}, {hex(LOG2E)}, v{16+m}")
    for m in range(8):
        a(f"v_exp_f32 v{16+m}, v{16+m}")
    a(f"v_mul_u32_u24 v29, {P_STRIDE}, v6")
    a("v_lshl_add_u32 v29, v5, 2, v29")
    a("v_lshl_add_u32 v29, v7, 1, v29")
    a("s_lshl_b32 s9, s12, 7"); a(f"s_add_u32 s9, s9, {P_BASE}")
    a("v_add_u32 v29, s9, v29")
    for m in range(8):
        a(f"v_cvt_pk_bf16_f32 v{32+m}, v{16+m}, v{16+m}")
        a(f"ds_write_b16 v29, v{32+m} offset:{16*m}")
    a("v_add_f32 v24, v16, v17"); a("v_add_f32 v25, v18, v19"); a("v_add_f32 v30, v20, v21"); a("v_add_f32 v31, v22, v23")
    a("v_add_f32 v24, v24, v25"); a("v_add_f32 v30, v30, v31"); a("v_add_f32 v24, v24, v30")
    dpp_op("v_add_f32", 24, "x1")
    allred_g("v_add_f32", 24, 25)
    a(f"v_add_u32 v27, {LX_BASE-MX_BASE}, v27")
    a("ds_write_b32 v27, v24")
    a("s_waitcnt lgkmcnt(0)")
    lds_add1(C_P, "v1")
    stamp(4)
    lds_wait(C_P, 8, 0x103, vt="v25", sleep=0)
    a("v_and_b32 v6, 3, v4")
    a(f"v_mul_u32_u24 v29, {P_STRIDE}, v6")
    a("v_lshl_add_u32 v29, v5, 4, v29")
    a(f"v_add_u32 v29, {P_BASE}, v29")
    for ks in range(16):
        a(f"ds_read_b128 v[{64+4*ks}:{64+4*ks+3}], v29 offset:{64*ks}")
    a("v_lshrrev_b32 v8, 2, v4")
    a("v_and_b32 v9, 3, v4")
    a("v_and_b32 v10, 1, v5")
    a("v_lshl_add_u32 v10, v10, 2, v8")
    a("v_xor_b32 v10, s12, v10")
    a("v_lshl_add_u32 v11, v5, 3, v8")
    a("v_lshlrev_b32 v11, 8, v11")
    a("v_lshl_add_u32 v11, v10, 5, v11")
    a("v_lshl_add_u32 v11, v9, 3, v11")
    a("v_add_u32 v12, 0x10000, v11")
    a("v_lshlrev_b32 v13, 14, v6")
    a("v_lshl_add_u32 v13, v5, 4, v13")
    a("s_lshl_b32 s9, s4, 4"); a("s_lshr_b32 s10, s12, 1"); a("s_add_u32 s9, s9, s10"); a("s_lshl_b32 s9, s9, 12")
    a("s_lshl_b32 s10, s5, 7"); a("s_add_u32 s9, s9, s10")
    a("s_and_b32 s10, s12, 1"); a("s_lshl_b32 s10, s10, 6"); a("s_add_u32 s9, s9, s10")
    a(f"s_add_u32 s14, s9, {OBUF}")
    a("v_mov_b32 v14, s39")
    a("s_mov_b32 s63, 0")
    a("s_waitcnt lgkmcnt(0)")
    stamp(5)
    for ks in range(16):
        Lok = a.new("Lok")
        if ks == 15:
            lds_wait(C_SC, 1, 0x104, vt="v24")
            a(f"v_lshlrev_b32 v24, 2, v6")
            a(f"v_add_u32 v24, {SC_BASE}, v24")
            a("ds_read_b32 v15, v24")
        a(f"s_cmp_ge_u32 s63, {ks+1}")
        a.branch(f"s_cbranch_scc1 {Lok}", flush=False)
        prog_wait(ks + 1, 0x105, vt=24, sleep=(1 if ks < 13 else 0))
        a("s_mov_b32 s63, s62")
        a.label(Lok, flush=False)
        ad = "v11" if ks < 8 else "v12"
        off = (ks & 7) * 8192
        A = 32 + 4 * (ks & 3)
        a(f"ds_read_b64_tr_b16 v[{A}:{A+1}], {ad} offset:{off}")
        a(f"ds_read_b64_tr_b16 v[{A+2}:{A+3}], {ad} offset:{off+1024}")
        a("s_waitcnt lgkmcnt(0)")
        a(f"v_mfma_f32_16x16x32_bf16 v[48:51], v[{A}:{A+3}], v[{64+4*ks}:{64+4*ks+3}], " + ("0" if ks == 0 else "v[48:51]"))
    stamp(6)
    for r in range(4): a(f"v_mul_f32 v{48+r}, v15, v{48+r}")
    tag4([48, 49, 50, 51], 14)
    a("s_mov_b32 s10, 0x000f000f")
    a("s_mov_b32 exec_lo, s10"); a("s_mov_b32 exec_hi, s10")
    a("buffer_store_dwordx4 v[48:51], v13, s[52:55], s14 offen sc1")
    a("s_mov_b64 exec, -1")
    stamp(7)
    stamps_out(8)
    a("s_endpgm")

    a.label("L_loader")
    if cfg.PRIO_LD: a(f"s_setprio {cfg.PRIO_LD}")
    a("s_sub_u32 s12, s3, 4")
    a("s_lshl_b32 s9, s6, 3"); a("s_add_u32 s9, s9, s4"); a("s_lshl_b32 s9, s9, 22")
    a("s_lshl_b32 s10, s7, 17"); a("s_add_u32 s9, s9, s10"); a(f"s_add_u32 s9, s9, {12288*256}")
    srd(40, 20, 21, 131072, add="s9")
    srd(44, 24, 25, 4096 * 1024)
    srd(48, 30, 31, 1792 * 1024)
    a("s_cmp_lt_u32 s2, 224")
    a("s_cselect_b32 s50, s50, 0")
    a("v_lshrrev_b32 v5, 4, v0")
    a("s_and_b32 s9, s12, 1"); a("s_lshl_b32 s9, s9, 2")
    a("v_or_b32 v6, s9, v5")
    a("v_lshlrev_b32 v6, 1, v6")
    a("v_and_b32 v7, 15, v0")
    a("v_xor_b32 v6, v6, v7")
    a("v_lshlrev_b32 v6, 4, v6")
    a("v_lshl_add_u32 v8, v5, 8, v6")
    a("v_lshl_add_u32 v9, v5, 10, v6")
    a("s_lshl_b32 s9, s12, 2")
    a(f"s_add_u32 s9, s9, {C_PROG}")
    a("v_add_u32 v10, s9, v2")
    epoch_barrier()
    lds_wait(C_KI, cfg.KI_TARGET, 0x201)
    lds_wait(C_QS, 4, 0x202)
    stamp(1)
    a("s_lshr_b32 s9, s2, 2"); a("s_lshl_b32 s9, s9, 5"); a("s_lshl_b32 s10, s12, 3"); a("s_add_u32 s9, s9, s10")
    a("s_lshl_b32 s9, s9, 10"); a("s_and_b32 s10, s2, 3"); a("s_lshl_b32 s10, s10, 8"); a("s_add_u32 s9, s9, s10")
    a("s_lshl_b32 s11, s12, 11")
    for i in range(2):
        a(f"s_add_u32 s13, s11, {W1_BASE + 1024*i}")
        a("s_mov_b32 m0, s13")
        a(f"s_add_u32 s10, s9, {4096*i}")
        a(f"buffer_load_dwordx4 v9, s[48:51], s10 offen{NT} lds")
    a("s_add_u32 s14, s8, s12")
    NP = cfg.VW // 2
    for ks in range(16):
        if ks + 1 >= NP:
            a(f"s_waitcnt vmcnt({cfg.VW-2})")
            done = ks + 1 - NP
            done = ks - (NP - 1)
            if done >= 1:
                a(f"v_mov_b32 v11, {done}")
                a("ds_write_b32 v10, v11")
        a(f"s_add_u32 s10, s14, {4*ks}")
        a("s_and_b32 s10, s10, 63")
        a("s_lshl_b32 s10, s10, 11")
        a(f"s_add_u32 s13, s11, {V_BASE + 8192*ks}")
        a("s_mov_b32 m0, s13")
        a("s_nop 0")
        a(f"buffer_load_dwordx4 v8, s[40:43], s10 offen{NT} lds")
        a(f"buffer_load_dwordx4 v8, s[40:43], s10 offen offset:1024{NT} lds")
    stamp(2)
    a("s_lshl_b32 s9, s4, 9"); a("s_lshr_b32 s10, s5, 1"); a("s_lshl_b32 s10, s10, 5"); a("s_add_u32 s9, s9, s10")
    a("s_lshl_b32 s10, s12, 3"); a("s_add_u32 s9, s9, s10"); a("s_lshl_b32 s9, s9, 10")
    a("s_and_b32 s10, s5, 1"); a("s_lshl_b32 s10, s10, 9"); a("s_add_u32 s9, s9, s10")
    for h2 in range(2):
        for i in range(2):
            a(f"s_add_u32 s13, s11, {WQ_BASE + 8192*h2 + 1024*i}")
            a("s_mov_b32 m0, s13")
            a(f"s_add_u32 s10, s9, {256*h2 + 4096*i}")
            a(f"buffer_load_dwordx4 v9, s[44:47], s10 offen{NT} lds")
    for k in range(NP - 1, -1, -1):
        a(f"s_waitcnt vmcnt({4 + 2*k})")
        a(f"v_mov_b32 v11, {16 - k}")
        a("ds_write_b32 v10, v11")
        if k == 0: stamp(3)
    a("s_waitcnt vmcnt(0)")
    a("v_mov_b32 v11, 17")
    a("ds_write_b32 v10, v11")
    stamp(4)
    stamps_out(5)
    a("s_waitcnt lgkmcnt(0)")
    a("s_endpgm")

    a.label("L_aux")
    if cfg.PRIO_AUX: a(f"s_setprio {cfg.PRIO_AUX}")
    srd(40, 16, 17, 4096)
    srd(44, 22, 23, 512 * 8192)
    srd(48, 28, 29, 512 * 3584)
    a("s_cmp_lt_u32 s2, 224")
    a("s_cselect_b32 s50, s50, 0")
    a("v_and_b32 v4, 15, v0")
    a("v_lshrrev_b32 v5, 4, v0")
    a("v_lshrrev_b32 v6, 2, v4")
    a("v_and_b32 v7, 3, v4")
    a("v_lshl_add_u32 v8, v7, 2, v5")
    a("v_lshlrev_b32 v8, 6, v8")
    a("v_lshl_add_u32 v8, v6, 10, v8")
    for i in range(4):
        a(f"buffer_load_dwordx4 v[{16+4*i}:{19+4*i}], v8, s[40:43], 0 offen offset:{16*i}")
    a("v_lshlrev_b32 v9, 4, v5")
    a("v_lshl_add_u32 v9, v6, 10, v9")
    a("s_lshr_b32 s12, s5, 3")
    a("s_and_b32 s13, s5, 7")
    a("s_and_b32 s14, s2, 7")
    a("s_lshr_b32 s15, s2, 3")
    a("s_lshl_b32 s9, s12, 8"); a("s_lshl_b32 s10, s3, 6"); a("s_add_u32 s9, s9, s10")
    a("buffer_load_dwordx4 v[32:35], v9, s[40:43], s9 offen")
    a("s_lshl_b32 s9, s14, 7"); a("s_and_b32 s10, s3, 1"); a("s_lshl_b32 s10, s10, 6"); a("s_add_u32 s9, s9, s10")
    a("buffer_load_dwordx4 v[36:39], v9, s[40:43], s9 offen")
    a("v_lshrrev_b32 v10, 3, v0"); a("v_and_b32 v11, 7, v0"); a("v_lshlrev_b32 v11, 4, v11")
    a("v_lshl_add_u32 v12, v10, 13, v11")
    a("v_mul_u32_u24 v13, 3584, v10"); a("v_add_u32 v13, v13, v11")
    a("s_lshl_b32 s9, s12, 7"); a("s_lshl_b32 s10, s3, 5"); a("s_add_u32 s9, s9, s10"); a("s_lshl_b32 s9, s9, 13")
    a("s_lshl_b32 s10, s4, 10"); a("s_add_u32 s9, s9, s10"); a("s_lshl_b32 s10, s13, 7"); a("s_add_u32 s9, s9, s10")
    a("s_lshl_b32 s11, s3, 12")
    for i in range(4):
        a(f"s_add_u32 s10, s11, {WQ_BASE + 1024*i}")
        a("s_mov_b32 m0, s10")
        a(f"s_add_u32 s10, s9, {8*8192*i}")
        a(f"buffer_load_dwordx4 v12, s[44:47], s10 offen{NT} lds")
    a("s_lshl_b32 s9, s14, 6"); a("s_lshl_b32 s10, s3, 4"); a("s_add_u32 s9, s9, s10"); a("s_mul_i32 s9, s9, 3584")
    a("s_lshl_b32 s10, s15, 7"); a("s_add_u32 s9, s9, s10")
    a("s_lshl_b32 s11, s3, 11")
    for i in range(2):
        a(f"s_add_u32 s10, s11, {W1_BASE + 1024*i}")
        a("s_mov_b32 m0, s10")
        a(f"s_add_u32 s10, s9, {8*3584*i}")
        a(f"buffer_load_dwordx4 v13, s[48:51], s10 offen{NT} lds")
    Lc = a.new("Lc")
    a("s_cmp_eq_u32 s3, 0")
    a.branch(f"s_cbranch_scc0 {Lc}")
    a("v_lshl_add_u32 v14, v0, 2, v2")
    a("v_mov_b32 v15, 0")
    a("ds_write_b32 v14, v15")
    a.label(Lc)
    epoch_barrier()
    a("v_mov_b32 v14, s39")
    stamp(1)
    a("s_waitcnt vmcnt(6)")
    acc = None
    for i in range(16):
        a(f"v_lshlrev_b32 v{64+2*i}, 16, v{16+i}")
        a(f"v_and_b32 v{65+2*i}, 0xffff0000, v{16+i}")
    a("v_add_f32 v40, v64, v65"); a("v_add_f32 v41, v66, v67"); a("v_add_f32 v42, v68, v69"); a("v_add_f32 v43, v70, v71")
    for i in range(8, 32, 4):
        for k in range(4): a(f"v_add_f32 v{40+k}, v{40+k}, v{64+i+k}")
    a("v_add_f32 v40, v40, v41"); a("v_add_f32 v42, v42, v43"); a("v_add_f32 v40, v40, v42")
    dpp_op("v_add_f32", 40, "x1"); dpp_op("v_add_f32", 40, "x2"); allred_g("v_add_f32", 40, 41)
    a("v_mul_f32 v40, 0x3b000000, v40")
    for i in range(32): a(f"v_sub_f32 v{64+i}, v{64+i}, v40")
    for k in range(4): a(f"v_mul_f32 v{42+k}, v{64+k}, v{64+k}")
    for i in range(4, 32, 4):
        for k in range(4): a(f"v_fmac_f32 v{42+k}, v{64+i+k}, v{64+i+k}")
    a("v_add_f32 v42, v42, v43"); a("v_add_f32 v44, v44, v45"); a("v_add_f32 v42, v42, v44")
    dpp_op("v_add_f32", 42, "x1"); dpp_op("v_add_f32", 42, "x2"); allred_g("v_add_f32", 42, 41)
    a("v_mul_f32 v42, 0x3b000000, v42")
    bf16r(40, 40)
    bf16r(42, 42)
    a(f"v_add_f32 v42, {hex(EPS)}, v42"); bf16r(42, 42)
    a("v_sqrt_f32 v42, v42"); bf16r(42, 42)
    a("v_rcp_f32 v42, v42")
    for d in range(32, 40):
        a(f"v_lshlrev_b32 v44, 16, v{d}")
        a(f"v_and_b32 v45, 0xffff0000, v{d}")
        a("v_sub_f32 v44, v44, v40"); a("v_sub_f32 v45, v45, v40")
        a("v_cvt_pk_bf16_f32 v46, v44, v45")
        a("v_lshlrev_b32 v44, 16, v46"); a("v_and_b32 v45, 0xffff0000, v46")
        a("v_mul_f32 v44, v44, v42"); a("v_mul_f32 v45, v45, v42")
        a(f"v_cvt_pk_bf16_f32 v{d}, v44, v45")
    a("v_lshlrev_b32 v15, 4, v0")
    a("s_lshl_b32 s9, s3, 10")
    a(f"s_add_u32 s9, s9, {XN_BASE}")
    a("v_add_u32 v44, s9, v15")
    a("ds_write_b128 v44, v[32:35]")
    a("s_and_b32 s9, s3, 1"); a("s_lshl_b32 s9, s9, 10"); a(f"s_add_u32 s9, s9, {XN_BASE + 4096}")
    a("v_add_u32 v44, s9, v15")
    a("ds_write_b128 v44, v[36:39]")
    stamp(2)
    a("s_waitcnt vmcnt(0) lgkmcnt(0)")
    lds_add1(C_W, "v1")
    lds_wait(C_W, 4, 0x301, sleep=0)
    stamp(3)
    if XN_BASE: a(f"v_add_u32 v15, {XN_BASE}, v15")
    for f in range(6):
        a(f"ds_read_b128 v[{32+4*f}:{35+4*f}], v15 offset:{1024*f}")
    a("v_lshrrev_b32 v8, 2, v4")
    a("v_lshl_add_u32 v9, v5, 3, v8")
    a("v_lshlrev_b32 v9, 7, v9")
    a("v_lshl_add_u32 v9, v7, 3, v9")
    a("s_lshl_b32 s9, s3, 5")
    a(f"s_add_u32 s10, s9, {WQ_BASE}")
    a("v_add_u32 v10, s10, v9")
    a(f"s_add_u32 s10, s9, {W1_BASE}")
    a("v_add_u32 v11, s10, v9")
    for ks in range(4):
        a(f"ds_read_b64_tr_b16 v[{64+4*ks}:{65+4*ks}], v10 offset:{4096*ks}")
        a(f"ds_read_b64_tr_b16 v[{66+4*ks}:{67+4*ks}], v10 offset:{4096*ks+512}")
    for ks in range(2):
        a(f"ds_read_b64_tr_b16 v[{80+4*ks}:{81+4*ks}], v11 offset:{4096*ks}")
        a(f"ds_read_b64_tr_b16 v[{82+4*ks}:{83+4*ks}], v11 offset:{4096*ks+512}")
    a("s_waitcnt lgkmcnt(0)")
    lds_add1(C_QS, "v1")
    for ks in range(4):
        a(f"v_mfma_f32_16x16x32_bf16 v[56:59], v[{64+4*ks}:{67+4*ks}], v[{32+4*ks}:{35+4*ks}], " + ("0" if ks == 0 else "v[56:59]"))
    for ks in range(2):
        a(f"v_mfma_f32_16x16x32_bf16 v[60:63], v[{80+4*ks}:{83+4*ks}], v[{48+4*ks}:{51+4*ks}], " + ("0" if ks == 0 else "v[60:63]"))
    a("v_lshlrev_b32 v8, 13, v6"); a("v_lshl_add_u32 v8, v5, 4, v8")
    a("s_lshl_b32 s9, s4, 15"); a("s_lshl_b32 s10, s12, 11"); a("s_add_u32 s9, s9, s10")
    a("s_lshl_b32 s10, s13, 8"); a("s_add_u32 s9, s9, s10"); a("s_lshl_b32 s10, s3, 6"); a("s_add_u32 s9, s9, s10")
    a(f"s_add_u32 s9, s9, {QBUF}")
    tag4([56, 57, 58, 59], 14)
    a("s_mov_b32 s10, 0x11111111")
    a("s_mov_b32 exec_lo, s10"); a("s_mov_b32 exec_hi, s10")
    a("buffer_store_dwordx4 v[56:59], v8, s[52:55], s9 offen sc1")
    a("s_mov_b64 exec, -1")
    Lnh = a.new("Lnh")
    a("s_cmp_lt_u32 s2, 224")
    a.branch(f"s_cbranch_scc0 {Lnh}")
    a("v_lshlrev_b32 v9, 10, v6"); a("v_lshl_add_u32 v9, v5, 4, v9")
    a("s_lshl_b32 s9, s15, 1"); a("s_lshr_b32 s10, s3, 1"); a("s_add_u32 s9, s9, s10"); a("s_lshl_b32 s9, s9, 12")
    a("s_lshl_b32 s10, s14, 7"); a("s_add_u32 s9, s9, s10")
    a("s_and_b32 s10, s3, 1"); a("s_lshl_b32 s10, s10, 6"); a("s_add_u32 s9, s9, s10")
    a(f"s_add_u32 s9, s9, {HBUF}")
    tag4([60, 61, 62, 63], 14)
    a("s_mov_b32 s10, 0x11111111")
    a("s_mov_b32 exec_lo, s10"); a("s_mov_b32 exec_hi, s10")
    a("buffer_store_dwordx4 v[60:63], v9, s[52:55], s9 offen sc1")
    a("s_mov_b64 exec, -1")
    a.label(Lnh)
    stamp(4)
    a("v_lshlrev_b32 v16, 10, v6"); a("v_lshl_add_u32 v16, v7, 7, v16"); a("v_lshl_add_u32 v16, v5, 5, v16")
    a("v_lshrrev_b32 v8, 2, v4")
    a("v_and_b32 v10, 1, v5")
    a("v_lshl_add_u32 v10, v10, 2, v8")
    a("v_lshl_add_u32 v17, v5, 3, v8")
    a("v_lshlrev_b32 v17, 8, v17")
    a("v_lshl_add_u32 v17, v10, 5, v17")
    a("v_lshl_add_u32 v17, v7, 3, v17")

    def gather8(soff, code, relu):
        loads = [f"buffer_load_dwordx4 v[{64+4*i}:{67+4*i}], v16, s[52:55], {soff} offen offset:{o} sc1" for i, o in enumerate((0, 16, 512, 528))]
        poll(loads, list(range(64, 80)), 14, 41, code)
        for k in range(8): a(f"v_add_f32 v{64+k}, v{64+k}, v{72+k}")
        for kind in ("x1", "x2"):
            for k in range(8): dpp_op("v_add_f32", 64 + k, kind)
        if relu:
            for k in range(8): a(f"v_max_f32 v{64+k}, 0, v{64+k}")
        for k in range(4): a(f"v_cvt_pk_bf16_f32 v{40+k}, v{64+2*k}, v{65+2*k}")
    def tile_frags(base_expr_sgpr, ct0, dst, ntile):
        for t in range(ntile):
            a(f"v_xor_b32 v18, {(t)<<5}, v17")
            a(f"v_xor_b32 v18, {ct0}, v18")
            a(f"v_add_u32 v18, {base_expr_sgpr}, v18")
            a(f"ds_read_b64_tr_b16 v[{dst+4*t}:{dst+4*t+1}], v18")
            a(f"ds_read_b64_tr_b16 v[{dst+4*t+2}:{dst+4*t+3}], v18 offset:1024")
    def mfma4_select(A, D):
        for t in range(4):
            a(f"v_mfma_f32_16x16x32_bf16 v[{D+4*t}:{D+4*t+3}], v[{A+4*t}:{A+4*t+3}], v[40:43], 0")
        for r in range(4):
            a(f"v_cndmask_b32 v{44+r}, v{D+r}, v{D+4+r}, s[56:57]")
        for r in range(4):
            a(f"v_cndmask_b32 v{D+r}, v{D+8+r}, v{D+12+r}, s[56:57]")
        for r in range(4):
            a(f"v_cndmask_b32 v{44+r}, v{44+r}, v{D+r}, s[62:63]")
    a("s_mov_b32 s56, 0xaaaaaaaa"); a("s_mov_b32 s57, 0xaaaaaaaa")

    a("s_cmp_eq_u32 s3, 1"); a.branch("s_cbranch_scc1 L_aux1")
    a("s_cmp_eq_u32 s3, 2"); a.branch("s_cbranch_scc1 L_aux2")
    a("s_cmp_eq_u32 s3, 3"); a.branch("s_cbranch_scc1 L_aux3")
    lds_wait(C_CLKQ, 1, 0x310)
    a("v_lshlrev_b32 v18, 5, v0")
    a("s_lshl_b32 s9, s4, 2"); a("s_add_u32 s9, s9, s6"); a("s_lshl_b32 s9, s9, 13"); a(f"s_add_u32 s9, s9, {QBUF}")
    loads = []
    for rb in range(4):
        for hf in range(2):
            loads.append((rb, hf))
    a(f"s_add_u32 s10, s9, 4096")
    ld = [f"buffer_load_dwordx4 v[{64+8*rb+4*hf}:{67+8*rb+4*hf}], v18, s[52:55], {'s9' if rb < 2 else 's10'} offen offset:{(rb&1)*2048+16*hf} sc1" for rb, hf in loads]
    poll(ld, list(range(64, 96)), 14, 41, 0x311)
    for k in range(8):
        a(f"v_add_f32 v{64+k}, v{64+k}, v{72+k}"); a(f"v_add_f32 v{80+k}, v{80+k}, v{88+k}")
    for k in range(8): a(f"v_add_f32 v{64+k}, v{64+k}, v{80+k}")
    for k in range(4): a(f"v_cvt_pk_bf16_f32 v{40+k}, v{64+2*k}, v{65+2*k}")
    a("v_lshlrev_b32 v18, 4, v0"); a(f"v_add_u32 v18, {Q_BASE}, v18")
    a("ds_write_b128 v18, v[40:43]")
    a("s_waitcnt lgkmcnt(0)")
    a(f"ds_write_b32 v2, v1 offset:{C_QRDY}")
    stamp(5)
    a.branch("s_branch L_wo")
    a.label("L_aux1")
    a("s_cmp_lt_u32 s2, 224")
    a.branch("s_cbranch_scc0 L_wo")
    lds_wait(C_CLKQ, 1, 0x320)
    a("s_lshr_b32 s12, s2, 2"); a("s_lshl_b32 s9, s12, 12"); a(f"s_add_u32 s9, s9, {HBUF}")
    gather8("s9", 0x321, relu=True)
    prog_wait(1, 0x322)
    a(f"s_mov_b32 s13, {W1_BASE}")
    tile_frags("s13", 0, 64, 8)
    a("s_waitcnt lgkmcnt(0)")
    a("v_lshlrev_b32 v19, 6, v6"); a("v_lshl_add_u32 v19, v7, 1, v19"); a("v_lshrrev_b32 v20, 1, v5"); a("v_add_u32 v19, v19, v20")
    a("v_lshlrev_b32 v19, 11, v19"); a("v_and_b32 v20, 1, v5"); a("v_lshl_add_u32 v19, v20, 4, v19")
    a("s_and_b32 s9, s2, 3"); a("s_lshl_b32 s9, s9, 15"); a("s_lshl_b32 s10, s12, 5"); a("s_add_u32 s9, s9, s10"); a(f"s_add_u32 s9, s9, {YBUF}")
    a("s_mov_b32 s62, 0xcccccccc"); a("s_mov_b32 s63, 0xcccccccc")
    for t in range(2):
        mfma4_select(64 + 16 * t, 96)
        tag4([44, 45, 46, 47], 14)
        if t == 1: a("s_add_u32 s9, s9, 0x4000")
        a("buffer_store_dwordx4 v[44:47], v19, s[52:55], s9 offen sc1")
    a(f"ds_write_b32 v2, v1 offset:{C_Y}")
    stamp(5)
    a.branch("s_branch L_wo")
    a.label("L_aux2")
    lds_wait(C_P, 8, 0x330)
    a(f"v_mov_b32 v18, {MX_BASE}")
    for h in range(4):
        a(f"ds_read_b128 v[{64+8*h}:{67+8*h}], v18 offset:{32*h}")
        a(f"ds_read_b128 v[{68+8*h}:{71+8*h}], v18 offset:{32*h+16}")
        a(f"ds_read_b128 v[{96+8*h}:{99+8*h}], v18 offset:{128+32*h}")
        a(f"ds_read_b128 v[{100+8*h}:{103+8*h}], v18 offset:{128+32*h+16}")
    a("s_waitcnt lgkmcnt(0)")
    for h in range(4):
        B = 64 + 8 * h
        a(f"v_max3_f32 v{44+h}, v{B}, v{B+1}, v{B+2}"); a(f"v_max3_f32 v{44+h}, v{44+h}, v{B+3}, v{B+4}")
        a(f"v_max3_f32 v{44+h}, v{44+h}, v{B+5}, v{B+6}"); a(f"v_max_f32 v{44+h}, v{44+h}, v{B+7}")
        B = 96 + 8 * h
        a(f"v_add_f32 v{48+h}, v{B}, v{B+1}")
        for k in range(2, 8): a(f"v_add_f32 v{48+h}, v{48+h}, v{B+k}")
    for h in range(4): a(f"v_cndmask_b32 v{52+h}, v{44+h}, v{48+h}, s[56:57]")
    tag4([52, 53, 54, 55], 14)
    a("s_lshl_b32 s9, s4, 2"); a("s_add_u32 s9, s9, s6"); a("s_lshl_b32 s9, s9, 8"); a(f"s_add_u32 s9, s9, {MLBUF}")
    a("s_lshl_b32 s10, s7, 5"); a("s_add_u32 s10, s10, s9")
    a("v_lshlrev_b32 v18, 4, v0")
    a("s_mov_b64 exec, 3")
    a("buffer_store_dwordx4 v[52:55], v18, s[52:55], s10 offen sc1")
    a("s_mov_b64 exec, -1")
    a("v_lshlrev_b32 v18, 4, v4")
    poll([f"buffer_load_dwordx4 v[64:67], v18, s[52:55], s9 offen sc1"], [64, 65, 66, 67], 14, 41, 0x331)
    for h in range(4):
        a(f"v_mov_b32_dpp v{68+h}, v{64+h} {DPP['x1']} row_mask:0xf bank_mask:0xf")
    for h in range(4):
        a(f"v_cndmask_b32 v{72+h}, v{64+h}, v{68+h}, s[56:57]")
        a(f"v_cndmask_b32 v{76+h}, v{68+h}, v{64+h}, s[56:57]")
    for h in range(4): a(f"v_mov_b32 v{80+h}, v{72+h}")
    for kind in ("x2", "r4", "r8"):
        for h in range(4): dpp_op("v_max_f32", 80 + h, kind)
    for h in range(4): a(f"v_sub_f32 v{72+h}, v{72+h}, v{80+h}")
    for h in range(4): a(f"v_mul_f32 v{72+h}, {hex(LOG2E)}, v{72+h}")
    for h in range(4): a(f"v_exp_f32 v{72+h}, v{72+h}")
    for h in range(4): a(f"v_mul_f32 v{72+h}, v{72+h}, v{76+h}")
    for kind in ("x2", "r4", "r8"):
        for h in range(4): dpp_op("v_add_f32", 72 + h, kind)
    for h in range(4): a(f"v_sub_f32 v{44+h}, v{44+h}, v{80+h}")
    for h in range(4): a(f"v_mul_f32 v{44+h}, {hex(LOG2E)}, v{44+h}")
    for h in range(4): a(f"v_exp_f32 v{44+h}, v{44+h}")
    for h in range(4): a(f"v_rcp_f32 v{72+h}, v{72+h}")
    for h in range(4): a(f"v_mul_f32 v{44+h}, v{44+h}, v{72+h}")
    a(f"v_mov_b32 v18, {SC_BASE}")
    a("ds_write_b128 v18, v[44:47]")
    a("s_waitcnt lgkmcnt(0)")
    a(f"ds_write_b32 v2, v1 offset:{C_SC}")
    stamp(5)
    a.branch("s_branch L_wo")
    a.label("L_aux3")
    Ly = a.new("Ly")
    a("s_cmp_lt_u32 s2, 224")
    a.branch(f"s_cbranch_scc0 {Ly}")
    lds_wait(C_Y, 1, 0x340)
    a.label(Ly)
    prog_wait(2, 0x341)
    a("v_lshlrev_b32 v18, 4, v0")
    a("s_lshl_b32 s9, s2, 11"); a(f"s_add_u32 s9, s9, {YBUF}")
    a("v_lshrrev_b32 v20, 1, v5"); a("v_and_b32 v21, 1, v5"); a("v_lshl_add_u32 v20, v21, 1, v20")
    a("v_and_b32 v21, 1, v0"); a("v_lshl_add_u32 v20, v21, 2, v20")
    a("s_lshl_b32 s10, s2, 3")
    a("v_add_u32 v20, s10, v20"); a("v_lshlrev_b32 v20, 1, v20")
    a("buffer_load_ushort v21, v20, s[40:43], 0 offen")
    def pre():
        for k in range(4): a(f"v_mov_b32 v{68+k}, v14")
    L, Dn = a.new("Lg"), a.new("Ld")
    a("s_mov_b32 s60, 0")
    a.label(L)
    pre()
    a("buffer_load_dwordx4 v[64:67], v18, s[52:55], s9 offen sc1")
    a("s_mov_b32 exec_hi, 0xffff")
    a("buffer_load_dwordx4 v[68:71], v18, s[52:55], s9 offen offset:1024 sc1")
    a("s_mov_b64 exec, -1")
    a("s_waitcnt vmcnt(0)")
    untag(list(range(64, 72)), 14, 41, True)
    a(f"v_and_b32 v41, {TAGM}, v41")
    a("v_cmp_ne_u32 vcc, 0, v41")
    a("s_cmp_eq_u64 vcc, 0")
    a.branch(f"s_cbranch_scc1 {Dn}")
    a("s_sleep 2")
    a("s_add_u32 s60, s60, 1"); a(f"s_cmp_lt_u32 s60, {cfg.G_LIMIT}")
    a.branch(f"s_cbranch_scc1 {L}")
    fail_to(0x342)
    a.label(Dn)
    for k in range(4): a(f"v_add_f32 v{64+k}, v{64+k}, v{68+k}")
    red8(64, 65, 66, 67)
    bf16r(64, 64)
    a(f"v_mul_f32 v65, {hex(LOG2E ^ 0x80000000)}, v64")
    a("v_exp_f32 v65, v65")
    a("v_add_f32 v65, 1.0, v65")
    a("v_rcp_f32 v65, v65")
    a("v_mul_f32 v65, v64, v65")
    bf16r(22, 65)
    a("v_lshlrev_b32 v21, 16, v21")
    stamp(5)
    a.label("L_wo")
    prog_wait(17, 0x350)
    stamp(6)
    a("s_lshr_b32 s9, s3, 1"); a("s_lshl_b32 s9, s9, 13"); a(f"s_add_u32 s13, s9, {WQ_BASE}")
    a("s_and_b32 s9, s3, 1"); a("s_lshl_b32 s12, s9, 7")
    tile_frags("s13", "s12", 96, 4)
    a("s_lshl_b32 s9, s4, 4"); a("s_lshr_b32 s10, s5, 1"); a("s_add_u32 s15, s9, s10")
    a("s_lshl_b32 s9, s15, 12"); a(f"s_add_u32 s9, s9, {OBUF}")
    a("v_lshlrev_b32 v19, 6, v6"); a("v_lshl_add_u32 v19, v7, 1, v19"); a("v_lshrrev_b32 v18, 1, v5"); a("v_add_u32 v19, v19, v18")
    a("v_lshlrev_b32 v19, 12, v19"); a("v_and_b32 v18, 1, v5"); a("v_lshl_add_u32 v19, v18, 4, v19")
    a("s_and_b32 s10, s5, 1"); a("s_lshl_b32 s10, s10, 5"); a("s_lshl_b32 s11, s3, 3"); a("s_add_u32 s10, s10, s11"); a("s_lshl_b32 s10, s10, 12")
    a("s_lshl_b32 s11, s15, 5"); a("s_add_u32 s10, s10, s11"); a(f"s_add_u32 s14, s10, {SBUF}")
    gather8("s9", 0x351, relu=False)
    stamp(7)
    a("s_mov_b32 s62, 0xcccccccc"); a("s_mov_b32 s63, 0xcccccccc")
    a("s_waitcnt lgkmcnt(0)")
    mfma4_select(96, 64)
    tag4([44, 45, 46, 47], 14)
    a("buffer_store_dwordx4 v[44:47], v19, s[52:55], s14 offen sc1")
    stamp(8)
    Lfin = a.new("Lfin")
    a("s_cmp_eq_u32 s3, 3")
    a.branch(f"s_cbranch_scc1 {Lfin}")
    stamps_out(9)
    a("s_endpgm")
    a.label(Lfin)
    a("v_lshlrev_b32 v18, 4, v0")
    a("s_lshl_b32 s9, s2, 12"); a(f"s_add_u32 s9, s9, {SBUF}")
    ld = [f"buffer_load_dwordx4 v[{64+4*i}:{67+4*i}], v18, s[52:55], s9 offen offset:{1024*i} sc1" for i in range(4)]
    poll(ld, list(range(64, 80)), 14, 41, 0x360)
    stamp(9)
    for k in range(4):
        a(f"v_add_f32 v{64+k}, v{64+k}, v{68+k}"); a(f"v_add_f32 v{72+k}, v{72+k}, v{76+k}")
    for k in range(4): a(f"v_add_f32 v{64+k}, v{64+k}, v{72+k}")
    red8(64, 65, 66, 67)
    bf16r(64, 64)
    a("v_mul_f32 v64, v64, v22"); bf16r(64, 64)
    a("v_add_f32 v64, v21, v64")
    if cfg.TRIP:
        Lt = a.new("Lt")
        a("s_waitcnt lgkmcnt(0)")
        a(f"s_sub_u32 s9, s{64+18}, s64")
        a(f"s_cmp_gt_u32 s9, {cfg.TRIP}")
        a.branch(f"s_cbranch_scc0 {Lt}")
        a("v_cvt_f32_u32 v64, s9")
        a.label(Lt)
    a("v_cvt_pk_bf16_f32 v64, v64, v64")
    srd(44, 32, 33, 4096)
    a("s_mov_b32 s10, 0x00030003")
    a("s_mov_b32 exec_lo, s10"); a("s_mov_b32 exec_hi, s10")
    a("buffer_store_short v64, v20, s[44:47], 0 offen")
    a("s_mov_b64 exec, -1")
    Le = a.new("Le")
    a("s_cmp_eq_u32 s2, 0")
    a.branch(f"s_cbranch_scc0 {Le}")
    a("v_mov_b32 v4, s38"); a("v_mov_b32 v5, 0")
    a("s_mov_b64 exec, 1")
    a("buffer_store_dword v4, v5, s[52:55], 0 offen sc1")
    a("s_mov_b64 exec, -1")
    a.label(Le)
    stamp(10)
    stamps_out(11, {4: 6, 5: 7, 7: 8, 8: 9, 9: 10, 10: 11})
    a("s_endpgm")
    a.label("L_fail")
    a("v_mov_b32 v4, s61"); a("s_lshl_b32 s9, s3, 2"); a("v_mov_b32 v5, s9")
    a("s_mov_b64 exec, 1")
    a("global_store_dword v5, v4, s[34:35]")
    a.label("L_exit", flush=False)
    a("s_endpgm")
    return a

def wrap(a, lds=LDS_SIZE):
    hdr = open(REF).read().split("; Override launch geometry")[0]
    s = hdr
    s += "; Generated by gen/kern.py (hand-written schedule, see comments).\n"
    s += f"; @launch grid=(256,1,1) block=(1024,1,1) lds={lds}\n"
    s += '.amdgcn_target "amdgcn-amd-amdhsa--gfx950"\n.text\n'
    s += f".globl {KNAME}\n.p2align 8\n.type {KNAME},@function\n{KNAME}:\n"
    s += a.text()
    s += '.section .rodata,"a"\n.p2align 6\n'
    s += f".amdhsa_kernel {KNAME}\n"
    s += "  .amdhsa_next_free_vgpr 128\n  .amdhsa_next_free_sgpr 102\n  .amdhsa_accum_offset 128\n"
    s += "  .amdhsa_group_segment_fixed_size 0\n  .amdhsa_kernarg_size 88\n  .amdhsa_user_sgpr_count 2\n"
    s += "  .amdhsa_user_sgpr_kernarg_segment_ptr 1\n  .amdhsa_system_sgpr_workgroup_id_x 1\n"
    s += ".end_amdhsa_kernel\n"
    return s

if __name__ == "__main__":
    out = sys.argv[1] if len(sys.argv) > 1 else "k1.s"
    class C(Cfg): pass
    for kv in sys.argv[2:]:
        k, v = kv.split("=")
        cur = getattr(Cfg, k)
        setattr(C, k, (v == "1") if isinstance(cur, bool) else type(cur)(v) if not isinstance(cur, int) else int(v, 0))
    a = build(C)
    open(out, "w").write(wrap(a))
    print(out, "instructions:", a.ninst)
```

```python
import sys, os
sys.path.insert(0, os.path.dirname(os.path.abspath(__file__)))
from dsl import Asm

KNAME = "recurrent_scan__sliding_block_cached__dense_activation_relu__decode_kernel"
REF = "recurrent_scan__sliding_block_cached__dense_activation_relu__decode.s.ref"

V_BASE = 0
XN_BASE = 0
WQ_BASE = 131072
W1_BASE = 147456
P_BASE = 155648
P_STRIDE = 1088
Q_BASE = 160000
MX_BASE = 161024
LX_BASE = 161152
SC_BASE = 161280
CNT_BASE = 161312
LDS_SIZE = 163840
C_W, C_QS, C_KI, C_CLKQ, C_QRDY, C_M, C_P, C_SC = [4 * i for i in range(8)]
C_PROG = 32
C_Y = 48
QBUF = 0x10000
HBUF = 0x60000
MLBUF = 0xA0000
OBUF = 0xB0000
YBUF = 0x140000
SBUF = 0x200000
WS_USED = 0x300000
DIAG = 0x800000
TAGM = 0x3FF
LOG2E = 0x3fb8aa3b
SCALE = 0x3db504f3
EPS = 0x3727c5ac

class Cfg:
    KW = 4
    VW = 8
    K8_AT = 10
    KI_TARGET = 4
    ROT = "hash"
    STAMP = False
    DBGSTAMP = False
    DBGWG = 100
    TRIP = 0
    LDS_LIMIT = 1 << 20
    G_LIMIT = 1 << 15
    NT = " nt"
    PRIO_AUX = 3
    PRIO_LD = 2
    POLL_SLEEP = 0

def build(cfg=Cfg):
    a = Asm()
    NT = cfg.NT
    stamp_idx = {}
    def stamp(i):
        if cfg.STAMP or cfg.DBGSTAMP or (cfg.TRIP and i in (0, 9)):
            a(f"s_memrealtime s[{64+2*i}:{65+2*i}]")
    def stamps_out(n, dbgmap=None):
        if cfg.DBGSTAMP and dbgmap is not None:
            a("s_waitcnt lgkmcnt(0)")
            a("s_mov_b64 exec, 1")
            a("v_mov_b32 v4, 0")
            a("s_not_b32 s9, s64")
            a("v_mov_b32 v5, s9")
            a("global_atomic_umax v4, v5, s[34:35]")
            a(f"v_mov_b32 v5, s{64+2*10}")
            a("global_atomic_umax v4, v5, s[34:35] offset:4")
            Lq = a.new("Lq")
            a(f"s_cmp_eq_u32 s2, {cfg.DBGWG}")
            a.branch(f"s_cbranch_scc0 {Lq}")
            for i in range(11):
                a(f"v_mov_b32 v5, s{64+2*i}")
                a(f"global_store_dword v4, v5, s[34:35] offset:{4*(2+i)}")
            a.label(Lq)
            a("s_mov_b64 exec, -1")
        if cfg.STAMP:
            a("s_waitcnt lgkmcnt(0)")
            a("s_lshl_b32 s9, s2, 4")
            a("s_add_u32 s9, s9, s3")
            a("s_lshl_b32 s9, s9, 6")
            a(f"s_add_u32 s9, s9, {DIAG}")
            a("s_add_u32 s10, s36, s9"); a("s_addc_u32 s11, s37, 0")
            a("v_mov_b32 v4, 0")
            a("s_mov_b64 exec, 1")
            for i in range(n):
                a(f"v_mov_b32 v5, s{64+2*i}")
                a(f"global_store_dword v4, v5, s[10:11] offset:{4*i}")
            a("s_mov_b64 exec, -1")
    def fail_to(code):
        a(f"s_mov_b32 s61, {code}")
        a.branch("s_branch L_fail")
    def lds_wait(off, target, code, vt="v24", sleep=1, keep=None):
        L, D = a.new("Lw"), a.new("Ld")
        a("s_mov_b32 s60, 0")
        a.label(L)
        a(f"ds_read_b32 {vt}, v2 offset:{off}")
        a("s_waitcnt lgkmcnt(0)")
        a(f"v_readfirstlane_b32 s62, {vt}")
        a(f"s_cmp_ge_u32 s62, {target}")
        a.branch(f"s_cbranch_scc1 {D}")
        if sleep: a(f"s_sleep {sleep}")
        a("s_add_u32 s60, s60, 1")
        a(f"s_cmp_lt_u32 s60, {cfg.LDS_LIMIT}")
        a.branch(f"s_cbranch_scc1 {L}")
        fail_to(code)
        a.label(D)
    def prog_wait(target, code, vt=24, sleep=1):
        L, D = a.new("Lp"), a.new("Ld")
        a("s_mov_b32 s60, 0")
        a.label(L)
        a(f"ds_read_b128 v[{vt}:{vt+3}], v2 offset:{C_PROG}")
        a("s_waitcnt lgkmcnt(0)")
        a(f"v_min_u32 v{vt}, v{vt}, v{vt+1}")
        a(f"v_min3_u32 v{vt}, v{vt}, v{vt+2}, v{vt+3}")
        a(f"v_readfirstlane_b32 s62, v{vt}")
        a(f"s_cmp_ge_u32 s62, {target}")
        a.branch(f"s_cbranch_scc1 {D}")
        if sleep: a(f"s_sleep {sleep}")
        a("s_add_u32 s60, s60, 1")
        a(f"s_cmp_lt_u32 s60, {cfg.LDS_LIMIT}")
        a.branch(f"s_cbranch_scc1 {L}")
        fail_to(code)
        a.label(D)
    def lds_add1(off, vone):
        a("s_mov_b64 exec, 1")
        a(f"ds_add_u32 v2, {vone} offset:{off}")
        a("s_mov_b64 exec, -1")
    def srd(dst, lo, hi, size, add=None):
        if add is None:
            a(f"s_mov_b32 s{dst}, s{lo}"); a(f"s_mov_b32 s{dst+1}, s{hi}")
        else:
            a(f"s_add_u32 s{dst}, s{lo}, {add}"); a(f"s_addc_u32 s{dst+1}, s{hi}, 0")
        a(f"s_mov_b32 s{dst+2}, {size}")
        a(f"s_mov_b32 s{dst+3}, 0x20000")
    def tag4(regs, vtag):
        for r in regs: a(f"v_add_u32 v{r}, 0x200, v{r}")
        for r in regs: a(f"v_and_or_b32 v{r}, v{r}, s58, v{vtag}")
    def untag(regs, vtag, acc, first):
        for r in regs: a(f"v_xor_b32 v{r}, v{vtag}, v{r}")
        it = list(regs)
        if first:
            a(f"v_or3_b32 v{acc}, v{it[0]}, v{it[1]}, v{it[2]}"); it = it[3:]
        while len(it) >= 2:
            a(f"v_or3_b32 v{acc}, v{it[0]}, v{it[1]}, v{acc}"); it = it[2:]
        if it: a(f"v_or_b32 v{acc}, v{it[0]}, v{acc}")
    def poll(loads, regs, vtag, acc, code, pre=None):
        L, D = a.new("Lg"), a.new("Ld")
        a("s_mov_b32 s60, 0")
        a.label(L)
        if pre: pre()
        for l in loads: a(l)
        if pre: a("s_mov_b64 exec, -1")
        a("s_waitcnt vmcnt(0)")
        untag(regs, vtag, acc, True)
        a(f"v_and_b32 v{acc}, {TAGM}, v{acc}")
        a(f"v_cmp_ne_u32 vcc, 0, v{acc}")
        a("s_cmp_eq_u64 vcc, 0")
        a.branch(f"s_cbranch_scc1 {D}")
        if cfg.POLL_SLEEP: a(f"s_sleep {cfg.POLL_SLEEP}")
        a("s_add_u32 s60, s60, 1")
        a(f"s_cmp_lt_u32 s60, {cfg.G_LIMIT}")
        a.branch(f"s_cbranch_scc1 {L}")
        fail_to(code)
        a.label(D)
    def bf16r(dst, src, tmp=None):
        a(f"v_cvt_pk_bf16_f32 v{dst}, v{src}, v{src}")
        a(f"v_lshlrev_b32 v{dst}, 16, v{dst}")
    DPP = {"x1": "quad_perm:[1,0,3,2]", "x2": "quad_perm:[2,3,0,1]", "r4": "row_ror:4", "r8": "row_ror:8"}
    def dpp_op(op, reg, kind):
        a(f"{op}_dpp v{reg}, v{reg}, v{reg} {DPP[kind]} row_mask:0xf bank_mask:0xf")
    def allred_g(op, reg, tmp):
        for sw in ("v_permlane16_swap_b32", "v_permlane32_swap_b32"):
            a(f"v_mov_b32 v{tmp}, v{reg}")
            a(f"{sw} v{reg}, v{tmp}")
            a(f"{op} v{reg}, v{reg}, v{tmp}")
    def red8(r0, r1, r2, r3):
        a(f"v_permlane32_swap_b32 v{r0}, v{r1}")
        a(f"v_permlane32_swap_b32 v{r2}, v{r3}")
        a(f"v_add_f32 v{r0}, v{r0}, v{r1}")
        a(f"v_add_f32 v{r2}, v{r2}, v{r3}")
        a(f"v_permlane16_swap_b32 v{r0}, v{r2}")
        a(f"v_add_f32 v{r0}, v{r0}, v{r2}")
        for k in ("x2", "r4", "r8"): dpp_op("v_add_f32", r0, k)

    a("s_cmp_ge_u32 s2, 256")
    a.branch("s_cbranch_scc1 L_exit", flush=False)
    a("s_load_dwordx16 s[16:31], s[0:1], 0")
    a("s_load_dwordx4 s[32:35], s[0:1], 64")
    a("s_load_dwordx2 s[36:37], s[0:1], 80")
    stamp(0)
    a("v_lshrrev_b32 v1, 6, v0")
    a("v_and_b32 v0, 63, v0")
    a("v_readfirstlane_b32 s3, v1")
    a("s_and_b32 s4, s2, 7")
    a("s_lshr_b32 s5, s2, 3")
    a("s_lshr_b32 s6, s5, 3")
    a("s_and_b32 s7, s5, 7")
    if cfg.ROT == "hash":
        a("s_mul_i32 s8, s2, 0x9E3779B1")
        a("s_lshr_b32 s8, s8, 26")
    else:
        a("s_mov_b32 s8, 0")
    a(f"v_mov_b32 v2, {CNT_BASE}")
    a("v_mov_b32 v1, 1")
    a(f"s_mov_b32 s58, {(~TAGM) & 0xffffffff}")
    a("s_waitcnt lgkmcnt(0)")
    a("s_load_dword s38, s[36:37], 0")
    srd(52, 36, 37, WS_USED)
    a("s_cmp_lt_u32 s3, 4")
    a.branch("s_cbranch_scc1 L_aux")
    a("s_cmp_lt_u32 s3, 8")
    a.branch("s_cbranch_scc1 L_loader")

    def epoch_barrier():
        a("s_waitcnt lgkmcnt(0)")
        a("s_add_u32 s38, s38, 1")
        a(f"s_and_b32 s39, s38, {TAGM}")
        a("s_barrier")

    a("s_sub_u32 s12, s3, 8")
    a("s_lshl_b32 s9, s6, 3"); a("s_add_u32 s9, s9, s4"); a("s_lshl_b32 s9, s9, 22")
    a("s_lshl_b32 s10, s7, 17"); a("s_add_u32 s9, s9, s10"); a(f"s_add_u32 s9, s9, {12288*256}")
    srd(40, 18, 19, 131072, add="s9")
    a("v_and_b32 v4, 15, v0")
    a("v_lshrrev_b32 v5, 4, v0")
    a("v_lshrrev_b32 v6, 1, v4")
    a("v_lshlrev_b32 v6, 8, v6")
    a("v_and_b32 v7, 1, v4")
    a("v_lshl_add_u32 v6, v7, 6, v6")
    a("v_lshl_add_u32 v3, v5, 4, v6")
    a("s_lshl_b32 s13, s12, 3"); a("s_add_u32 s13, s13, s8")
    KREG = 64
    for i in range(16):
        m, s = i >> 1, i & 1
        if i == cfg.KW:
            epoch_barrier()
        if i >= cfg.KW:
            a(f"s_waitcnt vmcnt({cfg.KW-1})")
        if i == cfg.K8_AT:
            Lx = a.new("Lk")
            a("s_cmp_eq_u32 s12, 0")
            a.branch(f"s_cbranch_scc0 {Lx}")
            a(f"ds_write_b32 v2, v1 offset:{C_CLKQ}")
            a.label(Lx)
        if s == 0:
            a(f"s_add_u32 s10, s13, {m}")
            a("s_and_b32 s10, s10, 63")
            a("s_lshl_b32 s10, s10, 11")
        a(f"buffer_load_dwordx4 v[{KREG+4*i}:{KREG+4*i+3}], v3, s[40:43], s10 offen offset:{s*128}{NT}")
    lds_add1(C_KI, "v1")
    stamp(1)
    a("v_lshrrev_b32 v6, 1, v4"); a("v_and_b32 v6, 3, v6")
    a("v_lshlrev_b32 v8, 8, v6")
    a("v_lshl_add_u32 v8, v7, 6, v8")
    a("v_lshl_add_u32 v8, v5, 4, v8")
    a(f"v_add_u32 v8, {Q_BASE}, v8")
    a("s_mov_b32 s56, 0xaaaaaaaa"); a("s_mov_b32 s57, 0xaaaaaaaa")
    lds_wait(C_QRDY, 1, 0x101, vt="v24")
    a("ds_read_b128 v[12:15], v8 offset:128")
    a("ds_read_b128 v[8:11], v8")
    stamp(2)
    a("s_waitcnt lgkmcnt(0)")
    for m in range(8):
        a(f"s_waitcnt vmcnt({14-2*m})")
        D = 32 + 4 * m
        a(f"v_mfma_f32_16x16x32_bf16 v[{D}:{D+3}], v[{KREG+8*m}:{KREG+8*m+3}], v[8:11], 0")
        a(f"v_mfma_f32_16x16x32_bf16 v[{D}:{D+3}], v[{KREG+8*m+4}:{KREG+8*m+7}], v[12:15], v[{D}:{D+3}]")
    stamp(3)
    for m in range(8):
        D = 32 + 4 * m
        a(f"v_add_f32_dpp v24, v{D+1}, v{D} {DPP['x1']} row_mask:0xf bank_mask:0xf")
        a(f"v_add_f32_dpp v25, v{D+2}, v{D+3} {DPP['x1']} row_mask:0xf bank_mask:0xf")
        a(f"v_cndmask_b32 v{16+m}, v24, v25, s[56:57]")
    for m in range(0, 8, 2):
        x, y = 16 + m, 17 + m
        a(f"v_cvt_pk_bf16_f32 v24, v{x}, v{y}")
        a(f"v_lshlrev_b32 v{x}, 16, v24")
        a(f"v_and_b32 v{y}, 0xffff0000, v24")
        a(f"v_mul_f32 v{x}, {hex(SCALE)}, v{x}")
        a(f"v_mul_f32 v{y}, {hex(SCALE)}, v{y}")
        a(f"v_cvt_pk_bf16_f32 v24, v{x}, v{y}")
        a(f"v_lshlrev_b32 v{x}, 16, v24")
        a(f"v_and_b32 v{y}, 0xffff0000, v24")
    a("v_max3_f32 v24, v16, v17, v18"); a("v_max3_f32 v24, v24, v19, v20"); a("v_max3_f32 v24, v24, v21, v22"); a("v_max_f32 v24, v24, v23")
    dpp_op("v_max_f32", 24, "x1")
    allred_g("v_max_f32", 24, 25)
    a("v_lshlrev_b32 v26, 5, v6")
    a("s_lshl_b32 s9, s12, 2")
    a(f"s_add_u32 s9, s9, {MX_BASE}")
    a("v_add_u32 v27, s9, v26")
    a("ds_write_b32 v27, v24")
    a("s_waitcnt lgkmcnt(0)")
    lds_add1(C_M, "v1")
    lds_wait(C_M, 8, 0x102, vt="v25", sleep=0)
    a(f"v_add_u32 v28, {MX_BASE}, v26")
    a("ds_read_b128 v[32:35], v28")
    a("ds_read_b128 v[36:39], v28 offset:16")
    a("s_waitcnt lgkmcnt(0)")
    a("v_max3_f32 v24, v32, v33, v34"); a("v_max3_f32 v24, v24, v35, v36"); a("v_max3_f32 v24, v24, v37, v38"); a("v_max_f32 v24, v24, v39")
    for m in range(8):
        a(f"v_sub_f32 v{16+m}, v{16+m}, v24")
    for m in range(8):
        a(f"v_mul_f32 v{16+m}, {hex(LOG2E)}, v{16+m}")
    for m in range(8):
        a(f"v_exp_f32 v{16+m}, v{16+m}")
    a(f"v_mul_u32_u24 v29, {P_STRIDE}, v6")
    a("v_lshl_add_u32 v29, v5, 2, v29")
    a("v_lshl_add_u32 v29, v7, 1, v29")
    a("s_lshl_b32 s9, s12, 7"); a(f"s_add_u32 s9, s9, {P_BASE}")
    a("v_add_u32 v29, s9, v29")
    for m in range(8):
        a(f"v_cvt_pk_bf16_f32 v{32+m}, v{16+m}, v{16+m}")
        a(f"ds_write_b16 v29, v{32+m} offset:{16*m}")
    a("v_add_f32 v24, v16, v17"); a("v_add_f32 v25, v18, v19"); a("v_add_f32 v30, v20, v21"); a("v_add_f32 v31, v22, v23")
    a("v_add_f32 v24, v24, v25"); a("v_add_f32 v30, v30, v31"); a("v_add_f32 v24, v24, v30")
    dpp_op("v_add_f32", 24, "x1")
    allred_g("v_add_f32", 24, 25)
    a(f"v_add_u32 v27, {LX_BASE-MX_BASE}, v27")
    a("ds_write_b32 v27, v24")
    a("s_waitcnt lgkmcnt(0)")
    lds_add1(C_P, "v1")
    stamp(4)
    lds_wait(C_P, 8, 0x103, vt="v25", sleep=0)
    a("v_and_b32 v6, 3, v4")
    a(f"v_mul_u32_u24 v29, {P_STRIDE}, v6")
    a("v_lshl_add_u32 v29, v5, 4, v29")
    a(f"v_add_u32 v29, {P_BASE}, v29")
    for ks in range(16):
        a(f"ds_read_b128 v[{64+4*ks}:{64+4*ks+3}], v29 offset:{64*ks}")
    a("v_lshrrev_b32 v8, 2, v4")
    a("v_and_b32 v9, 3, v4")
    a("v_and_b32 v10, 1, v5")
    a("v_lshl_add_u32 v10, v10, 2, v8")
    a("v_xor_b32 v10, s12, v10")
    a("v_lshl_add_u32 v11, v5, 3, v8")
    a("v_lshlrev_b32 v11, 8, v11")
    a("v_lshl_add_u32 v11, v10, 5, v11")
    a("v_lshl_add_u32 v11, v9, 3, v11")
    a("v_add_u32 v12, 0x10000, v11")
    a("v_lshlrev_b32 v13, 14, v6")
    a("v_lshl_add_u32 v13, v5, 4, v13")
    a("s_lshl_b32 s9, s4, 4"); a("s_lshr_b32 s10, s12, 1"); a("s_add_u32 s9, s9, s10"); a("s_lshl_b32 s9, s9, 12")
    a("s_lshl_b32 s10, s5, 7"); a("s_add_u32 s9, s9, s10")
    a("s_and_b32 s10, s12, 1"); a("s_lshl_b32 s10, s10, 6"); a("s_add_u32 s9, s9, s10")
    a(f"s_add_u32 s14, s9, {OBUF}")
    a("v_mov_b32 v14, s39")
    a("s_mov_b32 s63, 0")
    a("s_waitcnt lgkmcnt(0)")
    stamp(5)
    for ks in range(16):
        Lok = a.new("Lok")
        if ks == 15:
            lds_wait(C_SC, 1, 0x104, vt="v24")
            a(f"v_lshlrev_b32 v24, 2, v6")
            a(f"v_add_u32 v24, {SC_BASE}, v24")
            a("ds_read_b32 v15, v24")
        a(f"s_cmp_ge_u32 s63, {ks+1}")
        a.branch(f"s_cbranch_scc1 {Lok}", flush=False)
        prog_wait(ks + 1, 0x105, vt=24, sleep=(1 if ks < 13 else 0))
        a("s_mov_b32 s63, s62")
        a.label(Lok, flush=False)
        ad = "v11" if ks < 8 else "v12"
        off = (ks & 7) * 8192
        A = 32 + 4 * (ks & 3)
        a(f"ds_read_b64_tr_b16 v[{A}:{A+1}], {ad} offset:{off}")
        a(f"ds_read_b64_tr_b16 v[{A+2}:{A+3}], {ad} offset:{off+1024}")
        a("s_waitcnt lgkmcnt(0)")
        a(f"v_mfma_f32_16x16x32_bf16 v[48:51], v[{A}:{A+3}], v[{64+4*ks}:{64+4*ks+3}], " + ("0" if ks == 0 else "v[48:51]"))
    stamp(6)
    for r in range(4): a(f"v_mul_f32 v{48+r}, v15, v{48+r}")
    tag4([48, 49, 50, 51], 14)
    a("s_mov_b32 s10, 0x000f000f")
    a("s_mov_b32 exec_lo, s10"); a("s_mov_b32 exec_hi, s10")
    a("buffer_store_dwordx4 v[48:51], v13, s[52:55], s14 offen sc1")
    a("s_mov_b64 exec, -1")
    stamp(7)
    stamps_out(8)
    a("s_endpgm")

    a.label("L_loader")
    if cfg.PRIO_LD: a(f"s_setprio {cfg.PRIO_LD}")
    a("s_sub_u32 s12, s3, 4")
    a("s_lshl_b32 s9, s6, 3"); a("s_add_u32 s9, s9, s4"); a("s_lshl_b32 s9, s9, 22")
    a("s_lshl_b32 s10, s7, 17"); a("s_add_u32 s9, s9, s10"); a(f"s_add_u32 s9, s9, {12288*256}")
    srd(40, 20, 21, 131072, add="s9")
    srd(44, 24, 25, 4096 * 1024)
    srd(48, 30, 31, 1792 * 1024)
    a("s_cmp_lt_u32 s2, 224")
    a("s_cselect_b32 s50, s50, 0")
    a("v_lshrrev_b32 v5, 4, v0")
    a("s_and_b32 s9, s12, 1"); a("s_lshl_b32 s9, s9, 2")
    a("v_or_b32 v6, s9, v5")
    a("v_lshlrev_b32 v6, 1, v6")
    a("v_and_b32 v7, 15, v0")
    a("v_xor_b32 v6, v6, v7")
    a("v_lshlrev_b32 v6, 4, v6")
    a("v_lshl_add_u32 v8, v5, 8, v6")
    a("v_lshl_add_u32 v9, v5, 10, v6")
    a("s_lshl_b32 s9, s12, 2")
    a(f"s_add_u32 s9, s9, {C_PROG}")
    a("v_add_u32 v10, s9, v2")
    epoch_barrier()
    lds_wait(C_KI, cfg.KI_TARGET, 0x201)
    lds_wait(C_QS, 4, 0x202)
    stamp(1)
    a("s_lshr_b32 s9, s2, 2"); a("s_lshl_b32 s9, s9, 5"); a("s_lshl_b32 s10, s12, 3"); a("s_add_u32 s9, s9, s10")
    a("s_lshl_b32 s9, s9, 10"); a("s_and_b32 s10, s2, 3"); a("s_lshl_b32 s10, s10, 8"); a("s_add_u32 s9, s9, s10")
    a("s_lshl_b32 s11, s12, 11")
    for i in range(2):
        a(f"s_add_u32 s13, s11, {W1_BASE + 1024*i}")
        a("s_mov_b32 m0, s13")
        a(f"s_add_u32 s10, s9, {4096*i}")
        a(f"buffer_load_dwordx4 v9, s[48:51], s10 offen{NT} lds")
    a("s_add_u32 s14, s8, s12")
    NP = cfg.VW // 2
    for ks in range(16):
        if ks + 1 >= NP:
            a(f"s_waitcnt vmcnt({cfg.VW-2})")
            done = ks + 1 - NP
            done = ks - (NP - 1)
            if done >= 1:
                a(f"v_mov_b32 v11, {done}")
                a("ds_write_b32 v10, v11")
        a(f"s_add_u32 s10, s14, {4*ks}")
        a("s_and_b32 s10, s10, 63")
        a("s_lshl_b32 s10, s10, 11")
        a(f"s_add_u32 s13, s11, {V_BASE + 8192*ks}")
        a("s_mov_b32 m0, s13")
        a("s_nop 0")
        a(f"buffer_load_dwordx4 v8, s[40:43], s10 offen{NT} lds")
        a(f"buffer_load_dwordx4 v8, s[40:43], s10 offen offset:1024{NT} lds")
    stamp(2)
    a("s_lshl_b32 s9, s4, 9"); a("s_lshr_b32 s10, s5, 1"); a("s_lshl_b32 s10, s10, 5"); a("s_add_u32 s9, s9, s10")
    a("s_lshl_b32 s10, s12, 3"); a("s_add_u32 s9, s9, s10"); a("s_lshl_b32 s9, s9, 10")
    a("s_and_b32 s10, s5, 1"); a("s_lshl_b32 s10, s10, 9"); a("s_add_u32 s9, s9, s10")
    for h2 in range(2):
        for i in range(2):
            a(f"s_add_u32 s13, s11, {WQ_BASE + 8192*h2 + 1024*i}")
            a("s_mov_b32 m0, s13")
            a(f"s_add_u32 s10, s9, {256*h2 + 4096*i}")
            a(f"buffer_load_dwordx4 v9, s[44:47], s10 offen{NT} lds")
    for k in range(NP - 1, -1, -1):
        a(f"s_waitcnt vmcnt({4 + 2*k})")
        a(f"v_mov_b32 v11, {16 - k}")
        a("ds_write_b32 v10, v11")
        if k == 0: stamp(3)
    a("s_waitcnt vmcnt(0)")
    a("v_mov_b32 v11, 17")
    a("ds_write_b32 v10, v11")
    stamp(4)
    stamps_out(5)
    a("s_waitcnt lgkmcnt(0)")
    a("s_endpgm")

    a.label("L_aux")
    if cfg.PRIO_AUX: a(f"s_setprio {cfg.PRIO_AUX}")
    srd(40, 16, 17, 4096)
    srd(44, 22, 23, 512 * 8192)
    srd(48, 28, 29, 512 * 3584)
    a("s_cmp_lt_u32 s2, 224")
    a("s_cselect_b32 s50, s50, 0")
    a("v_and_b32 v4, 15, v0")
    a("v_lshrrev_b32 v5, 4, v0")
    a("v_lshrrev_b32 v6, 2, v4")
    a("v_and_b32 v7, 3, v4")
    a("v_lshl_add_u32 v8, v7, 2, v5")
    a("v_lshlrev_b32 v8, 6, v8")
    a("v_lshl_add_u32 v8, v6, 10, v8")
    for i in range(4):
        a(f"buffer_load_dwordx4 v[{16+4*i}:{19+4*i}], v8, s[40:43], 0 offen offset:{16*i}")
    a("v_lshlrev_b32 v9, 4, v5")
    a("v_lshl_add_u32 v9, v6, 10, v9")
    a("s_lshr_b32 s12, s5, 3")
    a("s_and_b32 s13, s5, 7")
    a("s_and_b32 s14, s2, 7")
    a("s_lshr_b32 s15, s2, 3")
    a("s_lshl_b32 s9, s12, 8"); a("s_lshl_b32 s10, s3, 6"); a("s_add_u32 s9, s9, s10")
    a("buffer_load_dwordx4 v[32:35], v9, s[40:43], s9 offen")
    a("s_lshl_b32 s9, s14, 7"); a("s_and_b32 s10, s3, 1"); a("s_lshl_b32 s10, s10, 6"); a("s_add_u32 s9, s9, s10")
    a("buffer_load_dwordx4 v[36:39], v9, s[40:43], s9 offen")
    a("v_lshrrev_b32 v10, 3, v0"); a("v_and_b32 v11, 7, v0"); a("v_lshlrev_b32 v11, 4, v11")
    a("v_lshl_add_u32 v12, v10, 13, v11")
    a("v_mul_u32_u24 v13, 3584, v10"); a("v_add_u32 v13, v13, v11")
    a("s_lshl_b32 s9, s12, 7"); a("s_lshl_b32 s10, s3, 5"); a("s_add_u32 s9, s9, s10"); a("s_lshl_b32 s9, s9, 13")
    a("s_lshl_b32 s10, s4, 10"); a("s_add_u32 s9, s9, s10"); a("s_lshl_b32 s10, s13, 7"); a("s_add_u32 s9, s9, s10")
    a("s_lshl_b32 s11, s3, 12")
    for i in range(4):
        a(f"s_add_u32 s10, s11, {WQ_BASE + 1024*i}")
        a("s_mov_b32 m0, s10")
        a(f"s_add_u32 s10, s9, {8*8192*i}")
        a(f"buffer_load_dwordx4 v12, s[44:47], s10 offen{NT} lds")
    a("s_lshl_b32 s9, s14, 6"); a("s_lshl_b32 s10, s3, 4"); a("s_add_u32 s9, s9, s10"); a("s_mul_i32 s9, s9, 3584")
    a("s_lshl_b32 s10, s15, 7"); a("s_add_u32 s9, s9, s10")
    a("s_lshl_b32 s11, s3, 11")
    for i in range(2):
        a(f"s_add_u32 s10, s11, {W1_BASE + 1024*i}")
        a("s_mov_b32 m0, s10")
        a(f"s_add_u32 s10, s9, {8*3584*i}")
        a(f"buffer_load_dwordx4 v13, s[48:51], s10 offen{NT} lds")
    Lc = a.new("Lc")
    a("s_cmp_eq_u32 s3, 0")
    a.branch(f"s_cbranch_scc0 {Lc}")
    a("v_lshl_add_u32 v14, v0, 2, v2")
    a("v_mov_b32 v15, 0")
    a("ds_write_b32 v14, v15")
    a.label(Lc)
    epoch_barrier()
    a("v_mov_b32 v14, s39")
    stamp(1)
    a("s_waitcnt vmcnt(6)")
    acc = None
    for i in range(16):
        a(f"v_lshlrev_b32 v{64+2*i}, 16, v{16+i}")
        a(f"v_and_b32 v{65+2*i}, 0xffff0000, v{16+i}")
    a("v_add_f32 v40, v64, v65"); a("v_add_f32 v41, v66, v67"); a("v_add_f32 v42, v68, v69"); a("v_add_f32 v43, v70, v71")
    for i in range(8, 32, 4):
        for k in range(4): a(f"v_add_f32 v{40+k}, v{40+k}, v{64+i+k}")
    a("v_add_f32 v40, v40, v41"); a("v_add_f32 v42, v42, v43"); a("v_add_f32 v40, v40, v42")
    dpp_op("v_add_f32", 40, "x1"); dpp_op("v_add_f32", 40, "x2"); allred_g("v_add_f32", 40, 41)
    a("v_mul_f32 v40, 0x3b000000, v40")
    for i in range(32): a(f"v_sub_f32 v{64+i}, v{64+i}, v40")
    for k in range(4): a(f"v_mul_f32 v{42+k}, v{64+k}, v{64+k}")
    for i in range(4, 32, 4):
        for k in range(4): a(f"v_fmac_f32 v{42+k}, v{64+i+k}, v{64+i+k}")
    a("v_add_f32 v42, v42, v43"); a("v_add_f32 v44, v44, v45"); a("v_add_f32 v42, v42, v44")
    dpp_op("v_add_f32", 42, "x1"); dpp_op("v_add_f32", 42, "x2"); allred_g("v_add_f32", 42, 41)
    a("v_mul_f32 v42, 0x3b000000, v42")
    bf16r(40, 40)
    bf16r(42, 42)
    a(f"v_add_f32 v42, {hex(EPS)}, v42"); bf16r(42, 42)
    a("v_sqrt_f32 v42, v42"); bf16r(42, 42)
    a("v_rcp_f32 v42, v42")
    for d in range(32, 40):
        a(f"v_lshlrev_b32 v44, 16, v{d}")
        a(f"v_and_b32 v45, 0xffff0000, v{d}")
        a("v_sub_f32 v44, v44, v40"); a("v_sub_f32 v45, v45, v40")
        a("v_cvt_pk_bf16_f32 v46, v44, v45")
        a("v_lshlrev_b32 v44, 16, v46"); a("v_and_b32 v45, 0xffff0000, v46")
        a("v_mul_f32 v44, v44, v42"); a("v_mul_f32 v45, v45, v42")
        a(f"v_cvt_pk_bf16_f32 v{d}, v44, v45")
    a("v_lshlrev_b32 v15, 4, v0")
    a("s_lshl_b32 s9, s3, 10")
    a(f"s_add_u32 s9, s9, {XN_BASE}")
    a("v_add_u32 v44, s9, v15")
    a("ds_write_b128 v44, v[32:35]")
    a("s_and_b32 s9, s3, 1"); a("s_lshl_b32 s9, s9, 10"); a(f"s_add_u32 s9, s9, {XN_BASE + 4096}")
    a("v_add_u32 v44, s9, v15")
    a("ds_write_b128 v44, v[36:39]")
    stamp(2)
    a("s_waitcnt vmcnt(0) lgkmcnt(0)")
    lds_add1(C_W, "v1")
    lds_wait(C_W, 4, 0x301, sleep=0)
    stamp(3)
    if XN_BASE: a(f"v_add_u32 v15, {XN_BASE}, v15")
    for f in range(6):
        a(f"ds_read_b128 v[{32+4*f}:{35+4*f}], v15 offset:{1024*f}")
    a("v_lshrrev_b32 v8, 2, v4")
    a("v_lshl_add_u32 v9, v5, 3, v8")
    a("v_lshlrev_b32 v9, 7, v9")
    a("v_lshl_add_u32 v9, v7, 3, v9")
    a("s_lshl_b32 s9, s3, 5")
    a(f"s_add_u32 s10, s9, {WQ_BASE}")
    a("v_add_u32 v10, s10, v9")
    a(f"s_add_u32 s10, s9, {W1_BASE}")
    a("v_add_u32 v11, s10, v9")
    for ks in range(4):
        a(f"ds_read_b64_tr_b16 v[{64+4*ks}:{65+4*ks}], v10 offset:{4096*ks}")
        a(f"ds_read_b64_tr_b16 v[{66+4*ks}:{67+4*ks}], v10 offset:{4096*ks+512}")
    for ks in range(2):
        a(f"ds_read_b64_tr_b16 v[{80+4*ks}:{81+4*ks}], v11 offset:{4096*ks}")
        a(f"ds_read_b64_tr_b16 v[{82+4*ks}:{83+4*ks}], v11 offset:{4096*ks+512}")
    a("s_waitcnt lgkmcnt(0)")
    lds_add1(C_QS, "v1")
    for ks in range(4):
        a(f"v_mfma_f32_16x16x32_bf16 v[56:59], v[{64+4*ks}:{67+4*ks}], v[{32+4*ks}:{35+4*ks}], " + ("0" if ks == 0 else "v[56:59]"))
    for ks in range(2):
        a(f"v_mfma_f32_16x16x32_bf16 v[60:63], v[{80+4*ks}:{83+4*ks}], v[{48+4*ks}:{51+4*ks}], " + ("0" if ks == 0 else "v[60:63]"))
    a("v_lshlrev_b32 v8, 13, v6"); a("v_lshl_add_u32 v8, v5, 4, v8")
    a("s_lshl_b32 s9, s4, 15"); a("s_lshl_b32 s10, s12, 11"); a("s_add_u32 s9, s9, s10")
    a("s_lshl_b32 s10, s13, 8"); a("s_add_u32 s9, s9, s10"); a("s_lshl_b32 s10, s3, 6"); a("s_add_u32 s9, s9, s10")
    a(f"s_add_u32 s9, s9, {QBUF}")
    tag4([56, 57, 58, 59], 14)
    a("s_mov_b32 s10, 0x11111111")
    a("s_mov_b32 exec_lo, s10"); a("s_mov_b32 exec_hi, s10")
    a("buffer_store_dwordx4 v[56:59], v8, s[52:55], s9 offen sc1")
    a("s_mov_b64 exec, -1")
    Lnh = a.new("Lnh")
    a("s_cmp_lt_u32 s2, 224")
    a.branch(f"s_cbranch_scc0 {Lnh}")
    a("v_lshlrev_b32 v9, 10, v6"); a("v_lshl_add_u32 v9, v5, 4, v9")
    a("s_lshl_b32 s9, s15, 1"); a("s_lshr_b32 s10, s3, 1"); a("s_add_u32 s9, s9, s10"); a("s_lshl_b32 s9, s9, 12")
    a("s_lshl_b32 s10, s14, 7"); a("s_add_u32 s9, s9, s10")
    a("s_and_b32 s10, s3, 1"); a("s_lshl_b32 s10, s10, 6"); a("s_add_u32 s9, s9, s10")
    a(f"s_add_u32 s9, s9, {HBUF}")
    tag4([60, 61, 62, 63], 14)
    a("s_mov_b32 s10, 0x11111111")
    a("s_mov_b32 exec_lo, s10"); a("s_mov_b32 exec_hi, s10")
    a("buffer_store_dwordx4 v[60:63], v9, s[52:55], s9 offen sc1")
    a("s_mov_b64 exec, -1")
    a.label(Lnh)
    stamp(4)
    a("v_lshlrev_b32 v16, 10, v6"); a("v_lshl_add_u32 v16, v7, 7, v16"); a("v_lshl_add_u32 v16, v5, 5, v16")
    a("v_lshrrev_b32 v8, 2, v4")
    a("v_and_b32 v10, 1, v5")
    a("v_lshl_add_u32 v10, v10, 2, v8")
    a("v_lshl_add_u32 v17, v5, 3, v8")
    a("v_lshlrev_b32 v17, 8, v17")
    a("v_lshl_add_u32 v17, v10, 5, v17")
    a("v_lshl_add_u32 v17, v7, 3, v17")

    def gather8(soff, code, relu):
        loads = [f"buffer_load_dwordx4 v[{64+4*i}:{67+4*i}], v16, s[52:55], {soff} offen offset:{o} sc1" for i, o in enumerate((0, 16, 512, 528))]
        poll(loads, list(range(64, 80)), 14, 41, code)
        for k in range(8): a(f"v_add_f32 v{64+k}, v{64+k}, v{72+k}")
        for kind in ("x1", "x2"):
            for k in range(8): dpp_op("v_add_f32", 64 + k, kind)
        if relu:
            for k in range(8): a(f"v_max_f32 v{64+k}, 0, v{64+k}")
        for k in range(4): a(f"v_cvt_pk_bf16_f32 v{40+k}, v{64+2*k}, v{65+2*k}")
    def tile_frags(base_expr_sgpr, ct0, dst, ntile):
        for t in range(ntile):
            a(f"v_xor_b32 v18, {(t)<<5}, v17")
            a(f"v_xor_b32 v18, {ct0}, v18")
            a(f"v_add_u32 v18, {base_expr_sgpr}, v18")
            a(f"ds_read_b64_tr_b16 v[{dst+4*t}:{dst+4*t+1}], v18")
            a(f"ds_read_b64_tr_b16 v[{dst+4*t+2}:{dst+4*t+3}], v18 offset:1024")
    def mfma4_select(A, D):
        for t in range(4):
            a(f"v_mfma_f32_16x16x32_bf16 v[{D+4*t}:{D+4*t+3}], v[{A+4*t}:{A+4*t+3}], v[40:43], 0")
        for r in range(4):
            a(f"v_cndmask_b32 v{44+r}, v{D+r}, v{D+4+r}, s[56:57]")
        for r in range(4):
            a(f"v_cndmask_b32 v{D+r}, v{D+8+r}, v{D+12+r}, s[56:57]")
        for r in range(4):
            a(f"v_cndmask_b32 v{44+r}, v{44+r}, v{D+r}, s[62:63]")
    a("s_mov_b32 s56, 0xaaaaaaaa"); a("s_mov_b32 s57, 0xaaaaaaaa")

    a("s_cmp_eq_u32 s3, 1"); a.branch("s_cbranch_scc1 L_aux1")
    a("s_cmp_eq_u32 s3, 2"); a.branch("s_cbranch_scc1 L_aux2")
    a("s_cmp_eq_u32 s3, 3"); a.branch("s_cbranch_scc1 L_aux3")
    lds_wait(C_CLKQ, 1, 0x310)
    a("v_lshlrev_b32 v18, 5, v0")
    a("s_lshl_b32 s9, s4, 2"); a("s_add_u32 s9, s9, s6"); a("s_lshl_b32 s9, s9, 13"); a(f"s_add_u32 s9, s9, {QBUF}")
    loads = []
    for rb in range(4):
        for hf in range(2):
            loads.append((rb, hf))
    a(f"s_add_u32 s10, s9, 4096")
    ld = [f"buffer_load_dwordx4 v[{64+8*rb+4*hf}:{67+8*rb+4*hf}], v18, s[52:55], {'s9' if rb < 2 else 's10'} offen offset:{(rb&1)*2048+16*hf} sc1" for rb, hf in loads]
    poll(ld, list(range(64, 96)), 14, 41, 0x311)
    for k in range(8):
        a(f"v_add_f32 v{64+k}, v{64+k}, v{72+k}"); a(f"v_add_f32 v{80+k}, v{80+k}, v{88+k}")
    for k in range(8): a(f"v_add_f32 v{64+k}, v{64+k}, v{80+k}")
    for k in range(4): a(f"v_cvt_pk_bf16_f32 v{40+k}, v{64+2*k}, v{65+2*k}")
    a("v_lshlrev_b32 v18, 4, v0"); a(f"v_add_u32 v18, {Q_BASE}, v18")
    a("ds_write_b128 v18, v[40:43]")
    a("s_waitcnt lgkmcnt(0)")
    a(f"ds_write_b32 v2, v1 offset:{C_QRDY}")
    stamp(5)
    a.branch("s_branch L_wo")
    a.label("L_aux1")
    a("s_cmp_lt_u32 s2, 224")
    a.branch("s_cbranch_scc0 L_wo")
    lds_wait(C_CLKQ, 1, 0x320)
    a("s_lshr_b32 s12, s2, 2"); a("s_lshl_b32 s9, s12, 12"); a(f"s_add_u32 s9, s9, {HBUF}")
    gather8("s9", 0x321, relu=True)
    prog_wait(1, 0x322)
    a(f"s_mov_b32 s13, {W1_BASE}")
    tile_frags("s13", 0, 64, 8)
    a("s_waitcnt lgkmcnt(0)")
    a("v_lshlrev_b32 v19, 6, v6"); a("v_lshl_add_u32 v19, v7, 1, v19"); a("v_lshrrev_b32 v20, 1, v5"); a("v_add_u32 v19, v19, v20")
    a("v_lshlrev_b32 v19, 11, v19"); a("v_and_b32 v20, 1, v5"); a("v_lshl_add_u32 v19, v20, 4, v19")
    a("s_and_b32 s9, s2, 3"); a("s_lshl_b32 s9, s9, 15"); a("s_lshl_b32 s10, s12, 5"); a("s_add_u32 s9, s9, s10"); a(f"s_add_u32 s9, s9, {YBUF}")
    a("s_mov_b32 s62, 0xcccccccc"); a("s_mov_b32 s63, 0xcccccccc")
    for t in range(2):
        mfma4_select(64 + 16 * t, 96)
        tag4([44, 45, 46, 47], 14)
        if t == 1: a("s_add_u32 s9, s9, 0x4000")
        a("buffer_store_dwordx4 v[44:47], v19, s[52:55], s9 offen sc1")
    a(f"ds_write_b32 v2, v1 offset:{C_Y}")
    stamp(5)
    a.branch("s_branch L_wo")
    a.label("L_aux2")
    lds_wait(C_P, 8, 0x330)
    a(f"v_mov_b32 v18, {MX_BASE}")
    for h in range(4):
        a(f"ds_read_b128 v[{64+8*h}:{67+8*h}], v18 offset:{32*h}")
        a(f"ds_read_b128 v[{68+8*h}:{71+8*h}], v18 offset:{32*h+16}")
        a(f"ds_read_b128 v[{96+8*h}:{99+8*h}], v18 offset:{128+32*h}")
        a(f"ds_read_b128 v[{100+8*h}:{103+8*h}], v18 offset:{128+32*h+16}")
    a("s_waitcnt lgkmcnt(0)")
    for h in range(4):
        B = 64 + 8 * h
        a(f"v_max3_f32 v{44+h}, v{B}, v{B+1}, v{B+2}"); a(f"v_max3_f32 v{44+h}, v{44+h}, v{B+3}, v{B+4}")
        a(f"v_max3_f32 v{44+h}, v{44+h}, v{B+5}, v{B+6}"); a(f"v_max_f32 v{44+h}, v{44+h}, v{B+7}")
        B = 96 + 8 * h
        a(f"v_add_f32 v{48+h}, v{B}, v{B+1}")
        for k in range(2, 8): a(f"v_add_f32 v{48+h}, v{48+h}, v{B+k}")
    for h in range(4): a(f"v_cndmask_b32 v{52+h}, v{44+h}, v{48+h}, s[56:57]")
    tag4([52, 53, 54, 55], 14)
    a("s_lshl_b32 s9, s4, 2"); a("s_add_u32 s9, s9, s6"); a("s_lshl_b32 s9, s9, 8"); a(f"s_add_u32 s9, s9, {MLBUF}")
    a("s_lshl_b32 s10, s7, 5"); a("s_add_u32 s10, s10, s9")
    a("v_lshlrev_b32 v18, 4, v0")
    a("s_mov_b64 exec, 3")
    a("buffer_store_dwordx4 v[52:55], v18, s[52:55], s10 offen sc1")
    a("s_mov_b64 exec, -1")
    a("v_lshlrev_b32 v18, 4, v4")
    poll([f"buffer_load_dwordx4 v[64:67], v18, s[52:55], s9 offen sc1"], [64, 65, 66, 67], 14, 41, 0x331)
    for h in range(4):
        a(f"v_mov_b32_dpp v{68+h}, v{64+h} {DPP['x1']} row_mask:0xf bank_mask:0xf")
    for h in range(4):
        a(f"v_cndmask_b32 v{72+h}, v{64+h}, v{68+h}, s[56:57]")
        a(f"v_cndmask_b32 v{76+h}, v{68+h}, v{64+h}, s[56:57]")
    for h in range(4): a(f"v_mov_b32 v{80+h}, v{72+h}")
    for kind in ("x2", "r4", "r8"):
        for h in range(4): dpp_op("v_max_f32", 80 + h, kind)
    for h in range(4): a(f"v_sub_f32 v{72+h}, v{72+h}, v{80+h}")
    for h in range(4): a(f"v_mul_f32 v{72+h}, {hex(LOG2E)}, v{72+h}")
    for h in range(4): a(f"v_exp_f32 v{72+h}, v{72+h}")
    for h in range(4): a(f"v_mul_f32 v{72+h}, v{72+h}, v{76+h}")
    for kind in ("x2", "r4", "r8"):
        for h in range(4): dpp_op("v_add_f32", 72 + h, kind)
    for h in range(4): a(f"v_sub_f32 v{44+h}, v{44+h}, v{80+h}")
    for h in range(4): a(f"v_mul_f32 v{44+h}, {hex(LOG2E)}, v{44+h}")
    for h in range(4): a(f"v_exp_f32 v{44+h}, v{44+h}")
    for h in range(4): a(f"v_rcp_f32 v{72+h}, v{72+h}")
    for h in range(4): a(f"v_mul_f32 v{44+h}, v{44+h}, v{72+h}")
    a(f"v_mov_b32 v18, {SC_BASE}")
    a("ds_write_b128 v18, v[44:47]")
    a("s_waitcnt lgkmcnt(0)")
    a(f"ds_write_b32 v2, v1 offset:{C_SC}")
    stamp(5)
    a.branch("s_branch L_wo")
    a.label("L_aux3")
    Ly = a.new("Ly")
    a("s_cmp_lt_u32 s2, 224")
    a.branch(f"s_cbranch_scc0 {Ly}")
    lds_wait(C_Y, 1, 0x340)
    a.label(Ly)
    prog_wait(2, 0x341)
    a("v_lshlrev_b32 v18, 4, v0")
    a("s_lshl_b32 s9, s2, 11"); a(f"s_add_u32 s9, s9, {YBUF}")
    a("v_lshrrev_b32 v20, 1, v5"); a("v_and_b32 v21, 1, v5"); a("v_lshl_add_u32 v20, v21, 1, v20")
    a("v_and_b32 v21, 1, v0"); a("v_lshl_add_u32 v20, v21, 2, v20")
    a("s_lshl_b32 s10, s2, 3")
    a("v_add_u32 v20, s10, v20"); a("v_lshlrev_b32 v20, 1, v20")
    a("buffer_load_ushort v21, v20, s[40:43], 0 offen")
    def pre():
        for k in range(4): a(f"v_mov_b32 v{68+k}, v14")
    L, Dn = a.new("Lg"), a.new("Ld")
    a("s_mov_b32 s60, 0")
    a.label(L)
    pre()
    a("buffer_load_dwordx4 v[64:67], v18, s[52:55], s9 offen sc1")
    a("s_mov_b32 exec_hi, 0xffff")
    a("buffer_load_dwordx4 v[68:71], v18, s[52:55], s9 offen offset:1024 sc1")
    a("s_mov_b64 exec, -1")
    a("s_waitcnt vmcnt(0)")
    untag(list(range(64, 72)), 14, 41, True)
    a(f"v_and_b32 v41, {TAGM}, v41")
    a("v_cmp_ne_u32 vcc, 0, v41")
    a("s_cmp_eq_u64 vcc, 0")
    a.branch(f"s_cbranch_scc1 {Dn}")
    a("s_sleep 2")
    a("s_add_u32 s60, s60, 1"); a(f"s_cmp_lt_u32 s60, {cfg.G_LIMIT}")
    a.branch(f"s_cbranch_scc1 {L}")
    fail_to(0x342)
    a.label(Dn)
    for k in range(4): a(f"v_add_f32 v{64+k}, v{64+k}, v{68+k}")
    red8(64, 65, 66, 67)
    bf16r(64, 64)
    a(f"v_mul_f32 v65, {hex(LOG2E ^ 0x80000000)}, v64")
    a("v_exp_f32 v65, v65")
    a("v_add_f32 v65, 1.0, v65")
    a("v_rcp_f32 v65, v65")
    a("v_mul_f32 v65, v64, v65")
    bf16r(22, 65)
    a("v_lshlrev_b32 v21, 16, v21")
    stamp(5)
    a.label("L_wo")
    prog_wait(17, 0x350)
    stamp(6)
    a("s_lshr_b32 s9, s3, 1"); a("s_lshl_b32 s9, s9, 13"); a(f"s_add_u32 s13, s9, {WQ_BASE}")
    a("s_and_b32 s9, s3, 1"); a("s_lshl_b32 s12, s9, 7")
    tile_frags("s13", "s12", 96, 4)
    a("s_lshl_b32 s9, s4, 4"); a("s_lshr_b32 s10, s5, 1"); a("s_add_u32 s15, s9, s10")
    a("s_lshl_b32 s9, s15, 12"); a(f"s_add_u32 s9, s9, {OBUF}")
    a("v_lshlrev_b32 v19, 6, v6"); a("v_lshl_add_u32 v19, v7, 1, v19"); a("v_lshrrev_b32 v18, 1, v5"); a("v_add_u32 v19, v19, v18")
    a("v_lshlrev_b32 v19, 12, v19"); a("v_and_b32 v18, 1, v5"); a("v_lshl_add_u32 v19, v18, 4, v19")
    a("s_and_b32 s10, s5, 1"); a("s_lshl_b32 s10, s10, 5"); a("s_lshl_b32 s11, s3, 3"); a("s_add_u32 s10, s10, s11"); a("s_lshl_b32 s10, s10, 12")
    a("s_lshl_b32 s11, s15, 5"); a("s_add_u32 s10, s10, s11"); a(f"s_add_u32 s14, s10, {SBUF}")
    gather8("s9", 0x351, relu=False)
    stamp(7)
    a("s_mov_b32 s62, 0xcccccccc"); a("s_mov_b32 s63, 0xcccccccc")
    a("s_waitcnt lgkmcnt(0)")
    mfma4_select(96, 64)
    tag4([44, 45, 46, 47], 14)
    a("buffer_store_dwordx4 v[44:47], v19, s[52:55], s14 offen sc1")
    stamp(8)
    Lfin = a.new("Lfin")
    a("s_cmp_eq_u32 s3, 3")
    a.branch(f"s_cbranch_scc1 {Lfin}")
    stamps_out(9)
    a("s_endpgm")
    a.label(Lfin)
    a("v_lshlrev_b32 v18, 4, v0")
    a("s_lshl_b32 s9, s2, 12"); a(f"s_add_u32 s9, s9, {SBUF}")
    ld = [f"buffer_load_dwordx4 v[{64+4*i}:{67+4*i}], v18, s[52:55], s9 offen offset:{1024*i} sc1" for i in range(4)]
    poll(ld, list(range(64, 80)), 14, 41, 0x360)
    stamp(9)
    for k in range(4):
        a(f"v_add_f32 v{64+k}, v{64+k}, v{68+k}"); a(f"v_add_f32 v{72+k}, v{72+k}, v{76+k}")
    for k in range(4): a(f"v_add_f32 v{64+k}, v{64+k}, v{72+k}")
    red8(64, 65, 66, 67)
    bf16r(64, 64)
    a("v_mul_f32 v64, v64, v22"); bf16r(64, 64)
    a("v_add_f32 v64, v21, v64")
    if cfg.TRIP:
        Lt = a.new("Lt")
        a("s_waitcnt lgkmcnt(0)")
        a(f"s_sub_u32 s9, s{64+18}, s64")
        a(f"s_cmp_gt_u32 s9, {cfg.TRIP}")
        a.branch(f"s_cbranch_scc0 {Lt}")
        a("v_cvt_f32_u32 v64, s9")
        a.label(Lt)
    a("v_cvt_pk_bf16_f32 v64, v64, v64")
    srd(44, 32, 33, 4096)
    a("s_mov_b32 s10, 0x00030003")
    a("s_mov_b32 exec_lo, s10"); a("s_mov_b32 exec_hi, s10")
    a("buffer_store_short v64, v20, s[44:47], 0 offen")
    a("s_mov_b64 exec, -1")
    Le = a.new("Le")
    a("s_cmp_eq_u32 s2, 0")
    a.branch(f"s_cbranch_scc0 {Le}")
    a("v_mov_b32 v4, s38"); a("v_mov_b32 v5, 0")
    a("s_mov_b64 exec, 1")
    a("buffer_store_dword v4, v5, s[52:55], 0 offen sc1")
    a("s_mov_b64 exec, -1")
    a.label(Le)
    stamp(10)
    stamps_out(11, {4: 6, 5: 7, 7: 8, 8: 9, 9: 10, 10: 11})
    a("s_endpgm")
    a.label("L_fail")
    a("v_mov_b32 v4, s61"); a("s_lshl_b32 s9, s3, 2"); a("v_mov_b32 v5, s9")
    a("s_mov_b64 exec, 1")
    a("global_store_dword v5, v4, s[34:35]")
    a.label("L_exit", flush=False)
    a("s_endpgm")
    return a

def wrap(a, lds=LDS_SIZE):
    hdr = open(REF).read().split("; Override launch geometry")[0]
    s = hdr
    s += "; Generated by gen/kern.py (hand-written schedule, see comments).\n"
    s += f"; @launch grid=(256,1,1) block=(1024,1,1) lds={lds}\n"
    s += '.amdgcn_target "amdgcn-amd-amdhsa--gfx950"\n.text\n'
    s += f".globl {KNAME}\n.p2align 8\n.type {KNAME},@function\n{KNAME}:\n"
    s += a.text()
    s += '.section .rodata,"a"\n.p2align 6\n'
    s += f".amdhsa_kernel {KNAME}\n"
    s += "  .amdhsa_next_free_vgpr 128\n  .amdhsa_next_free_sgpr 102\n  .amdhsa_accum_offset 128\n"
    s += "  .amdhsa_group_segment_fixed_size 0\n  .amdhsa_kernarg_size 88\n  .amdhsa_user_sgpr_count 2\n"
    s += "  .amdhsa_user_sgpr_kernarg_segment_ptr 1\n  .amdhsa_system_sgpr_workgroup_id_x 1\n"
    s += ".end_amdhsa_kernel\n"
    return s

if __name__ == "__main__":
    out = sys.argv[1] if len(sys.argv) > 1 else "k1.s"
    class C(Cfg): pass
    for kv in sys.argv[2:]:
        k, v = kv.split("=")
        cur = getattr(Cfg, k)
        if isinstance(cur, bool): val = (v == "1")
        elif isinstance(cur, int): val = int(v, 0)
        else: val = v.replace("_", " ")
        setattr(C, k, val)
    a = build(C)
    open(out, "w").write(wrap(a))
    print(out, "instructions:", a.ninst)
```

```python
import sys, os
sys.path.insert(0, os.path.dirname(os.path.abspath(__file__)))
from dsl import Asm

KNAME = "recurrent_scan__sliding_block_cached__dense_activation_relu__decode_kernel"
REF = "recurrent_scan__sliding_block_cached__dense_activation_relu__decode.s.ref"

V_BASE = 0
XN_BASE = 0
WQ_BASE = 131072
W1_BASE = 147456
P_BASE = 155648
P_STRIDE = 1088
DX_BASE = P_BASE
Q_BASE = 160000
MX_BASE = 161024
LX_BASE = 161152
SC_BASE = 161280
CNT_BASE = 161408
LDS_SIZE = 163840
C_W, C_QS, C_KI, C_CLKQ, C_QRDY, C_M, C_P, C_SC = [4 * i for i in range(8)]
C_PROG = 32
C_O, C_LOC, C_TAG, C_EP, C_D = 48, 52, 56, 60, 64
QBUF = 0x10000
HBUF = 0x60000
MLBUF = 0xA0000
OBUF = 0xB0000
YBUF = 0x140000
SBUF = 0x200000
XCBUF = 0x240000
WS_USED = 0x300000
DIAG = 0x800000
TAGM = 0x3FF
LOG2E = 0x3fb8aa3b
SCALE = 0x3db504f3
EPS = 0x3727c5ac

class Cfg:
    VW = 8
    CLK_WAVE = 5
    KI_TARGET = 8
    STAMP = False
    SMIN = False
    DBGSTAMP = False
    DBGWG = 100
    LDS_LIMIT = 1 << 20
    G_LIMIT = 1 << 15
    NT = " nt"
    PRIO_AUX = 3
    PRIO_K = 1
    PRIO_LD = 0
    Q_SLEEP = 4
    H_AT = 2
    H_SLEEP = 8
    ML_AT = 12
    ML_SLEEP = 8
    XC_AT = 3
    Y_SLEEP = 4
    SL_THR = 16
    SL_LONG = 4
    S_SLEEP = 0
    LS = 8
    PVS = 4
    PV_TIGHT = 12
    WARM = True
    PREF = True
    FORCE_REMOTE = False
    ABL = ""
    ROTMUL = 0x9E3779B1

def build(cfg=Cfg):
    a = Asm()
    NT = cfg.NT
    stamping = cfg.STAMP or cfg.DBGSTAMP
    def stamp(i):
        if cfg.SMIN and i not in (0, 10): return
        if stamping: a(f"s_memrealtime s[{64+2*i}:{65+2*i}]")
    def stamps_out(n, final=False, dbgmap=None):
        if cfg.DBGSTAMP and dbgmap is not None:
            a("s_waitcnt lgkmcnt(0)")
            a("s_mov_b64 exec, 1")
            a("v_mov_b32 v4, 0")
            Lq = a.new("Lq")
            a(f"s_cmp_eq_u32 s2, {cfg.DBGWG}")
            a.branch(f"s_cbranch_scc0 {Lq}")
            a(f"s_cmp_eq_u32 s3, {dbgmap['wave']}")
            a.branch(f"s_cbranch_scc0 {Lq}")
            for i, slot in dbgmap.items():
                if isinstance(i, int):
                    a(f"v_mov_b32 v5, s{64+2*i}")
                    a(f"global_store_dword v4, v5, s[34:35] offset:{4*slot}")
            a.label(Lq)
            a("s_mov_b64 exec, -1")
        if cfg.STAMP and (final or not cfg.SMIN):
            a("s_waitcnt lgkmcnt(0)")
            a("s_lshl_b32 s9, s2, 4"); a("s_add_u32 s9, s9, s3"); a("s_lshl_b32 s9, s9, 6"); a(f"s_add_u32 s9, s9, {DIAG}")
            a("s_add_u32 s10, s36, s9"); a("s_addc_u32 s11, s37, 0")
            a("v_mov_b32 v4, 0")
            a("s_mov_b64 exec, 1")
            for i in range(n):
                a(f"v_mov_b32 v5, s{64+2*i}")
                a(f"global_store_dword v4, v5, s[10:11] offset:{4*i}")
            a("s_mov_b64 exec, -1")
    def fail_to(code):
        a(f"s_mov_b32 s61, {code}")
        a.branch("s_branch L_fail")
    def spin_tail(L, code, sleep, limit):
        if sleep: a(f"s_sleep {sleep}")
        a("s_add_u32 s60, s60, 1")
        a(f"s_cmp_lt_u32 s60, {limit}")
        a.branch(f"s_cbranch_scc1 {L}")
        fail_to(code)
    def lds_wait(off, target, code, vt="v24", sleep=1):
        L, D = a.new("Lw"), a.new("Ld")
        a("s_mov_b32 s60, 0")
        a.label(L)
        a(f"ds_read_b32 {vt}, v2 offset:{off}")
        a("s_waitcnt lgkmcnt(0)")
        a(f"v_readfirstlane_b32 s62, {vt}")
        a(f"s_cmp_ge_u32 s62, {target}")
        a.branch(f"s_cbranch_scc1 {D}", flush=False)
        spin_tail(L, code, sleep, cfg.LDS_LIMIT)
        a.label(D, flush=False)
    def prog_wait(target, code, vt=24, sleep=1):
        L, D = a.new("Lp"), a.new("Ld")
        a("s_mov_b32 s60, 0")
        a.label(L)
        a(f"ds_read_b128 v[{vt}:{vt+3}], v2 offset:{C_PROG}")
        a("s_waitcnt lgkmcnt(0)")
        a(f"v_min_u32 v{vt}, v{vt}, v{vt+1}")
        a(f"v_min3_u32 v{vt}, v{vt}, v{vt+2}, v{vt+3}")
        a(f"v_readfirstlane_b32 s62, v{vt}")
        a(f"s_cmp_ge_u32 s62, {target}")
        a.branch(f"s_cbranch_scc1 {D}", flush=False)
        spin_tail(L, code, sleep, cfg.LDS_LIMIT)
        a.label(D, flush=False)
    def lds_add1(off):
        a("s_mov_b64 exec, 1")
        a(f"ds_add_u32 v2, v1 offset:{off}")
        a("s_mov_b64 exec, -1")
    def srd(dst, lo, size, add=None):
        if add is None:
            a(f"s_mov_b32 s{dst}, s{lo}"); a(f"s_mov_b32 s{dst+1}, s{lo+1}")
        else:
            a(f"s_add_u32 s{dst}, s{lo}, {add}"); a(f"s_addc_u32 s{dst+1}, s{lo+1}, 0")
        a(f"s_mov_b32 s{dst+2}, {size}")
        a(f"s_mov_b32 s{dst+3}, 0x20000")
    def tag4(regs, vtag=14):
        for r in regs: a(f"v_add_u32 v{r}, 0x200, v{r}")
        for r in regs: a(f"v_and_or_b32 v{r}, v{r}, s58, v{vtag}")
    def poll(loads, regs, acc, code, sleep=0, adaptive=False, vtag=14):
        L, D = a.new("Lg"), a.new("Ld")
        a("s_mov_b32 s60, 0")
        a.label(L)
        for l in loads: a(l)
        a("s_waitcnt vmcnt(0)")
        for r in regs: a(f"v_xor_b32 v{r}, v{vtag}, v{r}")
        it = list(regs)
        a(f"v_or3_b32 v{acc}, v{it[0]}, v{it[1]}, v{it[2]}"); it = it[3:]
        while len(it) >= 2:
            a(f"v_or3_b32 v{acc}, v{it[0]}, v{it[1]}, v{acc}"); it = it[2:]
        if it: a(f"v_or_b32 v{acc}, v{it[0]}, v{acc}")
        a(f"v_and_b32 v{acc}, {TAGM}, v{acc}")
        a(f"v_cmp_ne_u32 vcc, 0, v{acc}")
        a("s_cmp_eq_u64 vcc, 0")
        a.branch(f"s_cbranch_scc1 {D}", flush=False)
        a("s_mov_b64 exec, vcc")
        if adaptive and cfg.SL_LONG:
            Ls = a.new("Ls")
            a("s_bcnt1_i32_b64 s61, vcc")
            a(f"s_cmp_gt_u32 s61, {cfg.SL_THR}")
            a.branch(f"s_cbranch_scc0 {Ls}", flush=False)
            a(f"s_sleep {cfg.SL_LONG}")
            a.label(Ls, flush=False)
        if sleep: a(f"s_sleep {sleep}")
        a("s_add_u32 s60, s60, 1")
        a(f"s_cmp_lt_u32 s60, {cfg.G_LIMIT}")
        a.branch(f"s_cbranch_scc1 {L}")
        a("s_mov_b64 exec, -1")
        fail_to(code)
        a.label(D, flush=False)
        a("s_mov_b64 exec, -1")
    def bf16r(dst, src):
        a(f"v_cvt_pk_bf16_f32 v{dst}, v{src}, v{src}")
        a(f"v_lshlrev_b32 v{dst}, 16, v{dst}")
    DPP = {"x1": "quad_perm:[1,0,3,2]", "x2": "quad_perm:[2,3,0,1]", "r4": "row_ror:4", "r8": "row_ror:8"}
    def dpp_op(op, reg, kind):
        a(f"{op}_dpp v{reg}, v{reg}, v{reg} {DPP[kind]} row_mask:0xf bank_mask:0xf")
    def allred_g(op, reg, tmp):
        for sw in ("v_permlane16_swap_b32", "v_permlane32_swap_b32"):
            a(f"v_mov_b32 v{tmp}, v{reg}")
            a(f"{sw} v{reg}, v{tmp}")
            a(f"{op} v{reg}, v{reg}, v{tmp}")
    def red32(r):
        a(f"v_permlane32_swap_b32 v{r}, v{r+1}")
        a(f"v_permlane32_swap_b32 v{r+2}, v{r+3}")
        a(f"v_add_f32 v{r}, v{r}, v{r+1}")
        a(f"v_add_f32 v{r+2}, v{r+2}, v{r+3}")
        a(f"v_permlane16_swap_b32 v{r}, v{r+2}")
        a(f"v_add_f32 v{r}, v{r}, v{r+2}")
        dpp_op("v_add_f32", r, "r8")
    def kv_region(dst, lo):
        a("s_lshl_b32 s9, s6, 3"); a("s_add_u32 s9, s9, s4"); a("s_lshl_b32 s9, s9, 22")
        a("s_lshl_b32 s10, s7, 17"); a("s_add_u32 s9, s9, s10"); a(f"s_add_u32 s9, s9, {12288*256}")
        srd(dst, lo, 131072, add="s9")

    a("s_cmp_ge_u32 s2, 256")
    a.branch("s_cbranch_scc1 L_exit", flush=False)
    a("s_load_dwordx16 s[16:31], s[0:1], 0")
    a("s_load_dwordx4 s[32:35], s[0:1], 64")
    a("s_load_dwordx2 s[36:37], s[0:1], 80")
    stamp(0)
    a("v_lshrrev_b32 v1, 6, v0")
    a("v_and_b32 v0, 63, v0")
    a("v_readfirstlane_b32 s3, v1")
    a("s_and_b32 s4, s2, 7")
    a("s_lshr_b32 s5, s2, 3")
    a("s_lshr_b32 s6, s5, 3")
    a("s_and_b32 s7, s5, 7")
    a(f"s_mul_i32 s8, s2, {hex(cfg.ROTMUL)}")
    a("s_lshr_b32 s8, s8, 26")
    a(f"v_mov_b32 v2, {CNT_BASE}")
    a("v_mov_b32 v1, 1")
    a(f"s_mov_b32 s58, {(~TAGM) & 0xffffffff}")
    Lc = a.new("Lc")
    a("s_cmp_eq_u32 s3, 12")
    a.branch(f"s_cbranch_scc0 {Lc}")
    a("v_lshl_add_u32 v14, v0, 2, v2")
    a("v_mov_b32 v15, 0")
    a("ds_write_b32 v14, v15")
    if cfg.PREF:
        a("s_getpc_b64 s[10:11]")
        a("s_and_b32 s10, s10, 0xffffff00")
        a("s_lshl_b32 s9, s5, 10")
        a("v_lshl_add_u32 v16, v0, 4, s9")
        a("s_cmp_lt_u32 s5, CODE_KIB")
        Lp = a.new("Lp")
        a.branch(f"s_cbranch_scc0 {Lp}")
        a("global_load_dwordx4 v[20:23], v16, s[10:11]")
        a.label(Lp)
    a("s_waitcnt lgkmcnt(0)")
    a.label(Lc)
    a("s_barrier")
    a("s_waitcnt lgkmcnt(0)")
    srd(52, 36, WS_USED)
    a("s_cmp_lt_u32 s3, 4")
    a.branch("s_cbranch_scc1 L_aux", flush=False)
    a("s_cmp_ge_u32 s3, 12")
    a.branch("s_cbranch_scc1 L_loader", flush=False)

    if cfg.PRIO_K: a(f"s_setprio {cfg.PRIO_K}")
    a("s_sub_u32 s12, s3, 4")
    kv_region(40, 18)
    a("v_and_b32 v4, 15, v0")
    a("v_lshrrev_b32 v5, 4, v0")
    a("v_lshrrev_b32 v6, 1, v4")
    a("v_lshlrev_b32 v6, 8, v6")
    a("v_and_b32 v7, 1, v4")
    a("v_lshl_add_u32 v6, v7, 6, v6")
    a("v_lshl_add_u32 v3, v5, 4, v6")
    a("s_lshl_b32 s13, s12, 3"); a("s_add_u32 s13, s13, s8")
    KREG = 64
    for i in range(16):
        m, s = i >> 1, i & 1
        if i == 15:
            Lx = a.new("Lk")
            a(f"s_cmp_eq_u32 s12, {cfg.CLK_WAVE}")
            a.branch(f"s_cbranch_scc0 {Lx}", flush=False)
            a(f"ds_write_b32 v2, v1 offset:{C_CLKQ}")
            a.label(Lx, flush=False)
        if s == 0:
            a(f"s_add_u32 s10, s13, {m}")
            a("s_and_b32 s10, s10, 63")
            a("s_lshl_b32 s10, s10, 11")
        a(f"buffer_load_dwordx4 v[{KREG+4*i}:{KREG+4*i+3}], v3, s[40:43], s10 offen offset:{s*128}{NT}")
        if i == 0: stamp(8)
    lds_add1(C_KI)
    stamp(1)
    a("v_lshrrev_b32 v6, 1, v4"); a("v_and_b32 v6, 3, v6")
    a("v_lshlrev_b32 v8, 8, v6")
    a("v_lshl_add_u32 v8, v7, 6, v8")
    a("v_lshl_add_u32 v8, v5, 4, v8")
    a(f"v_add_u32 v8, {Q_BASE}, v8")
    a("s_mov_b32 s56, 0xaaaaaaaa"); a("s_mov_b32 s57, 0xaaaaaaaa")
    lds_wait(C_QRDY, 1, 0x101, sleep=cfg.LS)
    a("ds_read_b128 v[12:15], v8 offset:128")
    a("ds_read_b128 v[8:11], v8")
    stamp(2)
    a("s_waitcnt lgkmcnt(0)")
    for m in range(8):
        a(f"s_waitcnt vmcnt({14-2*m})")
        D = 32 + 4 * m
        a(f"v_mfma_f32_16x16x32_bf16 v[{D}:{D+3}], v[{KREG+8*m}:{KREG+8*m+3}], v[8:11], 0")
        a(f"v_mfma_f32_16x16x32_bf16 v[{D}:{D+3}], v[{KREG+8*m+4}:{KREG+8*m+7}], v[12:15], v[{D}:{D+3}]")
    stamp(3)
    for m in range(8):
        D = 32 + 4 * m
        a(f"v_add_f32_dpp v24, v{D+1}, v{D} {DPP['x1']} row_mask:0xf bank_mask:0xf")
        a(f"v_add_f32_dpp v25, v{D+2}, v{D+3} {DPP['x1']} row_mask:0xf bank_mask:0xf")
        a(f"v_cndmask_b32 v{16+m}, v24, v25, s[56:57]")
    for m in range(0, 8, 2):
        x, y = 16 + m, 17 + m
        a(f"v_cvt_pk_bf16_f32 v24, v{x}, v{y}")
        a(f"v_lshlrev_b32 v{x}, 16, v24")
        a(f"v_and_b32 v{y}, 0xffff0000, v24")
        a(f"v_mul_f32 v{x}, {hex(SCALE)}, v{x}")
        a(f"v_mul_f32 v{y}, {hex(SCALE)}, v{y}")
        a(f"v_cvt_pk_bf16_f32 v24, v{x}, v{y}")
        a(f"v_lshlrev_b32 v{x}, 16, v24")
        a(f"v_and_b32 v{y}, 0xffff0000, v24")
    a("v_max3_f32 v24, v16, v17, v18"); a("v_max3_f32 v24, v24, v19, v20"); a("v_max3_f32 v24, v24, v21, v22"); a("v_max_f32 v24, v24, v23")
    dpp_op("v_max_f32", 24, "x1")
    allred_g("v_max_f32", 24, 25)
    a("v_lshlrev_b32 v26, 5, v6")
    a("s_lshl_b32 s9, s12, 2"); a(f"s_add_u32 s9, s9, {MX_BASE}")
    a("v_add_u32 v27, s9, v26")
    a("ds_write_b32 v27, v24")
    lds_add1(C_M)
    lds_wait(C_M, 8, 0x102, vt="v25", sleep=0)
    a(f"v_add_u32 v28, {MX_BASE}, v26")
    a("ds_read_b128 v[32:35], v28")
    a("ds_read_b128 v[36:39], v28 offset:16")
    a("s_waitcnt lgkmcnt(0)")
    a("v_max3_f32 v24, v32, v33, v34"); a("v_max3_f32 v24, v24, v35, v36"); a("v_max3_f32 v24, v24, v37, v38"); a("v_max_f32 v24, v24, v39")
    for m in range(8): a(f"v_sub_f32 v{16+m}, v{16+m}, v24")
    for m in range(8): a(f"v_mul_f32 v{16+m}, {hex(LOG2E)}, v{16+m}")
    for m in range(8): a(f"v_exp_f32 v{16+m}, v{16+m}")
    a(f"v_mul_u32_u24 v29, {P_STRIDE}, v6")
    a("v_lshl_add_u32 v29, v5, 2, v29")
    a("v_lshl_add_u32 v29, v7, 1, v29")
    a("s_lshl_b32 s9, s12, 7"); a(f"s_add_u32 s9, s9, {P_BASE}")
    a("v_add_u32 v29, s9, v29")
    for m in range(8):
        a(f"v_cvt_pk_bf16_f32 v{32+m}, v{16+m}, v{16+m}")
        a(f"ds_write_b16 v29, v{32+m} offset:{16*m}")
    a("v_add_f32 v24, v16, v17"); a("v_add_f32 v25, v18, v19"); a("v_add_f32 v30, v20, v21"); a("v_add_f32 v31, v22, v23")
    a("v_add_f32 v24, v24, v25"); a("v_add_f32 v30, v30, v31"); a("v_add_f32 v24, v24, v30")
    dpp_op("v_add_f32", 24, "x1")
    allred_g("v_add_f32", 24, 25)
    a(f"v_add_u32 v27, {LX_BASE-MX_BASE}, v27")
    a("ds_write_b32 v27, v24")
    lds_add1(C_P)
    stamp(4)
    lds_wait(C_P, 8, 0x103, vt="v25", sleep=0)
    a("v_and_b32 v6, 3, v4")
    a(f"v_mul_u32_u24 v29, {P_STRIDE}, v6")
    a("v_lshl_add_u32 v29, v5, 4, v29")
    a(f"v_add_u32 v29, {P_BASE}, v29")
    for ks in range(16):
        a(f"ds_read_b128 v[{64+4*ks}:{64+4*ks+3}], v29 offset:{64*ks}")
    a("v_lshrrev_b32 v8, 2, v4"); a("v_and_b32 v9, 3, v4"); a("v_and_b32 v10, 1, v5")
    a("v_lshl_add_u32 v10, v10, 2, v8")
    a("v_xor_b32 v10, s12, v10")
    a("v_lshl_add_u32 v11, v5, 3, v8")
    a("v_lshlrev_b32 v11, 8, v11")
    a("v_lshl_add_u32 v11, v10, 5, v11")
    a("v_lshl_add_u32 v11, v9, 3, v11")
    a("v_add_u32 v12, 0x10000, v11")
    a("v_lshlrev_b32 v13, 14, v6"); a("v_lshl_add_u32 v13, v5, 4, v13")
    a("s_lshl_b32 s9, s4, 16"); a("s_lshl_b32 s10, s5, 9"); a("s_add_u32 s9, s9, s10")
    a("s_lshl_b32 s10, s12, 6"); a("s_add_u32 s9, s9, s10"); a(f"s_add_u32 s14, s9, {OBUF}")
    a("s_mov_b32 s63, 0")
    a("s_waitcnt lgkmcnt(0)")
    stamp(5)
    def pv_mfma(ks):
        A = 32 + 4 * (ks & 3)
        a(f"v_mfma_f32_16x16x32_bf16 v[48:51], v[{A}:{A+3}], v[{64+4*ks}:{64+4*ks+3}], " + ("0" if ks == 0 else "v[48:51]"))
    for ks in range(16):
        Lok = a.new("Lok")
        if ks == 12:
            a(f"ds_read_b32 v14, v2 offset:{C_TAG}")
            lds_wait(C_LOC, 1, 0x106)
            a("s_mov_b32 s15, s62")
        a(f"s_cmp_ge_u32 s63, {ks+1}")
        a.branch(f"s_cbranch_scc1 {Lok}", flush=False)
        prog_wait(ks + 1, 0x105, sleep=(cfg.PVS if ks < cfg.PV_TIGHT else 0))
        a("s_mov_b32 s63, s62")
        a.label(Lok, flush=False)
        ad = "v11" if ks < 8 else "v12"
        off = (ks & 7) * 8192
        A = 32 + 4 * (ks & 3)
        a(f"ds_read_b64_tr_b16 v[{A}:{A+1}], {ad} offset:{off}")
        a(f"ds_read_b64_tr_b16 v[{A+2}:{A+3}], {ad} offset:{off+1024}")
        if ks > 0:
            a("s_waitcnt lgkmcnt(2)")
            pv_mfma(ks - 1)
    a("s_mov_b32 s10, 0x000f000f")
    a("s_waitcnt lgkmcnt(0)")
    pv_mfma(15)
    stamp(6)
    tag4([48, 49, 50, 51])
    a("s_mov_b32 exec_lo, s10"); a("s_mov_b32 exec_hi, s10")
    Lr, Lj = a.new("Lr"), a.new("Lj")
    a("s_cmp_eq_u32 s15, 1")
    a.branch(f"s_cbranch_scc0 {Lr}", flush=False)
    a("buffer_store_dwordx4 v[48:51], v13, s[52:55], s14 offen")
    a.branch(f"s_branch {Lj}", flush=False)
    a.label(Lr, flush=False)
    a("buffer_store_dwordx4 v[48:51], v13, s[52:55], s14 offen sc1")
    a.label(Lj, flush=False)
    lds_add1(C_O)
    stamp(7)
    stamps_out(9, dbgmap={"wave": 4, 0: 10, 8: 11, 1: 12})
    a("s_endpgm")

    a.label("L_loader")
    if cfg.PRIO_LD: a(f"s_setprio {cfg.PRIO_LD}")
    a("s_sub_u32 s12, s3, 12")
    kv_region(40, 20)
    srd(44, 24, 4096 * 1024)
    a("v_lshrrev_b32 v5, 4, v0")
    a("s_and_b32 s9, s12, 1"); a("s_lshl_b32 s9, s9, 2")
    a("v_or_b32 v6, s9, v5")
    a("v_lshlrev_b32 v6, 1, v6")
    a("v_and_b32 v7, 15, v0")
    a("v_xor_b32 v6, v6, v7")
    a("v_lshlrev_b32 v6, 4, v6")
    a("v_lshl_add_u32 v8, v5, 8, v6")
    a("s_lshl_b32 s9, s12, 2"); a(f"s_add_u32 s9, s9, {C_PROG}")
    a("v_add_u32 v10, s9, v2")
    a("v_lshrrev_b32 v12, 3, v0"); a("v_and_b32 v13, 7, v0"); a("v_lshlrev_b32 v13, 4, v13"); a("v_lshl_add_u32 v12, v12, 10, v13")
    a("s_lshl_b32 s9, s4, 2"); a("s_add_u32 s9, s9, s6"); a("s_lshl_b32 s9, s9, 7")
    a("s_lshl_b32 s10, s12, 5"); a("s_add_u32 s9, s9, s10"); a("s_lshl_b32 s9, s9, 10")
    a("s_lshl_b32 s10, s7, 7"); a("s_add_u32 s15, s9, s10")
    a("s_lshl_b32 s11, s12, 11")
    a("s_add_u32 s14, s8, s12")
    lds_wait(C_KI, cfg.KI_TARGET - 2, 0x206, sleep=cfg.LS)
    lds_wait(C_KI, cfg.KI_TARGET, 0x201)
    lds_wait(C_QS, 4, 0x202)
    stamp(1)
    published = 0
    for ks in range(16):
        N = cfg.VW - 2
        if 2 * (ks - published) > N:
            a(f"s_waitcnt vmcnt({N})")
            published = ks - N // 2
            a(f"v_mov_b32 v11, {published}")
            a("ds_write_b32 v10, v11")
        a(f"s_add_u32 s10, s14, {4*ks}")
        a("s_and_b32 s10, s10, 63")
        a("s_lshl_b32 s10, s10, 11")
        a(f"s_add_u32 s13, s11, {V_BASE + 8192*ks}")
        a("s_mov_b32 m0, s13")
        a("s_nop 0")
        a(f"buffer_load_dwordx4 v8, s[40:43], s10 offen{NT} lds")
        a(f"buffer_load_dwordx4 v8, s[40:43], s10 offen offset:1024{NT} lds")
    stamp(2)
    a("s_lshl_b32 s11, s12, 12")
    for i in range(4):
        a(f"s_add_u32 s13, s11, {WQ_BASE + 1024*i}")
        a("s_mov_b32 m0, s13")
        a(f"s_add_u32 s10, s15, {8192*i}")
        a(f"buffer_load_dwordx4 v12, s[44:47], s10 offen{NT} lds")
    for k in range(16 - published - 1, -1, -1):
        a(f"s_waitcnt vmcnt({4 + 2*k})")
        a(f"v_mov_b32 v11, {16 - k}")
        a("ds_write_b32 v10, v11")
        if k == 0: stamp(3)
    a("s_waitcnt vmcnt(0)")
    a("v_mov_b32 v11, 17")
    a("ds_write_b32 v10, v11")
    stamp(4)
    Lfin = a.new("Lfin")
    a("s_cmp_eq_u32 s3, 12")
    a.branch("s_cbranch_scc0 L_ldend", flush=False)
    a("s_cmp_lt_u32 s2, 64")
    a.branch(f"s_cbranch_scc1 {Lfin}", flush=False)
    stamp(10)
    a.label("L_ldend", flush=False)
    if cfg.STAMP and not cfg.SMIN: a("s_getreg_b32 s74, hwreg(HW_REG_HW_ID)")
    stamps_out(11, final=True, dbgmap={"wave": 12, 1: 13, 3: 14})
    a("s_waitcnt lgkmcnt(0)")
    a("s_endpgm")
    a.label(Lfin)
    a("s_setprio 3")
    a(f"ds_read_b32 v14, v2 offset:{C_TAG}")
    srd(40, 16, 4096)
    srd(44, 32, 4096)
    a("v_lshlrev_b32 v18, 4, v0")
    a("v_lshrrev_b32 v20, 1, v5"); a("v_and_b32 v21, 1, v5"); a("v_lshl_add_u32 v20, v21, 1, v20")
    a("v_and_b32 v21, 1, v0"); a("v_lshl_add_u32 v20, v21, 2, v20")
    a("v_lshrrev_b32 v21, 1, v0"); a("v_and_b32 v21, 3, v21"); a("v_lshl_add_u32 v20, v21, 9, v20")
    a("s_lshl_b32 s10, s2, 3")
    a("v_add_u32 v20, s10, v20"); a("v_lshlrev_b32 v100, 1, v20")
    a("buffer_load_ushort v101, v100, s[40:43], 0 offen")
    a("s_lshl_b32 s9, s2, 13"); a(f"s_add_u32 s9, s9, {YBUF}"); a("s_add_u32 s10, s9, 4096")
    a("s_waitcnt lgkmcnt(0)")
    yl = [f"buffer_load_dwordx4 v[{64+4*i}:{67+4*i}], v18, s[52:55], {'s9' if i < 4 else 's10'} offen offset:{1024*(i&3)} sc1" for i in range(7)]
    if "Y" not in cfg.ABL and "y" not in cfg.ABL: poll(yl, list(range(64, 92)), 41, 0x342, sleep=cfg.Y_SLEEP)
    else: a("s_waitcnt vmcnt(0)")
    a("s_lshl_b32 s9, s2, 12"); a(f"s_add_u32 s9, s9, {SBUF}")
    for k in range(4):
        a(f"v_add_f32 v{64+k}, v{64+k}, v{68+k}"); a(f"v_add_f32 v{72+k}, v{72+k}, v{76+k}"); a(f"v_add_f32 v{80+k}, v{80+k}, v{84+k}")
    for k in range(4):
        a(f"v_add_f32 v{64+k}, v{64+k}, v{72+k}"); a(f"v_add_f32 v{80+k}, v{80+k}, v{88+k}")
    for k in range(4): a(f"v_add_f32 v{64+k}, v{64+k}, v{80+k}")
    red32(64)
    bf16r(64, 64)
    a(f"v_mul_f32 v65, {hex(LOG2E ^ 0x80000000)}, v64")
    a("v_exp_f32 v65, v65")
    a("v_add_f32 v65, 1.0, v65")
    a("v_rcp_f32 v65, v65")
    a("v_mul_f32 v65, v64, v65")
    bf16r(102, 65)
    a("v_lshlrev_b32 v101, 16, v101")
    stamp(5)
    ld = [f"buffer_load_dwordx4 v[{64+4*i}:{67+4*i}], v18, s[52:55], s9 offen offset:{1024*i} sc1" for i in range(4)]
    poll(ld, list(range(64, 80)), 41, 0x360, sleep=cfg.S_SLEEP)
    stamp(9)
    for k in range(0, 4, 2):
        a(f"v_pk_add_f32 v[{64+k}:{65+k}], v[{64+k}:{65+k}], v[{68+k}:{69+k}]"); a(f"v_pk_add_f32 v[{72+k}:{73+k}], v[{72+k}:{73+k}], v[{76+k}:{77+k}]")
    for k in range(0, 4, 2): a(f"v_pk_add_f32 v[{64+k}:{65+k}], v[{64+k}:{65+k}], v[{72+k}:{73+k}]")
    red32(64)
    bf16r(64, 64)
    a("v_mul_f32 v64, v64, v102"); bf16r(64, 64)
    a("v_add_f32 v64, v101, v64")
    a("v_cvt_pk_bf16_f32 v64, v64, v64")
    a("s_mov_b32 exec_lo, 0x00ff00ff"); a("s_mov_b32 exec_hi, 0x00ff00ff")
    a("buffer_store_short v64, v100, s[44:47], 0 offen")
    a("s_mov_b64 exec, -1")
    Le = a.new("Le")
    a("s_cmp_eq_u32 s2, 0")
    a.branch(f"s_cbranch_scc0 {Le}")
    a(f"ds_read_b32 v4, v2 offset:{C_EP}"); a("v_mov_b32 v5, 0")
    a("s_waitcnt lgkmcnt(0)")
    a("s_mov_b64 exec, 1")
    a("buffer_store_dword v4, v5, s[52:55], 0 offen sc1")
    a("s_mov_b64 exec, -1")
    a.label(Le)
    stamp(10)
    stamps_out(11, final=True)
    a("s_endpgm")

    a.label("L_aux")
    if cfg.PRIO_AUX: a(f"s_setprio {cfg.PRIO_AUX}")
    srd(40, 16, 4096)
    srd(44, 22, 512 * 8192)
    srd(48, 28, 512 * 3584)
    a("s_cmp_lt_u32 s2, 224")
    a("s_cselect_b32 s50, s50, 0")
    a("v_and_b32 v4, 15, v0")
    a("v_lshrrev_b32 v5, 4, v0")
    a("v_lshrrev_b32 v6, 2, v4")
    a("v_and_b32 v7, 3, v4")
    a("v_lshl_add_u32 v8, v7, 2, v5"); a("v_lshlrev_b32 v8, 6, v8"); a("v_lshl_add_u32 v8, v6, 10, v8")
    for i in range(4):
        a(f"buffer_load_dwordx4 v[{16+4*i}:{19+4*i}], v8, s[40:43], 0 offen offset:{16*i}")
    a("v_lshlrev_b32 v9, 4, v5"); a("v_lshl_add_u32 v9, v6, 10, v9")
    a("s_lshr_b32 s12, s5, 3")
    a("s_and_b32 s13, s5, 7")
    a("s_and_b32 s14, s2, 7")
    a("s_lshr_b32 s15, s2, 3")
    a("s_lshl_b32 s9, s12, 8"); a("s_lshl_b32 s10, s3, 6"); a("s_add_u32 s9, s9, s10")
    a("buffer_load_dwordx4 v[32:35], v9, s[40:43], s9 offen")
    a("s_lshl_b32 s9, s14, 7"); a("s_and_b32 s10, s3, 1"); a("s_lshl_b32 s10, s10, 6"); a("s_add_u32 s9, s9, s10")
    a("buffer_load_dwordx4 v[36:39], v9, s[40:43], s9 offen")
    a("v_lshrrev_b32 v10, 3, v0"); a("v_and_b32 v11, 7, v0"); a("v_lshlrev_b32 v11, 4, v11")
    a("v_lshl_add_u32 v12, v10, 13, v11")
    a("v_mul_u32_u24 v13, 3584, v10"); a("v_add_u32 v13, v13, v11")
    a("s_lshl_b32 s9, s12, 7"); a("s_lshl_b32 s10, s3, 5"); a("s_add_u32 s9, s9, s10"); a("s_lshl_b32 s9, s9, 13")
    a("s_lshl_b32 s10, s4, 10"); a("s_add_u32 s9, s9, s10"); a("s_lshl_b32 s10, s13, 7"); a("s_add_u32 s9, s9, s10")
    a("s_lshl_b32 s11, s3, 12")
    for i in range(4):
        a(f"s_add_u32 s10, s11, {WQ_BASE + 1024*i}")
        a("s_mov_b32 m0, s10")
        a(f"s_add_u32 s10, s9, {8*8192*i}")
        a(f"buffer_load_dwordx4 v12, s[44:47], s10 offen{NT} lds")
    a("s_lshl_b32 s9, s14, 6"); a("s_lshl_b32 s10, s3, 4"); a("s_add_u32 s9, s9, s10"); a("s_mul_i32 s9, s9, 3584")
    a("s_lshl_b32 s10, s15, 7"); a("s_add_u32 s9, s9, s10")
    a("s_lshl_b32 s11, s3, 11")
    for i in range(2):
        a(f"s_add_u32 s10, s11, {W1_BASE + 1024*i}")
        a("s_mov_b32 m0, s10")
        a(f"s_add_u32 s10, s9, {8*3584*i}")
        a(f"buffer_load_dwordx4 v13, s[48:51], s10 offen{NT} lds")
    Lc = a.new("Lc")
    a("s_cmp_eq_u32 s3, 0")
    a.branch(f"s_cbranch_scc0 {Lc}", flush=False)
    a("s_load_dword s38, s[36:37], 0")
    a.label(Lc, flush=False)
    stamp(1)
    a("s_waitcnt vmcnt(6)")
    for i in range(16):
        a(f"v_lshlrev_b32 v{64+2*i}, 16, v{16+i}")
        a(f"v_and_b32 v{65+2*i}, 0xffff0000, v{16+i}")
    for k in range(0, 8, 2): a(f"v_pk_add_f32 v[{40+k}:{41+k}], v[{64+k}:{65+k}], v[{72+k}:{73+k}]")
    for i in (16, 24):
        for k in range(0, 8, 2): a(f"v_pk_add_f32 v[{40+k}:{41+k}], v[{40+k}:{41+k}], v[{64+i+k}:{65+i+k}]")
    a("v_pk_add_f32 v[40:41], v[40:41], v[42:43]"); a("v_pk_add_f32 v[44:45], v[44:45], v[46:47]"); a("v_pk_add_f32 v[40:41], v[40:41], v[44:45]")
    a("v_add_f32 v40, v40, v41")
    dpp_op("v_add_f32", 40, "x1"); dpp_op("v_add_f32", 40, "x2"); allred_g("v_add_f32", 40, 41)
    a("v_mul_f32 v40, 0x3b000000, v40")
    for i in range(32): a(f"v_sub_f32 v{64+i}, v{64+i}, v40")
    for k in range(4): a(f"v_mul_f32 v{42+k}, v{64+k}, v{64+k}")
    for i in range(4, 32, 4):
        for k in range(4): a(f"v_fmac_f32 v{42+k}, v{64+i+k}, v{64+i+k}")
    a("v_add_f32 v42, v42, v43"); a("v_add_f32 v44, v44, v45"); a("v_add_f32 v42, v42, v44")
    dpp_op("v_add_f32", 42, "x1"); dpp_op("v_add_f32", 42, "x2"); allred_g("v_add_f32", 42, 41)
    a("v_mul_f32 v42, 0x3b000000, v42")
    bf16r(40, 40); bf16r(42, 42)
    a(f"v_add_f32 v42, {hex(EPS)}, v42"); bf16r(42, 42)
    a("v_sqrt_f32 v42, v42"); bf16r(42, 42)
    a("v_rcp_f32 v42, v42")
    for d in range(32, 40):
        a(f"v_lshlrev_b32 v44, 16, v{d}")
        a(f"v_and_b32 v45, 0xffff0000, v{d}")
        a("v_sub_f32 v44, v44, v40"); a("v_sub_f32 v45, v45, v40")
        a("v_cvt_pk_bf16_f32 v46, v44, v45")
        a("v_lshlrev_b32 v44, 16, v46"); a("v_and_b32 v45, 0xffff0000, v46")
        a("v_mul_f32 v44, v44, v42"); a("v_mul_f32 v45, v45, v42")
        a(f"v_cvt_pk_bf16_f32 v{d}, v44, v45")
    a("v_lshlrev_b32 v15, 4, v0")
    a("s_lshl_b32 s9, s3, 10"); a(f"s_add_u32 s9, s9, {XN_BASE}")
    a("v_add_u32 v44, s9, v15")
    a("ds_write_b128 v44, v[32:35]")
    a("s_and_b32 s9, s3, 1"); a("s_lshl_b32 s9, s9, 10"); a(f"s_add_u32 s9, s9, {XN_BASE + 4096}")
    a("v_add_u32 v44, s9, v15")
    a("ds_write_b128 v44, v[36:39]")
    stamp(2)
    a("s_waitcnt vmcnt(0) lgkmcnt(0)")
    Lc = a.new("Lc")
    a("s_cmp_eq_u32 s3, 0")
    a.branch(f"s_cbranch_scc0 {Lc}", flush=False)
    a("s_add_u32 s38, s38, 1")
    a(f"s_and_b32 s39, s38, {TAGM}")
    a("v_mov_b32 v44, s39"); a("v_mov_b32 v45, s38")
    a(f"ds_write_b64 v2, v[44:45] offset:{C_TAG}")
    a.label(Lc)
    lds_add1(C_W)
    lds_wait(C_W, 4, 0x301, sleep=0)
    a(f"ds_read_b32 v14, v2 offset:{C_TAG}")
    stamp(3)
    if XN_BASE: a(f"v_add_u32 v15, {XN_BASE}, v15")
    for f in range(6):
        a(f"ds_read_b128 v[{32+4*f}:{35+4*f}], v15 offset:{1024*f}")
    a("v_lshrrev_b32 v8, 2, v4"); a("v_lshl_add_u32 v9, v5, 3, v8"); a("v_lshlrev_b32 v9, 7, v9"); a("v_lshl_add_u32 v9, v7, 3, v9")
    a("s_lshl_b32 s9, s3, 5")
    a(f"s_add_u32 s10, s9, {WQ_BASE}"); a("v_add_u32 v10, s10, v9")
    a(f"s_add_u32 s10, s9, {W1_BASE}"); a("v_add_u32 v11, s10, v9")
    a("v_mov_b32 v13, v10")
    for ks in range(4):
        a(f"ds_read_b64_tr_b16 v[{64+4*ks}:{65+4*ks}], v10 offset:{4096*ks}")
        a(f"ds_read_b64_tr_b16 v[{66+4*ks}:{67+4*ks}], v10 offset:{4096*ks+512}")
    for ks in range(2):
        a(f"ds_read_b64_tr_b16 v[{80+4*ks}:{81+4*ks}], v11 offset:{4096*ks}")
        a(f"ds_read_b64_tr_b16 v[{82+4*ks}:{83+4*ks}], v11 offset:{4096*ks+512}")
    a("s_waitcnt lgkmcnt(0)")
    lds_add1(C_QS)
    for ks in range(4):
        a(f"v_mfma_f32_16x16x32_bf16 v[56:59], v[{64+4*ks}:{67+4*ks}], v[{32+4*ks}:{35+4*ks}], " + ("0" if ks == 0 else "v[56:59]"))
    for ks in range(2):
        a(f"v_mfma_f32_16x16x32_bf16 v[60:63], v[{80+4*ks}:{83+4*ks}], v[{48+4*ks}:{51+4*ks}], " + ("0" if ks == 0 else "v[60:63]"))
    a("v_lshlrev_b32 v8, 13, v6"); a("v_lshl_add_u32 v8, v5, 4, v8")
    a("s_lshl_b32 s9, s4, 15"); a("s_lshl_b32 s10, s12, 11"); a("s_add_u32 s9, s9, s10")
    a("s_lshl_b32 s10, s13, 8"); a("s_add_u32 s9, s9, s10"); a("s_lshl_b32 s10, s3, 6"); a("s_add_u32 s9, s9, s10")
    a(f"s_add_u32 s9, s9, {QBUF}")
    tag4([56, 57, 58, 59])
    a("s_mov_b32 exec_lo, 0x11111111"); a("s_mov_b32 exec_hi, 0x11111111")
    if "Q" not in cfg.ABL: a("buffer_store_dwordx4 v[56:59], v8, s[52:55], s9 offen sc1")
    a("s_mov_b64 exec, -1")
    Lnh = a.new("Lnh")
    a("s_cmp_lt_u32 s2, 224")
    a.branch(f"s_cbranch_scc0 {Lnh}")
    a("v_lshlrev_b32 v9, 10, v6"); a("v_lshl_add_u32 v9, v5, 4, v9")
    a("s_lshl_b32 s9, s15, 1"); a("s_lshr_b32 s10, s3, 1"); a("s_add_u32 s9, s9, s10"); a("s_lshl_b32 s9, s9, 12")
    a("s_lshl_b32 s10, s14, 7"); a("s_add_u32 s9, s9, s10")
    a("s_and_b32 s10, s3, 1"); a("s_lshl_b32 s10, s10, 6"); a("s_add_u32 s9, s9, s10")
    a(f"s_add_u32 s9, s9, {HBUF}")
    tag4([60, 61, 62, 63])
    a("s_mov_b32 exec_lo, 0x11111111"); a("s_mov_b32 exec_hi, 0x11111111")
    if "H" not in cfg.ABL: a("buffer_store_dwordx4 v[60:63], v9, s[52:55], s9 offen sc1")
    a("s_mov_b64 exec, -1")
    a.label(Lnh)
    stamp(4)
    a("s_mov_b32 s56, 0xaaaaaaaa"); a("s_mov_b32 s57, 0xaaaaaaaa")
    a("s_cmp_eq_u32 s3, 1"); a.branch("s_cbranch_scc1 L_aux1", flush=False)
    a("s_cmp_eq_u32 s3, 2"); a.branch("s_cbranch_scc1 L_aux2", flush=False)
    a("s_cmp_eq_u32 s3, 3"); a.branch("s_cbranch_scc1 L_aux3", flush=False)
    lds_wait(C_CLKQ, 1, 0x310, sleep=cfg.LS)
    a("v_lshlrev_b32 v18, 5, v0")
    a("s_lshl_b32 s9, s4, 2"); a("s_add_u32 s9, s9, s6"); a("s_lshl_b32 s9, s9, 13"); a(f"s_add_u32 s9, s9, {QBUF}")
    a("s_add_u32 s10, s9, 4096")
    ld = [f"buffer_load_dwordx4 v[{64+8*rb+4*hf}:{67+8*rb+4*hf}], v18, s[52:55], {'s9' if rb < 2 else 's10'} offen offset:{(rb&1)*2048+16*hf} sc1" for rb in range(4) for hf in range(2)]
    if "Q" not in cfg.ABL: poll(ld, list(range(64, 96)), 41, 0x311, sleep=cfg.Q_SLEEP)
    for k in range(0, 8, 2):
        a(f"v_pk_add_f32 v[{64+k}:{65+k}], v[{64+k}:{65+k}], v[{72+k}:{73+k}]"); a(f"v_pk_add_f32 v[{80+k}:{81+k}], v[{80+k}:{81+k}], v[{88+k}:{89+k}]")
    for k in range(0, 8, 2): a(f"v_pk_add_f32 v[{64+k}:{65+k}], v[{64+k}:{65+k}], v[{80+k}:{81+k}]")
    for k in range(4): a(f"v_cvt_pk_bf16_f32 v{40+k}, v{64+2*k}, v{65+2*k}")
    a("v_lshlrev_b32 v18, 4, v0"); a(f"v_add_u32 v18, {Q_BASE}, v18")
    a("ds_write_b128 v18, v[40:43]")
    a(f"ds_write_b32 v2, v1 offset:{C_QRDY}")
    stamp(5)
    a.branch("s_branch L_wo")
    a.label("L_aux1")
    a("s_cmp_lt_u32 s2, 224")
    a.branch("s_cbranch_scc0 L_wo", flush=False)
    srd(48, 30, 1792 * 1024)
    a("v_lshrrev_b32 v18, 4, v0"); a("v_and_b32 v19, 15, v0")
    a("v_lshlrev_b32 v20, 1, v18"); a("v_xor_b32 v20, v20, v19"); a("v_lshlrev_b32 v20, 4, v20"); a("v_lshl_add_u32 v20, v18, 10, v20")
    a("v_or_b32 v21, 4, v18"); a("v_lshlrev_b32 v21, 1, v21"); a("v_xor_b32 v21, v21, v19"); a("v_lshlrev_b32 v21, 4, v21"); a("v_lshl_add_u32 v21, v18, 10, v21")
    a("s_lshr_b32 s12, s2, 2"); a("s_lshl_b32 s9, s12, 15"); a("s_and_b32 s10, s2, 3"); a("s_lshl_b32 s10, s10, 8"); a("s_add_u32 s9, s9, s10")
    lds_wait(C_QS, 4, 0x323)
    for i in range(8):
        a(f"s_mov_b32 m0, {W1_BASE + 1024*i}")
        a(f"s_add_u32 s10, s9, {4096*i}")
        if "W" not in cfg.ABL: a(f"buffer_load_dwordx4 v{20 + ((i >> 1) & 1)}, s[48:51], s10 offen{NT} lds")
    a("v_lshlrev_b32 v12, 10, v6"); a("v_lshl_add_u32 v12, v7, 7, v12"); a("v_lshl_add_u32 v12, v5, 5, v12")
    a("v_lshrrev_b32 v8, 2, v4"); a("v_and_b32 v10, 1, v5"); a("v_lshl_add_u32 v10, v10, 2, v8")
    a("v_lshl_add_u32 v22, v5, 3, v8"); a("v_lshlrev_b32 v22, 8, v22"); a("v_lshl_add_u32 v22, v10, 5, v22"); a("v_lshl_add_u32 v22, v7, 3, v22")
    if cfg.H_AT: prog_wait(cfg.H_AT, 0x320, sleep=cfg.LS)
    else: lds_wait(C_CLKQ, 1, 0x320, sleep=cfg.LS)
    a("s_lshl_b32 s9, s12, 12"); a(f"s_add_u32 s9, s9, {HBUF}")
    loads = [f"buffer_load_dwordx4 v[{64+4*i}:{67+4*i}], v12, s[52:55], s9 offen offset:{o} sc1" for i, o in enumerate((0, 16, 512, 528))]
    if "H" not in cfg.ABL and "h" not in cfg.ABL: poll(loads, list(range(64, 80)), 41, 0x321, sleep=cfg.H_SLEEP)
    else: a("s_waitcnt vmcnt(0)")
    for k in range(0, 8, 2): a(f"v_pk_add_f32 v[{64+k}:{65+k}], v[{64+k}:{65+k}], v[{72+k}:{73+k}]")
    for kind in ("x1", "x2"):
        for k in range(8): dpp_op("v_add_f32", 64 + k, kind)
    for k in range(8): a(f"v_max_f32 v{64+k}, 0, v{64+k}")
    for k in range(4): a(f"v_cvt_pk_bf16_f32 v{40+k}, v{64+2*k}, v{65+2*k}")
    for t in range(8):
        a(f"v_xor_b32 v18, {t<<5}, v22")
        a(f"v_add_u32 v18, {W1_BASE}, v18")
        a(f"ds_read_b64_tr_b16 v[{64+4*t}:{65+4*t}], v18")
        a(f"ds_read_b64_tr_b16 v[{66+4*t}:{67+4*t}], v18 offset:1024")
    a("s_waitcnt lgkmcnt(0)")
    a("v_lshlrev_b32 v19, 1, v7"); a("v_lshrrev_b32 v20, 1, v5"); a("v_add_u32 v19, v19, v20"); a("v_lshlrev_b32 v19, 13, v19")
    a("v_lshl_add_u32 v19, v6, 5, v19"); a("v_and_b32 v20, 1, v5"); a("v_lshl_add_u32 v19, v20, 4, v19")
    a("s_and_b32 s9, s2, 3"); a("s_lshl_b32 s9, s9, 17"); a("s_lshl_b32 s10, s12, 7"); a("s_add_u32 s9, s9, s10"); a(f"s_add_u32 s9, s9, {YBUF}")
    a("s_mov_b32 s62, 0xcccccccc"); a("s_mov_b32 s63, 0xcccccccc")
    for t in range(2):
        A, D = 64 + 16 * t, 96
        for q in range(4):
            a(f"v_mfma_f32_16x16x32_bf16 v[{D+4*q}:{D+4*q+3}], v[{A+4*q}:{A+4*q+3}], v[40:43], 0")
        for r in range(4): a(f"v_cndmask_b32 v{44+r}, v{D+r}, v{D+4+r}, s[56:57]")
        for r in range(4): a(f"v_cndmask_b32 v{D+r}, v{D+8+r}, v{D+12+r}, s[56:57]")
        for r in range(4): a(f"v_cndmask_b32 v{44+r}, v{44+r}, v{D+r}, s[62:63]")
        tag4([44, 45, 46, 47])
        if t == 1: a("s_add_u32 s9, s9, 0x10000")
        if "Y" not in cfg.ABL: a("buffer_store_dwordx4 v[44:47], v19, s[52:55], s9 offen sc1")
    stamp(5)
    a.branch("s_branch L_wo")
    a.label("L_aux2")
    lds_wait(C_P, 8, 0x330, sleep=cfg.LS)
    a(f"v_mov_b32 v18, {MX_BASE}")
    for h in range(4):
        a(f"ds_read_b128 v[{64+8*h}:{67+8*h}], v18 offset:{32*h}")
        a(f"ds_read_b128 v[{68+8*h}:{71+8*h}], v18 offset:{32*h+16}")
        a(f"ds_read_b128 v[{96+8*h}:{99+8*h}], v18 offset:{128+32*h}")
        a(f"ds_read_b128 v[{100+8*h}:{103+8*h}], v18 offset:{128+32*h+16}")
    a("s_waitcnt lgkmcnt(0)")
    for h in range(4):
        B = 64 + 8 * h
        a(f"v_max3_f32 v{44+h}, v{B}, v{B+1}, v{B+2}"); a(f"v_max3_f32 v{44+h}, v{44+h}, v{B+3}, v{B+4}")
        a(f"v_max3_f32 v{44+h}, v{44+h}, v{B+5}, v{B+6}"); a(f"v_max_f32 v{44+h}, v{44+h}, v{B+7}")
        B = 96 + 8 * h
        a(f"v_add_f32 v{48+h}, v{B}, v{B+1}")
        for k in range(2, 8): a(f"v_add_f32 v{48+h}, v{48+h}, v{B+k}")
    for h in range(4): a(f"v_cndmask_b32 v{52+h}, v{44+h}, v{48+h}, s[56:57]")
    tag4([52, 53, 54, 55])
    a("s_lshl_b32 s9, s4, 10"); a(f"s_add_u32 s9, s9, {MLBUF}")
    a("s_lshl_b32 s10, s5, 5"); a("s_add_u32 s10, s10, s9")
    a("v_lshlrev_b32 v18, 4, v0")
    a("s_mov_b64 exec, 3")
    if "M" not in cfg.ABL: a("buffer_store_dwordx4 v[52:55], v18, s[52:55], s10 offen sc1")
    a("s_mov_b64 exec, -1")
    stamp(5)
    prog_wait(cfg.ML_AT, 0x332, sleep=cfg.LS)
    if "M" not in cfg.ABL: poll(["buffer_load_dwordx4 v[64:67], v18, s[52:55], s9 offen sc1"], [64, 65, 66, 67], 41, 0x331, sleep=cfg.ML_SLEEP)
    for h in range(1, 4):
        a(f"s_cmp_eq_u32 s6, {h}")
        a("s_cselect_b64 s[62:63], -1, 0")
        a(f"v_cndmask_b32 v64, v64, v{64+h}, s[62:63]")
    a(f"v_mov_b32_dpp v65, v64 {DPP['x1']} row_mask:0xf bank_mask:0xf")
    a("v_cndmask_b32 v66, v64, v65, s[56:57]")
    a("v_cndmask_b32 v67, v65, v64, s[56:57]")
    a("v_mov_b32 v68, v66")
    for kind in ("x2", "r4", "r8"): dpp_op("v_max_f32", 68, kind)
    a("v_sub_f32 v66, v66, v68"); a(f"v_mul_f32 v66, {hex(LOG2E)}, v66"); a("v_exp_f32 v66, v66")
    a("v_mul_f32 v67, v66, v67")
    for kind in ("x2", "r4", "r8"): dpp_op("v_add_f32", 67, kind)
    a("v_rcp_f32 v67, v67")
    a("v_mul_f32 v66, v66, v67")
    a("v_lshrrev_b32 v18, 1, v0"); a("v_lshlrev_b32 v18, 2, v18"); a(f"v_add_u32 v18, {SC_BASE}, v18")
    a("ds_write_b32 v18, v66")
    a(f"ds_write_b32 v2, v1 offset:{C_SC}")
    a.branch("s_branch L_wo")
    a.label("L_aux3")
    a("s_getreg_b32 s12, hwreg(HW_REG_XCC_ID, 0, 4)")
    a("s_lshl_b32 s12, s12, 16")
    for k in range(4): a(f"v_mov_b32 v{64+k}, s12")
    tag4([64, 65, 66, 67])
    a("s_lshl_b32 s9, s4, 9"); a(f"s_add_u32 s9, s9, {XCBUF}")
    a("s_lshl_b32 s10, s5, 4"); a("s_add_u32 s10, s10, s9")
    a("v_mov_b32 v18, 0")
    a("s_mov_b64 exec, 1")
    a("buffer_store_dwordx4 v[64:67], v18, s[52:55], s10 offen sc1")
    a("s_mov_b64 exec, -1")
    prog_wait(cfg.XC_AT, 0x343, sleep=cfg.LS)
    a("v_and_b32 v18, 31, v0"); a("v_lshlrev_b32 v18, 4, v18")
    poll(["buffer_load_dwordx4 v[64:67], v18, s[52:55], s9 offen sc1"], [64, 65, 66, 67], 41, 0x344, sleep=8)
    a("v_cmp_ne_u32 vcc, s12, v64")
    a("s_cmp_eq_u64 vcc, 0")
    a("s_cselect_b32 s9, 1, 2")
    if cfg.FORCE_REMOTE: a("s_mov_b32 s9, 2")
    a("v_mov_b32 v18, s9")
    a(f"ds_write_b32 v2, v18 offset:{C_LOC}")
    if cfg.WARM:
        a("v_lshlrev_b32 v18, 4, v0")
        a("s_lshl_b32 s9, s4, 16"); a("s_lshl_b32 s10, s5, 11"); a("s_add_u32 s9, s9, s10"); a(f"s_add_u32 s9, s9, {OBUF}")
        a("buffer_load_dwordx4 v[64:67], v18, s[52:55], s9 offen sc1")
        a("buffer_load_dwordx4 v[68:71], v18, s[52:55], s9 offen offset:1024 sc1")
        a("s_waitcnt vmcnt(0)")
    stamp(5)
    a.label("L_wo")
    a("s_lshl_b32 s9, s4, 2"); a("s_add_u32 s15, s9, s6")
    a("v_lshlrev_b32 v12, 12, v6"); a("v_lshl_add_u32 v12, v7, 9, v12"); a("v_lshl_add_u32 v12, v5, 5, v12")
    a("s_lshl_b32 s9, s15, 14"); a("s_lshl_b32 s10, s3, 7"); a("s_add_u32 s9, s9, s10"); a(f"s_add_u32 s13, s9, {OBUF}")
    a("v_lshrrev_b32 v18, 1, v5"); a("v_lshlrev_b32 v15, 12, v18")
    a("v_lshl_add_u32 v15, v6, 5, v15"); a("v_and_b32 v18, 1, v5"); a("v_lshl_add_u32 v15, v18, 4, v15")
    a("s_lshl_b32 s10, s7, 15"); a("s_lshl_b32 s11, s15, 7"); a("s_add_u32 s10, s10, s11")
    a("s_lshl_b32 s11, s3, 13"); a("s_add_u32 s10, s10, s11"); a(f"s_add_u32 s14, s10, {SBUF}")
    a("v_lshlrev_b32 v10, 4, v0"); a("s_lshl_b32 s9, s3, 10"); a(f"s_add_u32 s9, s9, {DX_BASE}"); a("v_add_u32 v105, s9, v10")
    a(f"v_add_u32 v104, {DX_BASE}, v10")
    a("v_lshl_add_u32 v10, v6, 3, v7"); a("v_lshlrev_b32 v10, 2, v10"); a(f"v_add_u32 v10, {SC_BASE}, v10")
    prog_wait(13, 0x356, sleep=cfg.LS)
    lds_wait(C_SC, 1, 0x357)
    a("ds_read2_b32 v[98:99], v10 offset0:0 offset1:4")
    prog_wait(17, 0x350)
    stamp(6)
    for ks in range(4):
        a(f"ds_read_b64_tr_b16 v[{64+4*ks}:{65+4*ks}], v13 offset:{4096*ks}")
        a(f"ds_read_b64_tr_b16 v[{66+4*ks}:{67+4*ks}], v13 offset:{4096*ks+512}")
    lds_wait(C_O, 8, 0x352, sleep=0)
    loads = [f"buffer_load_dwordx4 v[{16+4*i}:{19+4*i}], v12, s[52:55], s13 offen offset:{o} sc1" for i, o in enumerate((0, 16, 2048, 2064))]
    poll(loads, list(range(16, 32)), 3, 0x351, adaptive=True)
    stamp(7)
    for k in range(0, 8, 2): a(f"v_pk_mul_f32 v[{16+k}:{17+k}], v[{16+k}:{17+k}], v[98:99] op_sel_hi:[1,0]")
    for k in range(0, 8, 2): a(f"v_pk_fma_f32 v[{16+k}:{17+k}], v[{24+k}:{25+k}], v[98:99], v[{16+k}:{17+k}] op_sel:[0,1,0] op_sel_hi:[1,1,1]")
    for kind in ("x1", "x2"):
        for k in range(8): dpp_op("v_add_f32", 16 + k, kind)
    for k in range(4): a(f"v_cvt_pk_bf16_f32 v{8+k}, v{16+2*k}, v{17+2*k}")
    a("ds_write_b128 v105, v[8:11]")
    lds_add1(C_D)
    lds_wait(C_D, 4, 0x353, sleep=0)
    for w in range(4): a(f"ds_read_b128 v[{48+4*w}:{51+4*w}], v104 offset:{1024*w}")
    for ks in range(4):
        a(f"s_waitcnt lgkmcnt({3-ks})")
        a(f"v_mfma_f32_16x16x32_bf16 v[32:35], v[{64+4*ks}:{67+4*ks}], v[{48+4*ks}:{51+4*ks}], " + ("0" if ks == 0 else "v[32:35]"))
    tag4([32, 33, 34, 35])
    a("s_mov_b32 exec_lo, 0x11111111"); a("s_mov_b32 exec_hi, 0x11111111")
    a("buffer_store_dwordx4 v[32:35], v15, s[52:55], s14 offen sc1")
    a("s_mov_b64 exec, -1")
    stamp(8)
    stamps_out(9, dbgmap={"wave": 3, 0: 2, 1: 3, 2: 4, 3: 5, 4: 6, 6: 7, 7: 8, 8: 9})
    a("s_endpgm")
    a.label("L_fail")
    a("v_mov_b32 v4, s61"); a("s_lshl_b32 s9, s3, 2"); a("v_mov_b32 v5, s9")
    a("s_mov_b64 exec, 1")
    a("global_store_dword v5, v4, s[34:35]")
    a.label("L_exit", flush=False)
    a("s_endpgm")
    return a

def wrap(a, lds=LDS_SIZE):
    hdr = open(REF).read().split("; Override launch geometry")[0]
    s = hdr
    s += "; Generated by gen/k4.py (hand-written schedule, see comments).\n"
    s += f"; @launch grid=(256,1,1) block=(1024,1,1) lds={lds}\n"
    s += '.amdgcn_target "amdgcn-amd-amdhsa--gfx950"\n.text\n'
    s += f".globl {KNAME}\n.p2align 8\n.type {KNAME},@function\n{KNAME}:\n"
    s += a.text().replace("CODE_KIB", "(L_code_end-" + KNAME + ")/1024")
    s += "L_code_end:\n"
    s += '.section .rodata,"a"\n.p2align 6\n'
    s += f".amdhsa_kernel {KNAME}\n"
    s += "  .amdhsa_next_free_vgpr 128\n  .amdhsa_next_free_sgpr 102\n  .amdhsa_accum_offset 128\n"
    s += "  .amdhsa_group_segment_fixed_size 0\n  .amdhsa_kernarg_size 88\n  .amdhsa_user_sgpr_count 2\n"
    s += "  .amdhsa_user_sgpr_kernarg_segment_ptr 1\n  .amdhsa_system_sgpr_workgroup_id_x 1\n"
    s += ".end_amdhsa_kernel\n"
    return s

if __name__ == "__main__":
    out = sys.argv[1]
    class C(Cfg): pass
    for kv in sys.argv[2:]:
        k, v = kv.split("=")
        cur = getattr(Cfg, k)
        if isinstance(cur, bool): val = (v == "1")
        elif isinstance(cur, int): val = int(v, 0)
        else: val = v.replace("_", " ")
        setattr(C, k, val)
    a = build(C)
    open(out, "w").write(wrap(a))
    print(out, "instructions:", a.ninst)
```

```python
import sys, os
sys.path.insert(0, os.path.dirname(os.path.abspath(__file__)))
from dsl import Asm

KNAME = "recurrent_scan__sliding_block_cached__dense_activation_relu__decode_kernel"
REF = "recurrent_scan__sliding_block_cached__dense_activation_relu__decode.s.ref"

V_BASE = 0
XN_BASE = 0
WQ_BASE = 131072
W1_BASE = 147456
P_BASE = 155648
P_STRIDE = 1088
DX_BASE = P_BASE
Q_BASE = 160000
MX_BASE = 161024
LX_BASE = 161152
SC_BASE = 161280
CNT_BASE = 161408
G_BASE = CNT_BASE + 256
LDS_SIZE = 163840
C_W, C_QS, C_KI, C_CLKQ, C_QRDY, C_M, C_P, C_SC = [4 * i for i in range(8)]
C_PROG = 32
C_O, C_LOC, C_TAG, C_EP, C_D, C_W2, C_G, C_S = 48, 52, 56, 60, 64, 68, 72, 76
QBUF = 0x10000
HBUF = 0x60000
MLBUF = 0xA0000
OBUF = 0xB0000
YBUF = 0x140000
SBUF = 0x200000
XCBUF = 0x240000
WS_USED = 0x300000
DIAG = 0x800000
TAGM = 0x3FF
LOG2E = 0x3fb8aa3b
SCALE = 0x3db504f3
EPS = 0x3727c5ac

class Cfg:
    VW = 8
    CLK_WAVE = 5
    KI_TARGET = 8
    STAMP = False
    SMIN = False
    DBGSTAMP = False
    DBGWG = 100
    LDS_LIMIT = 1 << 22
    G_LIMIT = 1 << 20
    NT = " nt"
    PRIO_AUX = 3
    PRIO_K = 1
    PRIO_LD = 0
    Q_SLEEP = 4
    H_AT = 2
    H_SLEEP = 8
    ML_AT = 12
    ML_SLEEP = 8
    XC_AT = 3
    Y_SLEEP = 4
    SL_THR = 16
    SL_LONG = 4
    S_SLEEP = 0
    LS = 8
    PVS = 4
    PV_TIGHT = 12
    WARM = True
    PREF = True
    FORCE_REMOTE = False
    ABL = ""
    FFN_LD = False
    OUT_SC1 = False
    S_GATE = 0
    EARLY_POLL = False
    O_NOP = 0
    G_SPLIT = False
    ROTMUL = 0x9E3779B1

def build(cfg=Cfg):
    a = Asm()
    NT = cfg.NT
    stamping = cfg.STAMP or cfg.DBGSTAMP
    def stamp(i):
        if cfg.SMIN and i not in (0, 10): return
        if stamping: a(f"s_memrealtime s[{64+2*i}:{65+2*i}]")
    def stamps_out(n, final=False, dbgmap=None):
        if cfg.DBGSTAMP and dbgmap is not None:
            a("s_waitcnt lgkmcnt(0)")
            a("s_mov_b64 exec, 1")
            a("v_mov_b32 v4, 0")
            Lq = a.new("Lq")
            a(f"s_cmp_eq_u32 s2, {cfg.DBGWG}")
            a.branch(f"s_cbranch_scc0 {Lq}")
            a(f"s_cmp_eq_u32 s3, {dbgmap['wave']}")
            a.branch(f"s_cbranch_scc0 {Lq}")
            for i, slot in dbgmap.items():
                if isinstance(i, int):
                    a(f"v_mov_b32 v5, s{64+2*i}")
                    a(f"global_store_dword v4, v5, s[34:35] offset:{4*slot}")
            a.label(Lq)
            a("s_mov_b64 exec, -1")
        if cfg.STAMP and (final or not cfg.SMIN):
            a("s_waitcnt lgkmcnt(0)")
            a("s_lshl_b32 s9, s2, 4"); a("s_add_u32 s9, s9, s3"); a("s_lshl_b32 s9, s9, 6"); a(f"s_add_u32 s9, s9, {DIAG}")
            a("s_add_u32 s10, s36, s9"); a("s_addc_u32 s11, s37, 0")
            a("v_mov_b32 v4, 0")
            a("s_mov_b64 exec, 1")
            for i in range(n):
                a(f"v_mov_b32 v5, s{64+2*i}")
                a(f"global_store_dword v4, v5, s[10:11] offset:{4*i}")
            a("s_mov_b64 exec, -1")
    def fail_to(code):
        a(f"s_mov_b32 s61, {code}")
        a.branch("s_branch L_fail")
    def spin_tail(L, code, sleep, limit):
        if sleep: a(f"s_sleep {sleep}")
        a("s_add_u32 s60, s60, 1")
        a(f"s_cmp_lt_u32 s60, {limit}")
        a.branch(f"s_cbranch_scc1 {L}")
        fail_to(code)
    def lds_wait(off, target, code, vt="v24", sleep=1):
        L, D = a.new("Lw"), a.new("Ld")
        a("s_mov_b32 s60, 0")
        a.label(L)
        a(f"ds_read_b32 {vt}, v2 offset:{off}")
        a("s_waitcnt lgkmcnt(0)")
        a(f"v_readfirstlane_b32 s62, {vt}")
        a(f"s_cmp_ge_u32 s62, {target}")
        a.branch(f"s_cbranch_scc1 {D}", flush=False)
        spin_tail(L, code, sleep, cfg.LDS_LIMIT)
        a.label(D, flush=False)
    def prog_wait(target, code, vt=24, sleep=1):
        L, D = a.new("Lp"), a.new("Ld")
        a("s_mov_b32 s60, 0")
        a.label(L)
        a(f"ds_read_b128 v[{vt}:{vt+3}], v2 offset:{C_PROG}")
        a("s_waitcnt lgkmcnt(0)")
        a(f"v_min_u32 v{vt}, v{vt}, v{vt+1}")
        a(f"v_min3_u32 v{vt}, v{vt}, v{vt+2}, v{vt+3}")
        a(f"v_readfirstlane_b32 s62, v{vt}")
        a(f"s_cmp_ge_u32 s62, {target}")
        a.branch(f"s_cbranch_scc1 {D}", flush=False)
        spin_tail(L, code, sleep, cfg.LDS_LIMIT)
        a.label(D, flush=False)
    def lds_add1(off):
        a("s_mov_b64 exec, 1")
        a(f"ds_add_u32 v2, v1 offset:{off}")
        a("s_mov_b64 exec, -1")
    def srd(dst, lo, size, add=None):
        if add is None:
            a(f"s_mov_b32 s{dst}, s{lo}"); a(f"s_mov_b32 s{dst+1}, s{lo+1}")
        else:
            a(f"s_add_u32 s{dst}, s{lo}, {add}"); a(f"s_addc_u32 s{dst+1}, s{lo+1}, 0")
        a(f"s_mov_b32 s{dst+2}, {size}")
        a(f"s_mov_b32 s{dst+3}, 0x20000")
    def tag4(regs, vtag=14):
        for r in regs: a(f"v_add_u32 v{r}, 0x200, v{r}")
        for r in regs: a(f"v_and_or_b32 v{r}, v{r}, s58, v{vtag}")
    def poll(loads, regs, acc, code, sleep=0, adaptive=False, vtag=14, preloaded=False):
        L, D = a.new("Lg"), a.new("Ld")
        a("s_mov_b32 s60, 0")
        if preloaded:
            Lc_ = a.new("Lgc")
            a.branch(f"s_branch {Lc_}")
        a.label(L)
        for l in loads: a(l)
        if preloaded: a.label(Lc_)
        a("s_waitcnt vmcnt(0)")
        for r in regs: a(f"v_xor_b32 v{r}, v{vtag}, v{r}")
        it = list(regs)
        a(f"v_or3_b32 v{acc}, v{it[0]}, v{it[1]}, v{it[2]}"); it = it[3:]
        while len(it) >= 2:
            a(f"v_or3_b32 v{acc}, v{it[0]}, v{it[1]}, v{acc}"); it = it[2:]
        if it: a(f"v_or_b32 v{acc}, v{it[0]}, v{acc}")
        a(f"v_and_b32 v{acc}, {TAGM}, v{acc}")
        a(f"v_cmp_ne_u32 vcc, 0, v{acc}")
        a("s_cmp_eq_u64 vcc, 0")
        a.branch(f"s_cbranch_scc1 {D}", flush=False)
        a("s_mov_b64 exec, vcc")
        if adaptive and cfg.SL_LONG:
            Ls = a.new("Ls")
            a("s_bcnt1_i32_b64 s61, vcc")
            a(f"s_cmp_gt_u32 s61, {cfg.SL_THR}")
            a.branch(f"s_cbranch_scc0 {Ls}", flush=False)
            a(f"s_sleep {cfg.SL_LONG}")
            a.label(Ls, flush=False)
        if sleep: a(f"s_sleep {sleep}")
        a("s_add_u32 s60, s60, 1")
        a(f"s_cmp_lt_u32 s60, {cfg.G_LIMIT}")
        a.branch(f"s_cbranch_scc1 {L}")
        a("s_mov_b64 exec, -1")
        fail_to(code)
        a.label(D, flush=False)
        a("s_mov_b64 exec, -1")
    def bf16r(dst, src):
        a(f"v_cvt_pk_bf16_f32 v{dst}, v{src}, v{src}")
        a(f"v_lshlrev_b32 v{dst}, 16, v{dst}")
    DPP = {"x1": "quad_perm:[1,0,3,2]", "x2": "quad_perm:[2,3,0,1]", "r4": "row_ror:4", "r8": "row_ror:8"}
    def dpp_op(op, reg, kind):
        a(f"{op}_dpp v{reg}, v{reg}, v{reg} {DPP[kind]} row_mask:0xf bank_mask:0xf")
    def allred_g(op, reg, tmp):
        for sw in ("v_permlane16_swap_b32", "v_permlane32_swap_b32"):
            a(f"v_mov_b32 v{tmp}, v{reg}")
            a(f"{sw} v{reg}, v{tmp}")
            a(f"{op} v{reg}, v{reg}, v{tmp}")
    def red32(r):
        a(f"v_permlane32_swap_b32 v{r}, v{r+1}")
        a(f"v_permlane32_swap_b32 v{r+2}, v{r+3}")
        a(f"v_add_f32 v{r}, v{r}, v{r+1}")
        a(f"v_add_f32 v{r+2}, v{r+2}, v{r+3}")
        a(f"v_permlane16_swap_b32 v{r}, v{r+2}")
        a(f"v_add_f32 v{r}, v{r}, v{r+2}")
        dpp_op("v_add_f32", r, "r8")
    def kv_region(dst, lo):
        a("s_lshl_b32 s9, s6, 3"); a("s_add_u32 s9, s9, s4"); a("s_lshl_b32 s9, s9, 22")
        a("s_lshl_b32 s10, s7, 17"); a("s_add_u32 s9, s9, s10"); a(f"s_add_u32 s9, s9, {12288*256}")
        srd(dst, lo, 131072, add="s9")

    H_OFFS = (0, 16, 512, 528)
    def ffn2_setup():
        a("v_lshlrev_b32 v23, 10, v6"); a("v_lshl_add_u32 v23, v7, 7, v23"); a("v_lshl_add_u32 v23, v5, 5, v23")
        a("v_lshrrev_b32 v16, 2, v4"); a("v_and_b32 v17, 1, v5"); a("v_lshl_add_u32 v17, v17, 2, v16")
        a("v_lshl_add_u32 v22, v5, 3, v16"); a("v_lshlrev_b32 v22, 8, v22"); a("v_lshl_add_u32 v22, v17, 5, v22"); a("v_lshl_add_u32 v22, v7, 3, v22")
        a("s_lshr_b32 s86, s2, 2")
        a("s_lshl_b32 s87, s86, 12"); a(f"s_add_u32 s87, s87, {HBUF}")
        a("v_lshlrev_b32 v19, 1, v7"); a("v_lshrrev_b32 v20, 1, v5"); a("v_add_u32 v19, v19, v20"); a("v_lshlrev_b32 v19, 13, v19")
        a("v_lshl_add_u32 v19, v6, 5, v19"); a("v_and_b32 v20, 1, v5"); a("v_lshl_add_u32 v19, v20, 4, v19")
        a("s_and_b32 s88, s2, 3"); a("s_lshl_b32 s88, s88, 17"); a("s_lshl_b32 s89, s86, 7"); a("s_add_u32 s88, s88, s89"); a(f"s_add_u32 s88, s88, {YBUF}")
    def ffn2_loads():
        return [f"buffer_load_dwordx4 v[{64+4*i}:{67+4*i}], v23, s[52:55], s87 offen offset:{o} sc1" for i, o in enumerate(H_OFFS)]
    def ffn2_rest(preloaded):
        if "H" not in cfg.ABL and "h" not in cfg.ABL: poll(ffn2_loads(), list(range(64, 80)), 41, 0x321, sleep=cfg.H_SLEEP, preloaded=preloaded)
        else: a("s_waitcnt vmcnt(0)")
        for k in range(0, 8, 2): a(f"v_pk_add_f32 v[{64+k}:{65+k}], v[{64+k}:{65+k}], v[{72+k}:{73+k}]")
        for kind in ("x1", "x2"):
            for k in range(8): dpp_op("v_add_f32", 64 + k, kind)
        for k in range(8): a(f"v_max_f32 v{64+k}, 0, v{64+k}")
        for k in range(4): a(f"v_cvt_pk_bf16_f32 v{40+k}, v{64+2*k}, v{65+2*k}")
        for t in range(8):
            a(f"v_xor_b32 v18, {t<<5}, v22")
            a(f"v_add_u32 v18, {W1_BASE}, v18")
            a(f"ds_read_b64_tr_b16 v[{64+4*t}:{65+4*t}], v18")
            a(f"ds_read_b64_tr_b16 v[{66+4*t}:{67+4*t}], v18 offset:1024")
        a("s_waitcnt lgkmcnt(0)")
        a("s_mov_b32 s62, 0xcccccccc"); a("s_mov_b32 s63, 0xcccccccc")
        for t in range(2):
            A, D = 64 + 16 * t, 96
            for q in range(4):
                a(f"v_mfma_f32_16x16x32_bf16 v[{D+4*q}:{D+4*q+3}], v[{A+4*q}:{A+4*q+3}], v[40:43], 0")
            for r in range(4): a(f"v_cndmask_b32 v{44+r}, v{D+r}, v{D+4+r}, s[56:57]")
            for r in range(4): a(f"v_cndmask_b32 v{D+r}, v{D+8+r}, v{D+12+r}, s[56:57]")
            for r in range(4): a(f"v_cndmask_b32 v{44+r}, v{44+r}, v{D+r}, s[62:63]")
            tag4([44, 45, 46, 47])
            if t == 1: a("s_add_u32 s88, s88, 0x10000")
            if "Y" not in cfg.ABL: a("buffer_store_dwordx4 v[44:47], v19, s[52:55], s88 offen sc1")

    a("s_cmp_ge_u32 s2, 256")
    a.branch("s_cbranch_scc1 L_exit", flush=False)
    a("s_load_dwordx16 s[16:31], s[0:1], 0")
    a("s_load_dwordx4 s[32:35], s[0:1], 64")
    a("s_load_dwordx2 s[36:37], s[0:1], 80")
    stamp(0)
    a("v_lshrrev_b32 v1, 6, v0")
    a("v_and_b32 v0, 63, v0")
    a("v_readfirstlane_b32 s3, v1")
    a("s_and_b32 s4, s2, 7")
    a("s_lshr_b32 s5, s2, 3")
    a("s_lshr_b32 s6, s5, 3")
    a("s_and_b32 s7, s5, 7")
    a(f"s_mul_i32 s8, s2, {hex(cfg.ROTMUL)}")
    a("s_lshr_b32 s8, s8, 26")
    a(f"v_mov_b32 v2, {CNT_BASE}")
    a("v_mov_b32 v1, 1")
    a(f"s_mov_b32 s58, {(~TAGM) & 0xffffffff}")
    Lc = a.new("Lc")
    a("s_cmp_eq_u32 s3, 12")
    a.branch(f"s_cbranch_scc0 {Lc}")
    a("v_lshl_add_u32 v14, v0, 2, v2")
    a("v_mov_b32 v15, 0")
    a("ds_write_b32 v14, v15")
    if cfg.PREF:
        a("s_getpc_b64 s[10:11]")
        a("s_and_b32 s10, s10, 0xffffff00")
        a("s_lshl_b32 s9, s5, 10")
        a("v_lshl_add_u32 v16, v0, 4, s9")
        a("s_cmp_lt_u32 s5, CODE_KIB")
        Lp = a.new("Lp")
        a.branch(f"s_cbranch_scc0 {Lp}")
        a("global_load_dwordx4 v[20:23], v16, s[10:11]")
        a.label(Lp)
    a("s_waitcnt lgkmcnt(0)")
    a.label(Lc)
    a("s_barrier")
    a("s_waitcnt lgkmcnt(0)")
    srd(52, 36, WS_USED)
    a("s_cmp_lt_u32 s3, 4")
    a.branch("s_cbranch_scc1 L_aux", flush=False)
    a("s_cmp_ge_u32 s3, 12")
    a.branch("s_cbranch_scc1 L_loader", flush=False)

    if cfg.PRIO_K: a(f"s_setprio {cfg.PRIO_K}")
    a("s_sub_u32 s12, s3, 4")
    kv_region(40, 18)
    a("v_and_b32 v4, 15, v0")
    a("v_lshrrev_b32 v5, 4, v0")
    a("v_lshrrev_b32 v6, 1, v4")
    a("v_lshlrev_b32 v6, 8, v6")
    a("v_and_b32 v7, 1, v4")
    a("v_lshl_add_u32 v6, v7, 6, v6")
    a("v_lshl_add_u32 v3, v5, 4, v6")
    a("s_lshl_b32 s13, s12, 3"); a("s_add_u32 s13, s13, s8")
    KREG = 64
    for i in range(16):
        m, s = i >> 1, i & 1
        if i == 15:
            Lx = a.new("Lk")
            a(f"s_cmp_eq_u32 s12, {cfg.CLK_WAVE}")
            a.branch(f"s_cbranch_scc0 {Lx}", flush=False)
            a(f"ds_write_b32 v2, v1 offset:{C_CLKQ}")
            a.label(Lx, flush=False)
        if s == 0:
            a(f"s_add_u32 s10, s13, {m}")
            a("s_and_b32 s10, s10, 63")
            a("s_lshl_b32 s10, s10, 11")
        a(f"buffer_load_dwordx4 v[{KREG+4*i}:{KREG+4*i+3}], v3, s[40:43], s10 offen offset:{s*128}{NT}")
        if i == 0: stamp(8)
    lds_add1(C_KI)
    stamp(1)
    a("v_lshrrev_b32 v6, 1, v4"); a("v_and_b32 v6, 3, v6")
    a("v_lshlrev_b32 v8, 8, v6")
    a("v_lshl_add_u32 v8, v7, 6, v8")
    a("v_lshl_add_u32 v8, v5, 4, v8")
    a(f"v_add_u32 v8, {Q_BASE}, v8")
    a("s_mov_b32 s56, 0xaaaaaaaa"); a("s_mov_b32 s57, 0xaaaaaaaa")
    lds_wait(C_QRDY, 1, 0x101, sleep=cfg.LS)
    a("ds_read_b128 v[12:15], v8 offset:128")
    a("ds_read_b128 v[8:11], v8")
    stamp(2)
    a("s_waitcnt lgkmcnt(0)")
    for m in range(8):
        a(f"s_waitcnt vmcnt({14-2*m})")
        D = 32 + 4 * m
        a(f"v_mfma_f32_16x16x32_bf16 v[{D}:{D+3}], v[{KREG+8*m}:{KREG+8*m+3}], v[8:11], 0")
        a(f"v_mfma_f32_16x16x32_bf16 v[{D}:{D+3}], v[{KREG+8*m+4}:{KREG+8*m+7}], v[12:15], v[{D}:{D+3}]")
    stamp(3)
    for m in range(8):
        D = 32 + 4 * m
        a(f"v_add_f32_dpp v24, v{D+1}, v{D} {DPP['x1']} row_mask:0xf bank_mask:0xf")
        a(f"v_add_f32_dpp v25, v{D+2}, v{D+3} {DPP['x1']} row_mask:0xf bank_mask:0xf")
        a(f"v_cndmask_b32 v{16+m}, v24, v25, s[56:57]")
    for m in range(0, 8, 2):
        x, y = 16 + m, 17 + m
        a(f"v_cvt_pk_bf16_f32 v24, v{x}, v{y}")
        a(f"v_lshlrev_b32 v{x}, 16, v24")
        a(f"v_and_b32 v{y}, 0xffff0000, v24")
        a(f"v_mul_f32 v{x}, {hex(SCALE)}, v{x}")
        a(f"v_mul_f32 v{y}, {hex(SCALE)}, v{y}")
        a(f"v_cvt_pk_bf16_f32 v24, v{x}, v{y}")
        a(f"v_lshlrev_b32 v{x}, 16, v24")
        a(f"v_and_b32 v{y}, 0xffff0000, v24")
    a("v_max3_f32 v24, v16, v17, v18"); a("v_max3_f32 v24, v24, v19, v20"); a("v_max3_f32 v24, v24, v21, v22"); a("v_max_f32 v24, v24, v23")
    dpp_op("v_max_f32", 24, "x1")
    allred_g("v_max_f32", 24, 25)
    a("v_lshlrev_b32 v26, 5, v6")
    a("s_lshl_b32 s9, s12, 2"); a(f"s_add_u32 s9, s9, {MX_BASE}")
    a("v_add_u32 v27, s9, v26")
    a("ds_write_b32 v27, v24")
    lds_add1(C_M)
    lds_wait(C_M, 8, 0x102, vt="v25", sleep=0)
    a(f"v_add_u32 v28, {MX_BASE}, v26")
    a("ds_read_b128 v[32:35], v28")
    a("ds_read_b128 v[36:39], v28 offset:16")
    a("s_waitcnt lgkmcnt(0)")
    a("v_max3_f32 v24, v32, v33, v34"); a("v_max3_f32 v24, v24, v35, v36"); a("v_max3_f32 v24, v24, v37, v38"); a("v_max_f32 v24, v24, v39")
    for m in range(8): a(f"v_sub_f32 v{16+m}, v{16+m}, v24")
    for m in range(8): a(f"v_mul_f32 v{16+m}, {hex(LOG2E)}, v{16+m}")
    for m in range(8): a(f"v_exp_f32 v{16+m}, v{16+m}")
    a(f"v_mul_u32_u24 v29, {P_STRIDE}, v6")
    a("v_lshl_add_u32 v29, v5, 2, v29")
    a("v_lshl_add_u32 v29, v7, 1, v29")
    a("s_lshl_b32 s9, s12, 7"); a(f"s_add_u32 s9, s9, {P_BASE}")
    a("v_add_u32 v29, s9, v29")
    for m in range(8):
        a(f"v_cvt_pk_bf16_f32 v{32+m}, v{16+m}, v{16+m}")
        a(f"ds_write_b16 v29, v{32+m} offset:{16*m}")
    a("v_add_f32 v24, v16, v17"); a("v_add_f32 v25, v18, v19"); a("v_add_f32 v30, v20, v21"); a("v_add_f32 v31, v22, v23")
    a("v_add_f32 v24, v24, v25"); a("v_add_f32 v30, v30, v31"); a("v_add_f32 v24, v24, v30")
    dpp_op("v_add_f32", 24, "x1")
    allred_g("v_add_f32", 24, 25)
    a(f"v_add_u32 v27, {LX_BASE-MX_BASE}, v27")
    a("ds_write_b32 v27, v24")
    lds_add1(C_P)
    stamp(4)
    lds_wait(C_P, 8, 0x103, vt="v25", sleep=0)
    a("v_and_b32 v6, 3, v4")
    a(f"v_mul_u32_u24 v29, {P_STRIDE}, v6")
    a("v_lshl_add_u32 v29, v5, 4, v29")
    a(f"v_add_u32 v29, {P_BASE}, v29")
    for ks in range(16):
        a(f"ds_read_b128 v[{64+4*ks}:{64+4*ks+3}], v29 offset:{64*ks}")
    a("v_lshrrev_b32 v8, 2, v4"); a("v_and_b32 v9, 3, v4"); a("v_and_b32 v10, 1, v5")
    a("v_lshl_add_u32 v10, v10, 2, v8")
    a("v_xor_b32 v10, s12, v10")
    a("v_lshl_add_u32 v11, v5, 3, v8")
    a("v_lshlrev_b32 v11, 8, v11")
    a("v_lshl_add_u32 v11, v10, 5, v11")
    a("v_lshl_add_u32 v11, v9, 3, v11")
    a("v_add_u32 v12, 0x10000, v11")
    a("v_lshlrev_b32 v13, 14, v6"); a("v_lshl_add_u32 v13, v5, 4, v13")
    a("s_lshl_b32 s9, s4, 16"); a("s_lshl_b32 s10, s5, 9"); a("s_add_u32 s9, s9, s10")
    a("s_lshl_b32 s10, s12, 6"); a("s_add_u32 s9, s9, s10"); a(f"s_add_u32 s14, s9, {OBUF}")
    a("s_mov_b32 s63, 0")
    a("s_waitcnt lgkmcnt(0)")
    stamp(5)
    def pv_mfma(ks):
        A = 32 + 4 * (ks & 3)
        a(f"v_mfma_f32_16x16x32_bf16 v[48:51], v[{A}:{A+3}], v[{64+4*ks}:{64+4*ks+3}], " + ("0" if ks == 0 else "v[48:51]"))
    for ks in range(16):
        Lok = a.new("Lok")
        if ks == 12:
            a(f"ds_read_b32 v14, v2 offset:{C_TAG}")
            lds_wait(C_LOC, 1, 0x106)
            a("s_mov_b32 s15, s62")
        a(f"s_cmp_ge_u32 s63, {ks+1}")
        a.branch(f"s_cbranch_scc1 {Lok}", flush=False)
        prog_wait(ks + 1, 0x105, sleep=(cfg.PVS if ks < cfg.PV_TIGHT else 0))
        a("s_mov_b32 s63, s62")
        a.label(Lok, flush=False)
        ad = "v11" if ks < 8 else "v12"
        off = (ks & 7) * 8192
        A = 32 + 4 * (ks & 3)
        a(f"ds_read_b64_tr_b16 v[{A}:{A+1}], {ad} offset:{off}")
        a(f"ds_read_b64_tr_b16 v[{A+2}:{A+3}], {ad} offset:{off+1024}")
        if ks > 0:
            a("s_waitcnt lgkmcnt(2)")
            pv_mfma(ks - 1)
    a("s_mov_b32 s10, 0x000f000f")
    a("s_waitcnt lgkmcnt(0)")
    pv_mfma(15)
    stamp(6)
    tag4([48, 49, 50, 51])
    a("s_mov_b32 exec_lo, s10"); a("s_mov_b32 exec_hi, s10")
    Lr, Lj = a.new("Lr"), a.new("Lj")
    a("s_cmp_eq_u32 s15, 1")
    a.branch(f"s_cbranch_scc0 {Lr}", flush=False)
    a("buffer_store_dwordx4 v[48:51], v13, s[52:55], s14 offen")
    a.branch(f"s_branch {Lj}", flush=False)
    a.label(Lr, flush=False)
    a("buffer_store_dwordx4 v[48:51], v13, s[52:55], s14 offen sc1")
    a.label(Lj, flush=False)
    lds_add1(C_O)
    stamp(7)
    stamps_out(9, dbgmap={"wave": 4, 0: 10, 8: 11, 1: 12})
    a("s_endpgm")

    a.label("L_loader")
    if cfg.PRIO_LD: a(f"s_setprio {cfg.PRIO_LD}")
    a("s_sub_u32 s12, s3, 12")
    kv_region(40, 20)
    srd(44, 24, 4096 * 1024)
    a("v_lshrrev_b32 v5, 4, v0")
    a("s_and_b32 s9, s12, 1"); a("s_lshl_b32 s9, s9, 2")
    a("v_or_b32 v6, s9, v5")
    a("v_lshlrev_b32 v6, 1, v6")
    a("v_and_b32 v7, 15, v0")
    a("v_xor_b32 v6, v6, v7")
    a("v_lshlrev_b32 v6, 4, v6")
    a("v_lshl_add_u32 v8, v5, 8, v6")
    a("s_lshl_b32 s9, s12, 2"); a(f"s_add_u32 s9, s9, {C_PROG}")
    a("v_add_u32 v10, s9, v2")
    a("v_lshrrev_b32 v12, 3, v0"); a("v_and_b32 v13, 7, v0"); a("v_lshlrev_b32 v13, 4, v13"); a("v_lshl_add_u32 v12, v12, 10, v13")
    a("s_lshl_b32 s9, s4, 2"); a("s_add_u32 s9, s9, s6"); a("s_lshl_b32 s9, s9, 7")
    a("s_lshl_b32 s10, s12, 5"); a("s_add_u32 s9, s9, s10"); a("s_lshl_b32 s9, s9, 10")
    a("s_lshl_b32 s10, s7, 7"); a("s_add_u32 s15, s9, s10")
    a("s_lshl_b32 s11, s12, 11")
    a("s_add_u32 s14, s8, s12")
    if cfg.FFN_LD:
        a("v_and_b32 v4, 15, v0"); a("v_lshrrev_b32 v6, 2, v4"); a("v_and_b32 v7, 3, v4")
        ffn2_setup()
    lds_wait(C_KI, cfg.KI_TARGET - 2, 0x206, sleep=cfg.LS)
    lds_wait(C_KI, cfg.KI_TARGET, 0x201)
    lds_wait(C_QS, 4, 0x202)
    stamp(1)
    published = 0
    for ks in range(16):
        N = cfg.VW - 2
        if 2 * (ks - published) > N:
            a(f"s_waitcnt vmcnt({N})")
            published = ks - N // 2
            a(f"v_mov_b32 v11, {published}")
            a("ds_write_b32 v10, v11")
        a(f"s_add_u32 s10, s14, {4*ks}")
        a("s_and_b32 s10, s10, 63")
        a("s_lshl_b32 s10, s10, 11")
        a(f"s_add_u32 s13, s11, {V_BASE + 8192*ks}")
        a("s_mov_b32 m0, s13")
        a("s_nop 0")
        a(f"buffer_load_dwordx4 v8, s[40:43], s10 offen{NT} lds")
        a(f"buffer_load_dwordx4 v8, s[40:43], s10 offen offset:1024{NT} lds")
    stamp(2)
    a("s_lshl_b32 s11, s12, 12")
    for i in range(4):
        a(f"s_add_u32 s13, s11, {WQ_BASE + 1024*i}")
        a("s_mov_b32 m0, s13")
        a(f"s_add_u32 s10, s15, {8192*i}")
        a(f"buffer_load_dwordx4 v12, s[44:47], s10 offen{NT} lds")
    def drain(extra):
        for k in range(16 - published - 1, -1, -1):
            a(f"s_waitcnt vmcnt({4 + extra + 2*k})")
            a(f"v_mov_b32 v11, {16 - k}")
            a("ds_write_b32 v10, v11")
            if k == 0: stamp(3)
        a(f"s_waitcnt vmcnt({extra})")
        a("v_mov_b32 v11, 17")
        a("ds_write_b32 v10, v11")
        stamp(4)
    Lfin, Lgate = a.new("Lfin"), a.new("Lgate")
    if cfg.FFN_LD:
        Lnf = a.new("Lnf")
        a("s_cmp_eq_u32 s3, 13")
        a.branch(f"s_cbranch_scc0 {Lnf}", flush=False)
        a("s_cmp_lt_u32 s2, 224")
        a.branch(f"s_cbranch_scc0 {Lnf}", flush=False)
        for l in ffn2_loads(): a(l)
        a(f"ds_read_b32 v14, v2 offset:{C_TAG}")
        drain(4)
        a("s_mov_b32 s56, 0xaaaaaaaa"); a("s_mov_b32 s57, 0xaaaaaaaa")
        lds_wait(C_W2, 1, 0x324)
        ffn2_rest(True)
        stamp(5)
        a.branch("s_branch L_ldend")
        a.label(Lnf)
    drain(0)
    a("s_cmp_lt_u32 s2, 64")
    a.branch("s_cbranch_scc0 L_ld10", flush=False)
    a("s_cmp_eq_u32 s3, 12")
    a.branch(f"s_cbranch_scc1 {Lfin}", flush=False)
    if cfg.G_SPLIT:
        a("s_cmp_eq_u32 s3, 14")
        a.branch(f"s_cbranch_scc1 {Lgate}", flush=False)
    a.label("L_ld10", flush=False)
    stamp(10)
    a.label("L_ldend", flush=False)
    if cfg.STAMP and not cfg.SMIN: a("s_getreg_b32 s74, hwreg(HW_REG_HW_ID)")
    stamps_out(11, final=True, dbgmap={"wave": 12, 1: 13, 3: 14})
    a("s_waitcnt lgkmcnt(0)")
    a("s_endpgm")
    def gate():
        a("s_lshl_b32 s9, s2, 13"); a(f"s_add_u32 s9, s9, {YBUF}"); a("s_add_u32 s10, s9, 4096")
        a("s_waitcnt lgkmcnt(0)")
        yl = [f"buffer_load_dwordx4 v[{64+4*i}:{67+4*i}], v18, s[52:55], {'s9' if i < 4 else 's10'} offen offset:{1024*(i&3)} sc1" for i in range(7)]
        if "Y" not in cfg.ABL and "y" not in cfg.ABL: poll(yl, list(range(64, 92)), 41, 0x342, sleep=cfg.Y_SLEEP)
        else: a("s_waitcnt vmcnt(0)")
        for k in range(0, 4, 2):
            a(f"v_pk_add_f32 v[{64+k}:{65+k}], v[{64+k}:{65+k}], v[{68+k}:{69+k}]"); a(f"v_pk_add_f32 v[{72+k}:{73+k}], v[{72+k}:{73+k}], v[{76+k}:{77+k}]"); a(f"v_pk_add_f32 v[{80+k}:{81+k}], v[{80+k}:{81+k}], v[{84+k}:{85+k}]")
        for k in range(0, 4, 2):
            a(f"v_pk_add_f32 v[{64+k}:{65+k}], v[{64+k}:{65+k}], v[{72+k}:{73+k}]"); a(f"v_pk_add_f32 v[{80+k}:{81+k}], v[{80+k}:{81+k}], v[{88+k}:{89+k}]")
        for k in range(0, 4, 2): a(f"v_pk_add_f32 v[{64+k}:{65+k}], v[{64+k}:{65+k}], v[{80+k}:{81+k}]")
        red32(64)
        bf16r(64, 64)
        a(f"v_mul_f32 v65, {hex(LOG2E ^ 0x80000000)}, v64")
        a("v_exp_f32 v65, v65")
        a("v_add_f32 v65, 1.0, v65")
        a("v_rcp_f32 v65, v65")
        a("v_mul_f32 v65, v64, v65")
        bf16r(102, 65)
    if cfg.G_SPLIT:
        a.label(Lgate)
        a(f"ds_read_b32 v14, v2 offset:{C_TAG}")
        a("v_lshlrev_b32 v18, 4, v0")
        gate()
        a("v_lshlrev_b32 v18, 2, v0"); a(f"v_add_u32 v18, {G_BASE}, v18")
        a("ds_write_b32 v18, v102")
        a(f"ds_write_b32 v2, v1 offset:{C_G}")
        stamp(5)
        a.branch("s_branch L_ld10")
    a.label(Lfin)
    a("s_setprio 3")
    a(f"ds_read_b32 v14, v2 offset:{C_TAG}")
    srd(40, 16, 4096)
    srd(44, 32, 4096)
    a("v_lshlrev_b32 v18, 4, v0")
    a("v_lshrrev_b32 v20, 1, v5"); a("v_and_b32 v21, 1, v5"); a("v_lshl_add_u32 v20, v21, 1, v20")
    a("v_and_b32 v21, 1, v0"); a("v_lshl_add_u32 v20, v21, 2, v20")
    a("v_lshrrev_b32 v21, 1, v0"); a("v_and_b32 v21, 3, v21"); a("v_lshl_add_u32 v20, v21, 9, v20")
    a("s_lshl_b32 s10, s2, 3")
    a("v_add_u32 v20, s10, v20"); a("v_lshlrev_b32 v100, 1, v20")
    a("buffer_load_ushort v101, v100, s[40:43], 0 offen")
    if not cfg.G_SPLIT: gate()
    else: a("s_waitcnt vmcnt(0) lgkmcnt(0)")
    a("v_lshlrev_b32 v101, 16, v101")
    a("s_lshl_b32 s9, s2, 12"); a(f"s_add_u32 s9, s9, {SBUF}")
    stamp(5)
    if cfg.S_GATE: lds_wait(C_S, cfg.S_GATE, 0x364, sleep=1)
    ld = [f"buffer_load_dwordx4 v[{64+4*i}:{67+4*i}], v18, s[52:55], s9 offen offset:{1024*i} sc1" for i in range(4)]
    poll(ld, list(range(64, 80)), 41, 0x360, sleep=cfg.S_SLEEP)
    stamp(9)
    for k in range(0, 4, 2):
        a(f"v_pk_add_f32 v[{64+k}:{65+k}], v[{64+k}:{65+k}], v[{68+k}:{69+k}]"); a(f"v_pk_add_f32 v[{72+k}:{73+k}], v[{72+k}:{73+k}], v[{76+k}:{77+k}]")
    for k in range(0, 4, 2): a(f"v_pk_add_f32 v[{64+k}:{65+k}], v[{64+k}:{65+k}], v[{72+k}:{73+k}]")
    red32(64)
    bf16r(64, 64)
    if cfg.G_SPLIT:
        lds_wait(C_G, 1, 0x363, sleep=0)
        a("v_lshlrev_b32 v18, 2, v0"); a(f"v_add_u32 v18, {G_BASE}, v18")
        a("ds_read_b32 v102, v18")
        a("s_waitcnt lgkmcnt(0)")
    a("v_mul_f32 v64, v64, v102"); bf16r(64, 64)
    a("v_add_f32 v64, v101, v64")
    a("v_cvt_pk_bf16_f32 v64, v64, v64")
    a("s_mov_b32 exec_lo, 0x00ff00ff"); a("s_mov_b32 exec_hi, 0x00ff00ff")
    a("buffer_store_short v64, v100, s[44:47], 0 offen" + (" sc1" if cfg.OUT_SC1 else ""))
    a("s_mov_b64 exec, -1")
    Le = a.new("Le")
    a("s_cmp_eq_u32 s2, 0")
    a.branch(f"s_cbranch_scc0 {Le}")
    a(f"ds_read_b32 v4, v2 offset:{C_EP}"); a("v_mov_b32 v5, 0")
    a("s_waitcnt lgkmcnt(0)")
    a("s_mov_b64 exec, 1")
    a("buffer_store_dword v4, v5, s[52:55], 0 offen sc1")
    a("s_mov_b64 exec, -1")
    a.label(Le)
    stamp(10)
    stamps_out(11, final=True)
    a("s_endpgm")

    a.label("L_aux")
    if cfg.PRIO_AUX: a(f"s_setprio {cfg.PRIO_AUX}")
    srd(40, 16, 4096)
    srd(44, 22, 512 * 8192)
    srd(48, 28, 512 * 3584)
    a("s_cmp_lt_u32 s2, 224")
    a("s_cselect_b32 s50, s50, 0")
    a("v_and_b32 v4, 15, v0")
    a("v_lshrrev_b32 v5, 4, v0")
    a("v_lshrrev_b32 v6, 2, v4")
    a("v_and_b32 v7, 3, v4")
    a("v_lshl_add_u32 v8, v7, 2, v5"); a("v_lshlrev_b32 v8, 6, v8"); a("v_lshl_add_u32 v8, v6, 10, v8")
    for i in range(4):
        a(f"buffer_load_dwordx4 v[{16+4*i}:{19+4*i}], v8, s[40:43], 0 offen offset:{16*i}")
    a("v_lshlrev_b32 v9, 4, v5"); a("v_lshl_add_u32 v9, v6, 10, v9")
    a("s_lshr_b32 s12, s5, 3")
    a("s_and_b32 s13, s5, 7")
    a("s_and_b32 s14, s2, 7")
    a("s_lshr_b32 s15, s2, 3")
    a("s_lshl_b32 s9, s12, 8"); a("s_lshl_b32 s10, s3, 6"); a("s_add_u32 s9, s9, s10")
    a("buffer_load_dwordx4 v[32:35], v9, s[40:43], s9 offen")
    a("s_lshl_b32 s9, s14, 7"); a("s_and_b32 s10, s3, 1"); a("s_lshl_b32 s10, s10, 6"); a("s_add_u32 s9, s9, s10")
    a("buffer_load_dwordx4 v[36:39], v9, s[40:43], s9 offen")
    a("v_lshrrev_b32 v10, 3, v0"); a("v_and_b32 v11, 7, v0"); a("v_lshlrev_b32 v11, 4, v11")
    a("v_lshl_add_u32 v12, v10, 13, v11")
    a("v_mul_u32_u24 v13, 3584, v10"); a("v_add_u32 v13, v13, v11")
    a("s_lshl_b32 s9, s12, 7"); a("s_lshl_b32 s10, s3, 5"); a("s_add_u32 s9, s9, s10"); a("s_lshl_b32 s9, s9, 13")
    a("s_lshl_b32 s10, s4, 10"); a("s_add_u32 s9, s9, s10"); a("s_lshl_b32 s10, s13, 7"); a("s_add_u32 s9, s9, s10")
    a("s_lshl_b32 s11, s3, 12")
    for i in range(4):
        a(f"s_add_u32 s10, s11, {WQ_BASE + 1024*i}")
        a("s_mov_b32 m0, s10")
        a(f"s_add_u32 s10, s9, {8*8192*i}")
        a(f"buffer_load_dwordx4 v12, s[44:47], s10 offen{NT} lds")
    a("s_lshl_b32 s9, s14, 6"); a("s_lshl_b32 s10, s3, 4"); a("s_add_u32 s9, s9, s10"); a("s_mul_i32 s9, s9, 3584")
    a("s_lshl_b32 s10, s15, 7"); a("s_add_u32 s9, s9, s10")
    a("s_lshl_b32 s11, s3, 11")
    for i in range(2):
        a(f"s_add_u32 s10, s11, {W1_BASE + 1024*i}")
        a("s_mov_b32 m0, s10")
        a(f"s_add_u32 s10, s9, {8*3584*i}")
        a(f"buffer_load_dwordx4 v13, s[48:51], s10 offen{NT} lds")
    Lc = a.new("Lc")
    a("s_cmp_eq_u32 s3, 0")
    a.branch(f"s_cbranch_scc0 {Lc}", flush=False)
    a("s_load_dword s38, s[36:37], 0")
    a.label(Lc, flush=False)
    stamp(1)
    a("s_waitcnt vmcnt(6)")
    for i in range(16):
        a(f"v_lshlrev_b32 v{64+2*i}, 16, v{16+i}")
        a(f"v_and_b32 v{65+2*i}, 0xffff0000, v{16+i}")
    for k in range(0, 8, 2): a(f"v_pk_add_f32 v[{40+k}:{41+k}], v[{64+k}:{65+k}], v[{72+k}:{73+k}]")
    for i in (16, 24):
        for k in range(0, 8, 2): a(f"v_pk_add_f32 v[{40+k}:{41+k}], v[{40+k}:{41+k}], v[{64+i+k}:{65+i+k}]")
    a("v_pk_add_f32 v[40:41], v[40:41], v[42:43]"); a("v_pk_add_f32 v[44:45], v[44:45], v[46:47]"); a("v_pk_add_f32 v[40:41], v[40:41], v[44:45]")
    a("v_add_f32 v40, v40, v41")
    dpp_op("v_add_f32", 40, "x1"); dpp_op("v_add_f32", 40, "x2"); allred_g("v_add_f32", 40, 41)
    a("v_mul_f32 v40, 0x3b000000, v40")
    for i in range(32): a(f"v_sub_f32 v{64+i}, v{64+i}, v40")
    for k in range(4): a(f"v_mul_f32 v{42+k}, v{64+k}, v{64+k}")
    for i in range(4, 32, 4):
        for k in range(4): a(f"v_fmac_f32 v{42+k}, v{64+i+k}, v{64+i+k}")
    a("v_add_f32 v42, v42, v43"); a("v_add_f32 v44, v44, v45"); a("v_add_f32 v42, v42, v44")
    dpp_op("v_add_f32", 42, "x1"); dpp_op("v_add_f32", 42, "x2"); allred_g("v_add_f32", 42, 41)
    a("v_mul_f32 v42, 0x3b000000, v42")
    bf16r(40, 40); bf16r(42, 42)
    a(f"v_add_f32 v42, {hex(EPS)}, v42"); bf16r(42, 42)
    a("v_sqrt_f32 v42, v42"); bf16r(42, 42)
    a("v_rcp_f32 v42, v42")
    for d in range(32, 40):
        a(f"v_lshlrev_b32 v44, 16, v{d}")
        a(f"v_and_b32 v45, 0xffff0000, v{d}")
        a("v_sub_f32 v44, v44, v40"); a("v_sub_f32 v45, v45, v40")
        a("v_cvt_pk_bf16_f32 v46, v44, v45")
        a("v_lshlrev_b32 v44, 16, v46"); a("v_and_b32 v45, 0xffff0000, v46")
        a("v_mul_f32 v44, v44, v42"); a("v_mul_f32 v45, v45, v42")
        a(f"v_cvt_pk_bf16_f32 v{d}, v44, v45")
    a("v_lshlrev_b32 v15, 4, v0")
    a("s_lshl_b32 s9, s3, 10"); a(f"s_add_u32 s9, s9, {XN_BASE}")
    a("v_add_u32 v44, s9, v15")
    a("ds_write_b128 v44, v[32:35]")
    a("s_and_b32 s9, s3, 1"); a("s_lshl_b32 s9, s9, 10"); a(f"s_add_u32 s9, s9, {XN_BASE + 4096}")
    a("v_add_u32 v44, s9, v15")
    a("ds_write_b128 v44, v[36:39]")
    stamp(2)
    a("s_waitcnt vmcnt(0) lgkmcnt(0)")
    Lc = a.new("Lc")
    a("s_cmp_eq_u32 s3, 0")
    a.branch(f"s_cbranch_scc0 {Lc}", flush=False)
    a("s_add_u32 s38, s38, 1")
    a(f"s_and_b32 s39, s38, {TAGM}")
    a("v_mov_b32 v44, s39"); a("v_mov_b32 v45, s38")
    a(f"ds_write_b64 v2, v[44:45] offset:{C_TAG}")
    a.label(Lc)
    lds_add1(C_W)
    lds_wait(C_W, 4, 0x301, sleep=0)
    a(f"ds_read_b32 v14, v2 offset:{C_TAG}")
    stamp(3)
    if XN_BASE: a(f"v_add_u32 v15, {XN_BASE}, v15")
    for f in range(6):
        a(f"ds_read_b128 v[{32+4*f}:{35+4*f}], v15 offset:{1024*f}")
    a("v_lshrrev_b32 v8, 2, v4"); a("v_lshl_add_u32 v9, v5, 3, v8"); a("v_lshlrev_b32 v9, 7, v9"); a("v_lshl_add_u32 v9, v7, 3, v9")
    a("s_lshl_b32 s9, s3, 5")
    a(f"s_add_u32 s10, s9, {WQ_BASE}"); a("v_add_u32 v10, s10, v9")
    a(f"s_add_u32 s10, s9, {W1_BASE}"); a("v_add_u32 v11, s10, v9")
    a("v_mov_b32 v13, v10")
    for ks in range(4):
        a(f"ds_read_b64_tr_b16 v[{64+4*ks}:{65+4*ks}], v10 offset:{4096*ks}")
        a(f"ds_read_b64_tr_b16 v[{66+4*ks}:{67+4*ks}], v10 offset:{4096*ks+512}")
    for ks in range(2):
        a(f"ds_read_b64_tr_b16 v[{80+4*ks}:{81+4*ks}], v11 offset:{4096*ks}")
        a(f"ds_read_b64_tr_b16 v[{82+4*ks}:{83+4*ks}], v11 offset:{4096*ks+512}")
    a("s_waitcnt lgkmcnt(0)")
    lds_add1(C_QS)
    for ks in range(4):
        a(f"v_mfma_f32_16x16x32_bf16 v[56:59], v[{64+4*ks}:{67+4*ks}], v[{32+4*ks}:{35+4*ks}], " + ("0" if ks == 0 else "v[56:59]"))
    for ks in range(2):
        a(f"v_mfma_f32_16x16x32_bf16 v[60:63], v[{80+4*ks}:{83+4*ks}], v[{48+4*ks}:{51+4*ks}], " + ("0" if ks == 0 else "v[60:63]"))
    a("v_lshlrev_b32 v8, 13, v6"); a("v_lshl_add_u32 v8, v5, 4, v8")
    a("s_lshl_b32 s9, s4, 15"); a("s_lshl_b32 s10, s12, 11"); a("s_add_u32 s9, s9, s10")
    a("s_lshl_b32 s10, s13, 8"); a("s_add_u32 s9, s9, s10"); a("s_lshl_b32 s10, s3, 6"); a("s_add_u32 s9, s9, s10")
    a(f"s_add_u32 s9, s9, {QBUF}")
    tag4([56, 57, 58, 59])
    a("s_mov_b32 exec_lo, 0x11111111"); a("s_mov_b32 exec_hi, 0x11111111")
    if "Q" not in cfg.ABL: a("buffer_store_dwordx4 v[56:59], v8, s[52:55], s9 offen sc1")
    a("s_mov_b64 exec, -1")
    Lnh = a.new("Lnh")
    a("s_cmp_lt_u32 s2, 224")
    a.branch(f"s_cbranch_scc0 {Lnh}")
    a("v_lshlrev_b32 v9, 10, v6"); a("v_lshl_add_u32 v9, v5, 4, v9")
    a("s_lshl_b32 s9, s15, 1"); a("s_lshr_b32 s10, s3, 1"); a("s_add_u32 s9, s9, s10"); a("s_lshl_b32 s9, s9, 12")
    a("s_lshl_b32 s10, s14, 7"); a("s_add_u32 s9, s9, s10")
    a("s_and_b32 s10, s3, 1"); a("s_lshl_b32 s10, s10, 6"); a("s_add_u32 s9, s9, s10")
    a(f"s_add_u32 s9, s9, {HBUF}")
    tag4([60, 61, 62, 63])
    a("s_mov_b32 exec_lo, 0x11111111"); a("s_mov_b32 exec_hi, 0x11111111")
    if "H" not in cfg.ABL: a("buffer_store_dwordx4 v[60:63], v9, s[52:55], s9 offen sc1")
    a("s_mov_b64 exec, -1")
    a.label(Lnh)
    stamp(4)
    a("s_mov_b32 s56, 0xaaaaaaaa"); a("s_mov_b32 s57, 0xaaaaaaaa")
    a("s_cmp_eq_u32 s3, 1"); a.branch("s_cbranch_scc1 L_aux1", flush=False)
    a("s_cmp_eq_u32 s3, 2"); a.branch("s_cbranch_scc1 L_aux2", flush=False)
    a("s_cmp_eq_u32 s3, 3"); a.branch("s_cbranch_scc1 L_aux3", flush=False)
    lds_wait(C_CLKQ, 1, 0x310, sleep=cfg.LS)
    a("v_lshlrev_b32 v18, 5, v0")
    a("s_lshl_b32 s9, s4, 2"); a("s_add_u32 s9, s9, s6"); a("s_lshl_b32 s9, s9, 13"); a(f"s_add_u32 s9, s9, {QBUF}")
    a("s_add_u32 s10, s9, 4096")
    ld = [f"buffer_load_dwordx4 v[{64+8*rb+4*hf}:{67+8*rb+4*hf}], v18, s[52:55], {'s9' if rb < 2 else 's10'} offen offset:{(rb&1)*2048+16*hf} sc1" for rb in range(4) for hf in range(2)]
    if "Q" not in cfg.ABL: poll(ld, list(range(64, 96)), 41, 0x311, sleep=cfg.Q_SLEEP)
    for k in range(0, 8, 2):
        a(f"v_pk_add_f32 v[{64+k}:{65+k}], v[{64+k}:{65+k}], v[{72+k}:{73+k}]"); a(f"v_pk_add_f32 v[{80+k}:{81+k}], v[{80+k}:{81+k}], v[{88+k}:{89+k}]")
    for k in range(0, 8, 2): a(f"v_pk_add_f32 v[{64+k}:{65+k}], v[{64+k}:{65+k}], v[{80+k}:{81+k}]")
    for k in range(4): a(f"v_cvt_pk_bf16_f32 v{40+k}, v{64+2*k}, v{65+2*k}")
    a("v_lshlrev_b32 v18, 4, v0"); a(f"v_add_u32 v18, {Q_BASE}, v18")
    a("ds_write_b128 v18, v[40:43]")
    a(f"ds_write_b32 v2, v1 offset:{C_QRDY}")
    stamp(5)
    a.branch("s_branch L_wo")
    a.label("L_aux1")
    a("s_cmp_lt_u32 s2, 224")
    a.branch("s_cbranch_scc0 L_wo", flush=False)
    srd(48, 30, 1792 * 1024)
    a("v_lshrrev_b32 v18, 4, v0"); a("v_and_b32 v19, 15, v0")
    a("v_lshlrev_b32 v20, 1, v18"); a("v_xor_b32 v20, v20, v19"); a("v_lshlrev_b32 v20, 4, v20"); a("v_lshl_add_u32 v20, v18, 10, v20")
    a("v_or_b32 v21, 4, v18"); a("v_lshlrev_b32 v21, 1, v21"); a("v_xor_b32 v21, v21, v19"); a("v_lshlrev_b32 v21, 4, v21"); a("v_lshl_add_u32 v21, v18, 10, v21")
    a("s_lshr_b32 s12, s2, 2"); a("s_lshl_b32 s9, s12, 15"); a("s_and_b32 s10, s2, 3"); a("s_lshl_b32 s10, s10, 8"); a("s_add_u32 s9, s9, s10")
    lds_wait(C_QS, 4, 0x323)
    for i in range(8):
        a(f"s_mov_b32 m0, {W1_BASE + 1024*i}")
        a(f"s_add_u32 s10, s9, {4096*i}")
        if "W" not in cfg.ABL: a(f"buffer_load_dwordx4 v{20 + ((i >> 1) & 1)}, s[48:51], s10 offen{NT} lds")
    if not cfg.FFN_LD:
        ffn2_setup()
        if cfg.H_AT: prog_wait(cfg.H_AT, 0x320, sleep=cfg.LS)
        else: lds_wait(C_CLKQ, 1, 0x320, sleep=cfg.LS)
        ffn2_rest(False)
    else:
        a("s_waitcnt vmcnt(0)")
        a(f"ds_write_b32 v2, v1 offset:{C_W2}")
    stamp(5)
    a.branch("s_branch L_wo")
    a.label("L_aux2")
    lds_wait(C_P, 8, 0x330, sleep=cfg.LS)
    a(f"v_mov_b32 v18, {MX_BASE}")
    for h in range(4):
        a(f"ds_read_b128 v[{64+8*h}:{67+8*h}], v18 offset:{32*h}")
        a(f"ds_read_b128 v[{68+8*h}:{71+8*h}], v18 offset:{32*h+16}")
        a(f"ds_read_b128 v[{96+8*h}:{99+8*h}], v18 offset:{128+32*h}")
        a(f"ds_read_b128 v[{100+8*h}:{103+8*h}], v18 offset:{128+32*h+16}")
    a("s_waitcnt lgkmcnt(0)")
    for h in range(4):
        B = 64 + 8 * h
        a(f"v_max3_f32 v{44+h}, v{B}, v{B+1}, v{B+2}"); a(f"v_max3_f32 v{44+h}, v{44+h}, v{B+3}, v{B+4}")
        a(f"v_max3_f32 v{44+h}, v{44+h}, v{B+5}, v{B+6}"); a(f"v_max_f32 v{44+h}, v{44+h}, v{B+7}")
        B = 96 + 8 * h
        a(f"v_add_f32 v{48+h}, v{B}, v{B+1}")
        for k in range(2, 8): a(f"v_add_f32 v{48+h}, v{48+h}, v{B+k}")
    for h in range(4): a(f"v_cndmask_b32 v{52+h}, v{44+h}, v{48+h}, s[56:57]")
    tag4([52, 53, 54, 55])
    a("s_lshl_b32 s9, s4, 10"); a(f"s_add_u32 s9, s9, {MLBUF}")
    a("s_lshl_b32 s10, s5, 5"); a("s_add_u32 s10, s10, s9")
    a("v_lshlrev_b32 v18, 4, v0")
    a("s_mov_b64 exec, 3")
    if "M" not in cfg.ABL: a("buffer_store_dwordx4 v[52:55], v18, s[52:55], s10 offen sc1")
    a("s_mov_b64 exec, -1")
    stamp(5)
    prog_wait(cfg.ML_AT, 0x332, sleep=cfg.LS)
    if "M" not in cfg.ABL: poll(["buffer_load_dwordx4 v[64:67], v18, s[52:55], s9 offen sc1"], [64, 65, 66, 67], 41, 0x331, sleep=cfg.ML_SLEEP)
    for h in range(1, 4):
        a(f"s_cmp_eq_u32 s6, {h}")
        a("s_cselect_b64 s[62:63], -1, 0")
        a(f"v_cndmask_b32 v64, v64, v{64+h}, s[62:63]")
    a(f"v_mov_b32_dpp v65, v64 {DPP['x1']} row_mask:0xf bank_mask:0xf")
    a("v_cndmask_b32 v66, v64, v65, s[56:57]")
    a("v_cndmask_b32 v67, v65, v64, s[56:57]")
    a("v_mov_b32 v68, v66")
    for kind in ("x2", "r4", "r8"): dpp_op("v_max_f32", 68, kind)
    a("v_sub_f32 v66, v66, v68"); a(f"v_mul_f32 v66, {hex(LOG2E)}, v66"); a("v_exp_f32 v66, v66")
    a("v_mul_f32 v67, v66, v67")
    for kind in ("x2", "r4", "r8"): dpp_op("v_add_f32", 67, kind)
    a("v_rcp_f32 v67, v67")
    a("v_mul_f32 v66, v66, v67")
    a("v_lshrrev_b32 v18, 1, v0"); a("v_lshlrev_b32 v18, 2, v18"); a(f"v_add_u32 v18, {SC_BASE}, v18")
    a("ds_write_b32 v18, v66")
    a(f"ds_write_b32 v2, v1 offset:{C_SC}")
    a.branch("s_branch L_wo")
    a.label("L_aux3")
    a("s_getreg_b32 s12, hwreg(HW_REG_XCC_ID, 0, 4)")
    a("s_lshl_b32 s12, s12, 16")
    for k in range(4): a(f"v_mov_b32 v{64+k}, s12")
    tag4([64, 65, 66, 67])
    a("s_lshl_b32 s9, s4, 9"); a(f"s_add_u32 s9, s9, {XCBUF}")
    a("s_lshl_b32 s10, s5, 4"); a("s_add_u32 s10, s10, s9")
    a("v_mov_b32 v18, 0")
    a("s_mov_b64 exec, 1")
    a("buffer_store_dwordx4 v[64:67], v18, s[52:55], s10 offen sc1")
    a("s_mov_b64 exec, -1")
    prog_wait(cfg.XC_AT, 0x343, sleep=cfg.LS)
    a("v_and_b32 v18, 31, v0"); a("v_lshlrev_b32 v18, 4, v18")
    poll(["buffer_load_dwordx4 v[64:67], v18, s[52:55], s9 offen sc1"], [64, 65, 66, 67], 41, 0x344, sleep=8)
    a("v_cmp_ne_u32 vcc, s12, v64")
    a("s_cmp_eq_u64 vcc, 0")
    a("s_cselect_b32 s9, 1, 2")
    if cfg.FORCE_REMOTE: a("s_mov_b32 s9, 2")
    a("v_mov_b32 v18, s9")
    a(f"ds_write_b32 v2, v18 offset:{C_LOC}")
    if cfg.WARM:
        a("v_lshlrev_b32 v18, 4, v0")
        a("s_lshl_b32 s9, s4, 16"); a("s_lshl_b32 s10, s5, 11"); a("s_add_u32 s9, s9, s10"); a(f"s_add_u32 s9, s9, {OBUF}")
        a("buffer_load_dwordx4 v[64:67], v18, s[52:55], s9 offen sc1")
        a("buffer_load_dwordx4 v[68:71], v18, s[52:55], s9 offen offset:1024 sc1")
        a("s_waitcnt vmcnt(0)")
    stamp(5)
    a.label("L_wo")
    a("s_lshl_b32 s9, s4, 2"); a("s_add_u32 s15, s9, s6")
    a("v_lshlrev_b32 v12, 12, v6"); a("v_lshl_add_u32 v12, v7, 9, v12"); a("v_lshl_add_u32 v12, v5, 5, v12")
    a("s_lshl_b32 s9, s15, 14"); a("s_lshl_b32 s10, s3, 7"); a("s_add_u32 s9, s9, s10"); a(f"s_add_u32 s13, s9, {OBUF}")
    a("v_lshrrev_b32 v18, 1, v5"); a("v_lshlrev_b32 v15, 12, v18")
    a("v_lshl_add_u32 v15, v6, 5, v15"); a("v_and_b32 v18, 1, v5"); a("v_lshl_add_u32 v15, v18, 4, v15")
    a("s_lshl_b32 s10, s7, 15"); a("s_lshl_b32 s11, s15, 7"); a("s_add_u32 s10, s10, s11")
    a("s_lshl_b32 s11, s3, 13"); a("s_add_u32 s10, s10, s11"); a(f"s_add_u32 s14, s10, {SBUF}")
    a("v_lshlrev_b32 v10, 4, v0"); a("s_lshl_b32 s9, s3, 10"); a(f"s_add_u32 s9, s9, {DX_BASE}"); a("v_add_u32 v105, s9, v10")
    a(f"v_add_u32 v104, {DX_BASE}, v10")
    a("v_lshl_add_u32 v10, v6, 3, v7"); a("v_lshlrev_b32 v10, 2, v10"); a(f"v_add_u32 v10, {SC_BASE}, v10")
    prog_wait(13, 0x356, sleep=cfg.LS)
    lds_wait(C_SC, 1, 0x357)
    a("ds_read2_b32 v[98:99], v10 offset0:0 offset1:4")
    loads = [f"buffer_load_dwordx4 v[{16+4*i}:{19+4*i}], v12, s[52:55], s13 offen offset:{o} sc1" for i, o in enumerate((0, 16, 2048, 2064))]
    def wo_frags():
        for ks in range(4):
            a(f"ds_read_b64_tr_b16 v[{64+4*ks}:{65+4*ks}], v13 offset:{4096*ks}")
            a(f"ds_read_b64_tr_b16 v[{66+4*ks}:{67+4*ks}], v13 offset:{4096*ks+512}")
    if cfg.EARLY_POLL:
        prog_wait(16, 0x358, vt=36)
        lds_wait(C_O, 8, 0x352, vt="v36", sleep=0)
        for _ in range(cfg.O_NOP): a("s_nop 15")
        for l in loads: a(l)
        prog_wait(17, 0x350, vt=36, sleep=0)
        stamp(6)
        wo_frags()
        poll(loads, list(range(16, 32)), 3, 0x351, adaptive=True, preloaded=True)
    else:
        prog_wait(17, 0x350)
        stamp(6)
        wo_frags()
        lds_wait(C_O, 8, 0x352, sleep=0)
        poll(loads, list(range(16, 32)), 3, 0x351, adaptive=True)
    stamp(7)
    for k in range(0, 8, 2): a(f"v_pk_mul_f32 v[{16+k}:{17+k}], v[{16+k}:{17+k}], v[98:99] op_sel_hi:[1,0]")
    for k in range(0, 8, 2): a(f"v_pk_fma_f32 v[{16+k}:{17+k}], v[{24+k}:{25+k}], v[98:99], v[{16+k}:{17+k}] op_sel:[0,1,0] op_sel_hi:[1,1,1]")
    for kind in ("x1", "x2"):
        for k in range(8): dpp_op("v_add_f32", 16 + k, kind)
    for k in range(4): a(f"v_cvt_pk_bf16_f32 v{8+k}, v{16+2*k}, v{17+2*k}")
    a("ds_write_b128 v105, v[8:11]")
    lds_add1(C_D)
    lds_wait(C_D, 4, 0x353, sleep=0)
    for w in range(4): a(f"ds_read_b128 v[{48+4*w}:{51+4*w}], v104 offset:{1024*w}")
    for ks in range(4):
        a(f"s_waitcnt lgkmcnt({3-ks})")
        a(f"v_mfma_f32_16x16x32_bf16 v[32:35], v[{64+4*ks}:{67+4*ks}], v[{48+4*ks}:{51+4*ks}], " + ("0" if ks == 0 else "v[32:35]"))
    tag4([32, 33, 34, 35])
    a("s_mov_b32 exec_lo, 0x11111111"); a("s_mov_b32 exec_hi, 0x11111111")
    a("buffer_store_dwordx4 v[32:35], v15, s[52:55], s14 offen sc1")
    if cfg.S_GATE: lds_add1(C_S)
    else: a("s_mov_b64 exec, -1")
    stamp(8)
    stamps_out(9, dbgmap={"wave": 3, 0: 2, 1: 3, 2: 4, 3: 5, 4: 6, 6: 7, 7: 8, 8: 9})
    a("s_endpgm")
    a.label("L_fail")
    a("v_mov_b32 v4, s61"); a("s_lshl_b32 s9, s3, 2"); a("v_mov_b32 v5, s9")
    a("s_mov_b64 exec, 1")
    a("global_store_dword v5, v4, s[34:35]")
    a.label("L_exit", flush=False)
    a("s_endpgm")
    return a

def wrap(a, lds=LDS_SIZE):
    hdr = open(REF).read().split("; Override launch geometry")[0]
    s = hdr
    s += "; Generated by gen/k4.py (hand-written schedule, see comments).\n"
    s += f"; @launch grid=(256,1,1) block=(1024,1,1) lds={lds}\n"
    s += '.amdgcn_target "amdgcn-amd-amdhsa--gfx950"\n.text\n'
    s += f".globl {KNAME}\n.p2align 8\n.type {KNAME},@function\n{KNAME}:\n"
    s += a.text().replace("CODE_KIB", "(L_code_end-" + KNAME + ")/1024")
    s += "L_code_end:\n"
    s += '.section .rodata,"a"\n.p2align 6\n'
    s += f".amdhsa_kernel {KNAME}\n"
    s += "  .amdhsa_next_free_vgpr 128\n  .amdhsa_next_free_sgpr 102\n  .amdhsa_accum_offset 128\n"
    s += "  .amdhsa_group_segment_fixed_size 0\n  .amdhsa_kernarg_size 88\n  .amdhsa_user_sgpr_count 2\n"
    s += "  .amdhsa_user_sgpr_kernarg_segment_ptr 1\n  .amdhsa_system_sgpr_workgroup_id_x 1\n"
    s += ".end_amdhsa_kernel\n"
    return s

if __name__ == "__main__":
    out = sys.argv[1]
    class C(Cfg): pass
    for kv in sys.argv[2:]:
        k, v = kv.split("=")
        cur = getattr(Cfg, k)
        if isinstance(cur, bool): val = (v == "1")
        elif isinstance(cur, int): val = int(v, 0)
        else: val = v.replace("_", " ")
        setattr(C, k, val)
    a = build(C)
    open(out, "w").write(wrap(a))
    print(out, "instructions:", a.ninst)
```

```python
import sys, os
sys.path.insert(0, os.path.dirname(os.path.abspath(__file__)))
from dsl import Asm

KNAME = "recurrent_scan__sliding_block_cached__dense_activation_relu__decode_kernel"
REF = "recurrent_scan__sliding_block_cached__dense_activation_relu__decode.s.ref"

V_BASE = 0
XN_BASE = 0
WQ_BASE = 131072
W1_BASE = 147456
P_BASE = 155648
P_STRIDE = 1088
DX_BASE = P_BASE
Q_BASE = 160000
MX_BASE = 161024
LX_BASE = 161152
SC_BASE = 161280
CNT_BASE = 161408
G_BASE = CNT_BASE + 256
LDS_SIZE = 163840
C_W, C_QS, C_KI, C_CLKQ, C_QRDY, C_M, C_P, C_SC = [4 * i for i in range(8)]
C_PROG = 32
C_O, C_LOC, C_TAG, C_EP, C_D, C_W2, C_G, C_S = 48, 52, 56, 60, 64, 68, 72, 76
QBUF = 0x10000
HBUF = 0x60000
MLBUF = 0xA0000
OBUF = 0xB0000
YBUF = 0x140000
SBUF = 0x200000
XCBUF = 0x240000
WS_USED = 0x300000
DIAG = 0x800000
TAGM = 0x3FF
LOG2E = 0x3fb8aa3b
SCALE = 0x3db504f3
EPS = 0x3727c5ac

class Cfg:
    VW = 8
    CLK_WAVE = 6
    KI_TARGET = 8
    STAMP = False
    SMIN = False
    DBGSTAMP = False
    DBGWG = 100
    LDS_LIMIT = 1 << 22
    G_LIMIT = 1 << 20
    NT = " nt"
    PRIO_AUX = 3
    PRIO_K = 1
    PRIO_LD = 0
    Q_SLEEP = 4
    H_AT = 8
    H_SLEEP = 8
    ML_AT = 10
    ML_SLEEP = 8
    XC_AT = 6
    Y_SLEEP = 4
    SL_THR = 16
    SL_LONG = 4
    S_SLEEP = 0
    LS = 4
    PVS = 4
    PV_TIGHT = 12
    WARM = False
    PREF = True
    FORCE_REMOTE = False
    ABL = ""
    FFN_LD = False
    LANE1R = True
    LANE1 = True
    XWIN = ""
    TOUCH = 0
    ENDWAIT = False
    TRUNC = True
    HOIST = True
    OUT_SC1 = False
    S_GATE = 1
    EARLY_POLL = True
    O_NOP = 0
    G_SPLIT = False
    ROTMUL = 0x9E3779B1

def build(cfg=Cfg):
    a = Asm()
    NT = cfg.NT
    stamping = cfg.STAMP or cfg.DBGSTAMP
    def stamp(i):
        if cfg.SMIN and i not in (0, 10): return
        if stamping: a(f"s_memrealtime s[{64+2*i}:{65+2*i}]")
    def stamps_out(n, final=False, dbgmap=None):
        if cfg.DBGSTAMP and dbgmap is not None:
            a("s_waitcnt lgkmcnt(0)")
            a("s_mov_b64 exec, 1")
            a("v_mov_b32 v4, 0")
            Lq = a.new("Lq")
            a(f"s_cmp_eq_u32 s2, {cfg.DBGWG}")
            a.branch(f"s_cbranch_scc0 {Lq}")
            a(f"s_cmp_eq_u32 s3, {dbgmap['wave']}")
            a.branch(f"s_cbranch_scc0 {Lq}")
            for i, slot in dbgmap.items():
                if isinstance(i, int):
                    a(f"v_mov_b32 v5, s{64+2*i}")
                    a(f"global_store_dword v4, v5, s[34:35] offset:{4*slot}")
            a.label(Lq)
            a("s_mov_b64 exec, -1")
        if cfg.STAMP and (final or not cfg.SMIN):
            a("s_waitcnt lgkmcnt(0)")
            a("s_lshl_b32 s9, s2, 4"); a("s_add_u32 s9, s9, s3"); a("s_lshl_b32 s9, s9, 6"); a(f"s_add_u32 s9, s9, {DIAG}")
            a("s_add_u32 s10, s36, s9"); a("s_addc_u32 s11, s37, 0")
            a("v_mov_b32 v4, 0")
            a("s_mov_b64 exec, 1")
            for i in range(n):
                a(f"v_mov_b32 v5, s{64+2*i}")
                a(f"global_store_dword v4, v5, s[10:11] offset:{4*i}")
            a("s_mov_b64 exec, -1")
    def fail_to(code):
        a(f"s_mov_b32 s61, {code}")
        a.branch("s_branch L_fail")
    def spin_tail(L, code, sleep, limit):
        if sleep: a(f"s_sleep {sleep}")
        a("s_add_u32 s60, s60, 1")
        a(f"s_cmp_lt_u32 s60, {limit}")
        a.branch(f"s_cbranch_scc1 {L}")
        fail_to(code)
    def lds_wait(off, target, code, vt="v24", sleep=1):
        L, D = a.new("Lw"), a.new("Ld")
        a("s_mov_b32 s60, 0")
        if cfg.LANE1R: a("s_mov_b64 exec, 1")
        a.label(L)
        a(f"ds_read_b32 {vt}, v2 offset:{off}")
        a("s_waitcnt lgkmcnt(0)")
        a(f"v_readfirstlane_b32 s62, {vt}")
        a(f"s_cmp_ge_u32 s62, {target}")
        a.branch(f"s_cbranch_scc1 {D}", flush=False)
        spin_tail(L, code, sleep, cfg.LDS_LIMIT)
        a.label(D, flush=False)
        if cfg.LANE1R: a("s_mov_b64 exec, -1")
    def prog_wait(target, code, vt=24, sleep=1):
        L, D = a.new("Lp"), a.new("Ld")
        a("s_mov_b32 s60, 0")
        if cfg.LANE1R: a("s_mov_b64 exec, 1")
        a.label(L)
        a(f"ds_read_b128 v[{vt}:{vt+3}], v2 offset:{C_PROG}")
        a("s_waitcnt lgkmcnt(0)")
        a(f"v_min_u32 v{vt}, v{vt}, v{vt+1}")
        a(f"v_min3_u32 v{vt}, v{vt}, v{vt+2}, v{vt+3}")
        a(f"v_readfirstlane_b32 s62, v{vt}")
        a(f"s_cmp_ge_u32 s62, {target}")
        a.branch(f"s_cbranch_scc1 {D}", flush=False)
        spin_tail(L, code, sleep, cfg.LDS_LIMIT)
        a.label(D, flush=False)
        if cfg.LANE1R: a("s_mov_b64 exec, -1")
    def flag_write(addr, val, off=None):
        o = f" offset:{off}" if off is not None else ""
        if cfg.LANE1: a("s_mov_b64 exec, 1")
        a(f"ds_write_b32 {addr}, {val}{o}")
        if cfg.LANE1: a("s_mov_b64 exec, -1")
    def lds_add1(off):
        a("s_mov_b64 exec, 1")
        a(f"ds_add_u32 v2, v1 offset:{off}")
        a("s_mov_b64 exec, -1")
    def srd(dst, lo, size, add=None):
        if add is None:
            a(f"s_mov_b32 s{dst}, s{lo}"); a(f"s_mov_b32 s{dst+1}, s{lo+1}")
        else:
            a(f"s_add_u32 s{dst}, s{lo}, {add}"); a(f"s_addc_u32 s{dst+1}, s{lo+1}, 0")
        a(f"s_mov_b32 s{dst+2}, {size}")
        a(f"s_mov_b32 s{dst+3}, 0x20000")
    def tag4(regs, vtag=14, rnd=True):
        if rnd:
            for r in regs: a(f"v_add_u32 v{r}, 0x200, v{r}")
        for r in regs: a(f"v_and_or_b32 v{r}, v{r}, s58, v{vtag}")
    def poll(loads, regs, acc, code, sleep=0, adaptive=False, vtag=14, preloaded=False):
        L, D = a.new("Lg"), a.new("Ld")
        a("s_mov_b32 s60, 0")
        if preloaded:
            Lc_ = a.new("Lgc")
            a.branch(f"s_branch {Lc_}")
        a.label(L)
        for l in loads: a(l)
        if preloaded: a.label(Lc_)
        a("s_waitcnt vmcnt(0)")
        for r in regs: a(f"v_xor_b32 v{r}, v{vtag}, v{r}")
        it = list(regs)
        a(f"v_or3_b32 v{acc}, v{it[0]}, v{it[1]}, v{it[2]}"); it = it[3:]
        while len(it) >= 2:
            a(f"v_or3_b32 v{acc}, v{it[0]}, v{it[1]}, v{acc}"); it = it[2:]
        if it: a(f"v_or_b32 v{acc}, v{it[0]}, v{acc}")
        a(f"v_and_b32 v{acc}, {TAGM}, v{acc}")
        a(f"v_cmp_ne_u32 vcc, 0, v{acc}")
        a("s_cmp_eq_u64 vcc, 0")
        a.branch(f"s_cbranch_scc1 {D}", flush=False)
        a("s_mov_b64 exec, vcc")
        if adaptive and cfg.SL_LONG:
            Ls = a.new("Ls")
            a("s_bcnt1_i32_b64 s61, vcc")
            a(f"s_cmp_gt_u32 s61, {cfg.SL_THR}")
            a.branch(f"s_cbranch_scc0 {Ls}", flush=False)
            a(f"s_sleep {cfg.SL_LONG}")
            a.label(Ls, flush=False)
        if sleep: a(f"s_sleep {sleep}")
        a("s_add_u32 s60, s60, 1")
        a(f"s_cmp_lt_u32 s60, {cfg.G_LIMIT}")
        a.branch(f"s_cbranch_scc1 {L}")
        a("s_mov_b64 exec, -1")
        fail_to(code)
        a.label(D, flush=False)
        a("s_mov_b64 exec, -1")
    def bf16r(dst, src):
        a(f"v_cvt_pk_bf16_f32 v{dst}, v{src}, v{src}")
        a(f"v_lshlrev_b32 v{dst}, 16, v{dst}")
    DPP = {"x1": "quad_perm:[1,0,3,2]", "x2": "quad_perm:[2,3,0,1]", "r4": "row_ror:4", "r8": "row_ror:8"}
    def dpp_op(op, reg, kind):
        a(f"{op}_dpp v{reg}, v{reg}, v{reg} {DPP[kind]} row_mask:0xf bank_mask:0xf")
    def allred_g(op, reg, tmp):
        for sw in ("v_permlane16_swap_b32", "v_permlane32_swap_b32"):
            a(f"v_mov_b32 v{tmp}, v{reg}")
            a(f"{sw} v{reg}, v{tmp}")
            a(f"{op} v{reg}, v{reg}, v{tmp}")
    def red32(r):
        a(f"v_permlane32_swap_b32 v{r}, v{r+1}")
        a(f"v_permlane32_swap_b32 v{r+2}, v{r+3}")
        a(f"v_add_f32 v{r}, v{r}, v{r+1}")
        a(f"v_add_f32 v{r+2}, v{r+2}, v{r+3}")
        a(f"v_permlane16_swap_b32 v{r}, v{r+2}")
        a(f"v_add_f32 v{r}, v{r}, v{r+2}")
        dpp_op("v_add_f32", r, "r8")
    def kv_offset():
        a("s_lshl_b32 s9, s6, 3"); a("s_add_u32 s9, s9, s4"); a("s_lshl_b32 s9, s9, 22")
        a("s_lshl_b32 s10, s7, 17"); a("s_add_u32 s9, s9, s10"); a(f"s_add_u32 s9, s9, {12288*256}")
    def kv_region(dst, lo):
        a("s_lshl_b32 s9, s6, 3"); a("s_add_u32 s9, s9, s4"); a("s_lshl_b32 s9, s9, 22")
        a("s_lshl_b32 s10, s7, 17"); a("s_add_u32 s9, s9, s10"); a(f"s_add_u32 s9, s9, {12288*256}")
        srd(dst, lo, 131072, add="s9")

    H_OFFS = (0, 16, 512, 528)
    def ffn2_setup():
        a("v_lshlrev_b32 v23, 10, v6"); a("v_lshl_add_u32 v23, v7, 7, v23"); a("v_lshl_add_u32 v23, v5, 5, v23")
        a("v_lshrrev_b32 v16, 2, v4"); a("v_and_b32 v17, 1, v5"); a("v_lshl_add_u32 v17, v17, 2, v16")
        a("v_lshl_add_u32 v22, v5, 3, v16"); a("v_lshlrev_b32 v22, 8, v22"); a("v_lshl_add_u32 v22, v17, 5, v22"); a("v_lshl_add_u32 v22, v7, 3, v22")
        a("s_lshr_b32 s86, s2, 2")
        a("s_lshl_b32 s87, s86, 12"); a(f"s_add_u32 s87, s87, {HBUF}")
        a("v_lshlrev_b32 v19, 1, v7"); a("v_lshrrev_b32 v20, 1, v5"); a("v_add_u32 v19, v19, v20"); a("v_lshlrev_b32 v19, 13, v19")
        a("v_lshl_add_u32 v19, v6, 5, v19"); a("v_and_b32 v20, 1, v5"); a("v_lshl_add_u32 v19, v20, 4, v19")
        a("s_and_b32 s88, s2, 3"); a("s_lshl_b32 s88, s88, 17"); a("s_lshl_b32 s89, s86, 7"); a("s_add_u32 s88, s88, s89"); a(f"s_add_u32 s88, s88, {YBUF}")
    def ffn2_loads():
        return [f"buffer_load_dwordx4 v[{64+4*i}:{67+4*i}], v23, s[52:55], s87 offen offset:{o} sc1" for i, o in enumerate(H_OFFS)]
    def ffn2_rest(preloaded):
        if "H" not in cfg.ABL and "h" not in cfg.ABL: poll(ffn2_loads(), list(range(64, 80)), 41, 0x321, sleep=cfg.H_SLEEP, preloaded=preloaded)
        else: a("s_waitcnt vmcnt(0)")
        for k in range(0, 8, 2): a(f"v_pk_add_f32 v[{64+k}:{65+k}], v[{64+k}:{65+k}], v[{72+k}:{73+k}]")
        for kind in ("x1", "x2"):
            for k in range(8): dpp_op("v_add_f32", 64 + k, kind)
        for k in range(8): a(f"v_max_f32 v{64+k}, 0, v{64+k}")
        for k in range(4): a(f"v_cvt_pk_bf16_f32 v{40+k}, v{64+2*k}, v{65+2*k}")
        for t in range(8):
            a(f"v_xor_b32 v18, {t<<5}, v22")
            a(f"v_add_u32 v18, {W1_BASE}, v18")
            a(f"ds_read_b64_tr_b16 v[{64+4*t}:{65+4*t}], v18")
            a(f"ds_read_b64_tr_b16 v[{66+4*t}:{67+4*t}], v18 offset:1024")
        a("s_waitcnt lgkmcnt(0)")
        a("s_mov_b32 s62, 0xcccccccc"); a("s_mov_b32 s63, 0xcccccccc")
        for t in range(2):
            A, D = 64 + 16 * t, 96
            for q in range(4):
                a(f"v_mfma_f32_16x16x32_bf16 v[{D+4*q}:{D+4*q+3}], v[{A+4*q}:{A+4*q+3}], v[40:43], 0")
            for r in range(4): a(f"v_cndmask_b32 v{44+r}, v{D+r}, v{D+4+r}, s[56:57]")
            for r in range(4): a(f"v_cndmask_b32 v{D+r}, v{D+8+r}, v{D+12+r}, s[56:57]")
            for r in range(4): a(f"v_cndmask_b32 v{44+r}, v{44+r}, v{D+r}, s[62:63]")
            tag4([44, 45, 46, 47])
            if t == 1: a("s_add_u32 s88, s88, 0x10000")
            if "Y" not in cfg.ABL: a("buffer_store_dwordx4 v[44:47], v19, s[52:55], s88 offen sc1")

    a("s_cmp_ge_u32 s2, 256")
    a.branch("s_cbranch_scc1 L_exit", flush=False)
    a("s_load_dwordx16 s[16:31], s[0:1], 0")
    a("s_load_dwordx4 s[32:35], s[0:1], 64")
    a("s_load_dwordx2 s[36:37], s[0:1], 80")
    stamp(0)
    a("v_lshrrev_b32 v1, 6, v0")
    a("v_and_b32 v0, 63, v0")
    a("v_readfirstlane_b32 s3, v1")
    a("s_and_b32 s4, s2, 7")
    a("s_lshr_b32 s5, s2, 3")
    a("s_lshr_b32 s6, s5, 3")
    a("s_and_b32 s7, s5, 7")
    a(f"s_mul_i32 s8, s2, {hex(cfg.ROTMUL)}")
    a("s_lshr_b32 s8, s8, 26")
    a(f"v_mov_b32 v2, {CNT_BASE}")
    a("v_mov_b32 v1, 1")
    a(f"s_mov_b32 s58, {(~TAGM) & 0xffffffff}")
    def start_barrier():
        a("s_barrier")
        a("s_waitcnt lgkmcnt(0)")
    def clear_and_prefetch():
        Lc = a.new("Lc")
        a("s_cmp_eq_u32 s3, 12")
        a.branch(f"s_cbranch_scc0 {Lc}")
        a("v_lshl_add_u32 v14, v0, 2, v2")
        a("v_mov_b32 v15, 0")
        a("ds_write_b32 v14, v15")
        if cfg.PREF:
            a("s_getpc_b64 s[10:11]")
            a.raw("L_pc_here:")
            a("s_sub_u32 s10, s10, L_pc_here-KERNEL_START")
            a("s_subb_u32 s11, s11, 0")
            a("s_lshl_b32 s9, s5, 10")
            a("v_lshl_add_u32 v16, v0, 4, s9")
            a("s_cmp_lt_u32 s5, CODE_KIB")
            Lp = a.new("Lp")
            a.branch(f"s_cbranch_scc0 {Lp}")
            a("global_load_dwordx4 v[20:23], v16, s[10:11]")
            a.label(Lp)
        a("s_waitcnt lgkmcnt(0)")
        a.label(Lc)
    clear_and_prefetch()
    if not cfg.HOIST:
        start_barrier()
        srd(52, 36, WS_USED)
    a("s_cmp_lt_u32 s3, 4")
    a.branch("s_cbranch_scc1 L_aux", flush=False)
    a("s_cmp_ge_u32 s3, 12")
    a.branch("s_cbranch_scc1 L_loader", flush=False)

    if cfg.PRIO_K: a(f"s_setprio {cfg.PRIO_K}")
    a("s_sub_u32 s12, s3, 4")
    if not cfg.HOIST: kv_region(40, 18)
    else: kv_offset()
    a("v_and_b32 v4, 15, v0")
    a("v_lshrrev_b32 v5, 4, v0")
    a("v_lshrrev_b32 v6, 1, v4")
    a("v_lshlrev_b32 v6, 8, v6")
    a("v_and_b32 v7, 1, v4")
    a("v_lshl_add_u32 v6, v7, 6, v6")
    a("v_lshl_add_u32 v3, v5, 4, v6")
    a("s_lshl_b32 s13, s12, 3"); a("s_add_u32 s13, s13, s8")
    if cfg.HOIST:
        a("s_mov_b32 s42, 131072"); a("s_mov_b32 s43, 0x20000")
        start_barrier()
        a("s_add_u32 s40, s18, s9"); a("s_addc_u32 s41, s19, 0")
    KREG = 64
    for i in range(16):
        m, s = i >> 1, i & 1
        if i == 15:
            Lx = a.new("Lk")
            a(f"s_cmp_eq_u32 s12, {cfg.CLK_WAVE}")
            a.branch(f"s_cbranch_scc0 {Lx}", flush=False)
            flag_write("v2", "v1", C_CLKQ)
            a.label(Lx, flush=False)
        if s == 0:
            a(f"s_add_u32 s10, s13, {m}")
            a("s_and_b32 s10, s10, 63")
            a("s_lshl_b32 s10, s10, 11")
        a(f"buffer_load_dwordx4 v[{KREG+4*i}:{KREG+4*i+3}], v3, s[40:43], s10 offen offset:{s*128}{NT}")
        if i == 0: stamp(8)
    lds_add1(C_KI)
    if cfg.HOIST: srd(52, 36, WS_USED)
    stamp(1)
    a("v_lshrrev_b32 v6, 1, v4"); a("v_and_b32 v6, 3, v6")
    a("v_lshlrev_b32 v8, 8, v6")
    a("v_lshl_add_u32 v8, v7, 6, v8")
    a("v_lshl_add_u32 v8, v5, 4, v8")
    a(f"v_add_u32 v8, {Q_BASE}, v8")
    a("s_mov_b32 s56, 0xaaaaaaaa"); a("s_mov_b32 s57, 0xaaaaaaaa")
    lds_wait(C_QRDY, 1, 0x101, sleep=cfg.LS)
    a("ds_read_b128 v[12:15], v8 offset:128")
    a("ds_read_b128 v[8:11], v8")
    stamp(2)
    a("s_waitcnt lgkmcnt(0)")
    for m in range(8):
        a(f"s_waitcnt vmcnt({14-2*m})")
        D = 32 + 4 * m
        a(f"v_mfma_f32_16x16x32_bf16 v[{D}:{D+3}], v[{KREG+8*m}:{KREG+8*m+3}], v[8:11], 0")
        a(f"v_mfma_f32_16x16x32_bf16 v[{D}:{D+3}], v[{KREG+8*m+4}:{KREG+8*m+7}], v[12:15], v[{D}:{D+3}]")
    stamp(3)
    for m in range(8):
        D = 32 + 4 * m
        a(f"v_add_f32_dpp v24, v{D+1}, v{D} {DPP['x1']} row_mask:0xf bank_mask:0xf")
        a(f"v_add_f32_dpp v25, v{D+2}, v{D+3} {DPP['x1']} row_mask:0xf bank_mask:0xf")
        a(f"v_cndmask_b32 v{16+m}, v24, v25, s[56:57]")
    for m in range(0, 8, 2):
        x, y = 16 + m, 17 + m
        a(f"v_cvt_pk_bf16_f32 v24, v{x}, v{y}")
        a(f"v_lshlrev_b32 v{x}, 16, v24")
        a(f"v_and_b32 v{y}, 0xffff0000, v24")
        a(f"v_mul_f32 v{x}, {hex(SCALE)}, v{x}")
        a(f"v_mul_f32 v{y}, {hex(SCALE)}, v{y}")
        a(f"v_cvt_pk_bf16_f32 v24, v{x}, v{y}")
        a(f"v_lshlrev_b32 v{x}, 16, v24")
        a(f"v_and_b32 v{y}, 0xffff0000, v24")
    a("v_max3_f32 v24, v16, v17, v18"); a("v_max3_f32 v24, v24, v19, v20"); a("v_max3_f32 v24, v24, v21, v22"); a("v_max_f32 v24, v24, v23")
    dpp_op("v_max_f32", 24, "x1")
    allred_g("v_max_f32", 24, 25)
    a("v_lshlrev_b32 v26, 5, v6")
    a("s_lshl_b32 s9, s12, 2"); a(f"s_add_u32 s9, s9, {MX_BASE}")
    a("v_add_u32 v27, s9, v26")
    a("ds_write_b32 v27, v24")
    lds_add1(C_M)
    lds_wait(C_M, 8, 0x102, vt="v25", sleep=0)
    a(f"v_add_u32 v28, {MX_BASE}, v26")
    a("ds_read_b128 v[32:35], v28")
    a("ds_read_b128 v[36:39], v28 offset:16")
    a("s_waitcnt lgkmcnt(0)")
    a("v_max3_f32 v24, v32, v33, v34"); a("v_max3_f32 v24, v24, v35, v36"); a("v_max3_f32 v24, v24, v37, v38"); a("v_max_f32 v24, v24, v39")
    for m in range(8): a(f"v_sub_f32 v{16+m}, v{16+m}, v24")
    for m in range(8): a(f"v_mul_f32 v{16+m}, {hex(LOG2E)}, v{16+m}")
    for m in range(8): a(f"v_exp_f32 v{16+m}, v{16+m}")
    a(f"v_mul_u32_u24 v29, {P_STRIDE}, v6")
    a("v_lshl_add_u32 v29, v5, 2, v29")
    a("v_lshl_add_u32 v29, v7, 1, v29")
    a("s_lshl_b32 s9, s12, 7"); a(f"s_add_u32 s9, s9, {P_BASE}")
    a("v_add_u32 v29, s9, v29")
    for m in range(8):
        a(f"v_cvt_pk_bf16_f32 v{32+m}, v{16+m}, v{16+m}")
        a(f"ds_write_b16 v29, v{32+m} offset:{16*m}")
    a("v_add_f32 v24, v16, v17"); a("v_add_f32 v25, v18, v19"); a("v_add_f32 v30, v20, v21"); a("v_add_f32 v31, v22, v23")
    a("v_add_f32 v24, v24, v25"); a("v_add_f32 v30, v30, v31"); a("v_add_f32 v24, v24, v30")
    dpp_op("v_add_f32", 24, "x1")
    allred_g("v_add_f32", 24, 25)
    a(f"v_add_u32 v27, {LX_BASE-MX_BASE}, v27")
    a("ds_write_b32 v27, v24")
    lds_add1(C_P)
    stamp(4)
    lds_wait(C_P, 8, 0x103, vt="v25", sleep=0)
    a("v_and_b32 v6, 3, v4")
    a(f"v_mul_u32_u24 v29, {P_STRIDE}, v6")
    a("v_lshl_add_u32 v29, v5, 4, v29")
    a(f"v_add_u32 v29, {P_BASE}, v29")
    for ks in range(16):
        a(f"ds_read_b128 v[{64+4*ks}:{64+4*ks+3}], v29 offset:{64*ks}")
    a("v_lshrrev_b32 v8, 2, v4"); a("v_and_b32 v9, 3, v4"); a("v_and_b32 v10, 1, v5")
    a("v_lshl_add_u32 v10, v10, 2, v8")
    a("v_xor_b32 v10, s12, v10")
    a("v_lshl_add_u32 v11, v5, 3, v8")
    a("v_lshlrev_b32 v11, 8, v11")
    a("v_lshl_add_u32 v11, v10, 5, v11")
    a("v_lshl_add_u32 v11, v9, 3, v11")
    a("v_add_u32 v12, 0x10000, v11")
    a("v_lshlrev_b32 v13, 14, v6"); a("v_lshl_add_u32 v13, v5, 4, v13")
    a("s_lshl_b32 s9, s4, 16"); a("s_lshl_b32 s10, s5, 9"); a("s_add_u32 s9, s9, s10")
    a("s_lshl_b32 s10, s12, 6"); a("s_add_u32 s9, s9, s10"); a(f"s_add_u32 s14, s9, {OBUF}")
    a("s_mov_b32 s63, 0")
    a("s_waitcnt lgkmcnt(0)")
    stamp(5)
    def pv_mfma(ks):
        A = 32 + 4 * (ks & 3)
        a(f"v_mfma_f32_16x16x32_bf16 v[48:51], v[{A}:{A+3}], v[{64+4*ks}:{64+4*ks+3}], " + ("0" if ks == 0 else "v[48:51]"))
    for ks in range(16):
        Lok = a.new("Lok")
        if ks == 12:
            a(f"ds_read_b32 v14, v2 offset:{C_TAG}")
            lds_wait(C_LOC, 1, 0x106)
            a("s_mov_b32 s15, s62")
        a(f"s_cmp_ge_u32 s63, {ks+1}")
        a.branch(f"s_cbranch_scc1 {Lok}", flush=False)
        prog_wait(ks + 1, 0x105, sleep=(cfg.PVS if ks < cfg.PV_TIGHT else 0))
        a("s_mov_b32 s63, s62")
        a.label(Lok, flush=False)
        ad = "v11" if ks < 8 else "v12"
        off = (ks & 7) * 8192
        A = 32 + 4 * (ks & 3)
        a(f"ds_read_b64_tr_b16 v[{A}:{A+1}], {ad} offset:{off}")
        a(f"ds_read_b64_tr_b16 v[{A+2}:{A+3}], {ad} offset:{off+1024}")
        if ks > 0:
            a("s_waitcnt lgkmcnt(2)")
            pv_mfma(ks - 1)
    a("s_mov_b32 s10, 0x000f000f")
    a("s_waitcnt lgkmcnt(0)")
    pv_mfma(15)
    stamp(6)
    tag4([48, 49, 50, 51], rnd=not cfg.TRUNC)
    a("s_mov_b32 exec_lo, s10"); a("s_mov_b32 exec_hi, s10")
    Lr, Lj = a.new("Lr"), a.new("Lj")
    a("s_cmp_eq_u32 s15, 1")
    a.branch(f"s_cbranch_scc0 {Lr}", flush=False)
    a("buffer_store_dwordx4 v[48:51], v13, s[52:55], s14 offen")
    a.branch(f"s_branch {Lj}", flush=False)
    a.label(Lr, flush=False)
    a("buffer_store_dwordx4 v[48:51], v13, s[52:55], s14 offen sc1")
    a.label(Lj, flush=False)
    lds_add1(C_O)
    stamp(7)
    stamps_out(9, dbgmap={"wave": 4, 0: 10, 8: 11, 1: 12})
    a("s_endpgm")

    a.label("L_loader")
    if cfg.PRIO_LD: a(f"s_setprio {cfg.PRIO_LD}")
    if cfg.HOIST:
        start_barrier()
        srd(52, 36, WS_USED)
    a("s_sub_u32 s12, s3, 12")
    kv_region(40, 20)
    srd(44, 24, 4096 * 1024)
    a("v_lshrrev_b32 v5, 4, v0")
    a("s_and_b32 s9, s12, 1"); a("s_lshl_b32 s9, s9, 2")
    a("v_or_b32 v6, s9, v5")
    a("v_lshlrev_b32 v6, 1, v6")
    a("v_and_b32 v7, 15, v0")
    a("v_xor_b32 v6, v6, v7")
    a("v_lshlrev_b32 v6, 4, v6")
    a("v_lshl_add_u32 v8, v5, 8, v6")
    a("s_lshl_b32 s9, s12, 2"); a(f"s_add_u32 s9, s9, {C_PROG}")
    a("v_add_u32 v10, s9, v2")
    a("v_lshrrev_b32 v12, 3, v0"); a("v_and_b32 v13, 7, v0"); a("v_lshlrev_b32 v13, 4, v13"); a("v_lshl_add_u32 v12, v12, 10, v13")
    a("s_lshl_b32 s9, s4, 2"); a("s_add_u32 s9, s9, s6"); a("s_lshl_b32 s9, s9, 7")
    a("s_lshl_b32 s10, s12, 5"); a("s_add_u32 s9, s9, s10"); a("s_lshl_b32 s9, s9, 10")
    a("s_lshl_b32 s10, s7, 7"); a("s_add_u32 s15, s9, s10")
    a("s_lshl_b32 s11, s12, 11")
    a("s_add_u32 s14, s8, s12")
    if cfg.FFN_LD:
        a("v_and_b32 v4, 15, v0"); a("v_lshrrev_b32 v6, 2, v4"); a("v_and_b32 v7, 3, v4")
        ffn2_setup()
    if cfg.TOUCH:
        srd(48, 32, 4096)
        a("v_lshlrev_b32 v16, 14, v0")
        T = cfg.TOUCH
        def touch(srd_, soff, nl):
            a(f"s_mov_b64 exec, {(1 << nl) - 1}")
            a(f"buffer_load_dword v17, v16, {srd_}, {soff} offen{NT}")
        if T & 1: touch("s[40:43]", "0", 1)
        if T & 2: touch("s[40:43]", "0", 8)
        if T & 4: touch("s[44:47]", "s15", 1)
        if T & 8: touch("s[44:47]", "s15", 8)
        if T & 16: touch("s[48:51]", "0", 1)
        if T & 32:
            a("v_lshlrev_b32 v16, 18, v0")
            a("s_mov_b64 exec, 0x7ff")
            a(f"buffer_load_dword v17, v16, s[52:55], 0 offen{NT}")
        a("s_mov_b64 exec, -1")
    lds_wait(C_KI, cfg.KI_TARGET - 2, 0x206, sleep=cfg.LS)
    lds_wait(C_KI, cfg.KI_TARGET, 0x201)
    lds_wait(C_QS, 4, 0x202)
    stamp(1)
    def v_part(ks):
        a(f"s_add_u32 s10, s14, {4*ks}")
        a("s_and_b32 s10, s10, 63")
        a("s_lshl_b32 s10, s10, 11")
        a(f"s_add_u32 s13, s11, {V_BASE + 8192*ks}")
        a("s_mov_b32 m0, s13")
        a("s_nop 0")
        a(f"buffer_load_dwordx4 v8, s[40:43], s10 offen{NT} lds")
        a(f"buffer_load_dwordx4 v8, s[40:43], s10 offen offset:1024{NT} lds")
    if not cfg.XWIN:
        published = 0
        for ks in range(16):
            N = cfg.VW - 2
            if 2 * (ks - published) > N:
                a(f"s_waitcnt vmcnt({N})")
                published = ks - N // 2
                a(f"v_mov_b32 v11, {published}")
                flag_write("v10", "v11")
            v_part(ks)
    else:
        xw = [int(x) for x in cfg.XWIN.split(",")]
        wins = sorted(set(xw))
        a("s_getreg_b32 s9, hwreg(HW_REG_XCC_ID, 0, 3)")
        a("s_mov_b32 s59, 0")
        a("v_mov_b32 v11, 0")
        for x, w in enumerate(xw):
            if wins.index(w):
                a(f"s_cmp_eq_u32 s9, {x}")
                a(f"s_cselect_b32 s59, {wins.index(w)}, s59")
        for ks in range(16):
            Ln = a.new("Lvn")
            need = [wi for wi, W in enumerate(wins) if 2 * ks > W - 2]
            labs = {wi: a.new("Lvw") for wi in need}
            if need:
                for wi in need[1:]:
                    a(f"s_cmp_eq_u32 s59, {wi}")
                    a.branch(f"s_cbranch_scc1 {labs[wi]}", flush=False)
                if len(need) < len(wins):
                    a(f"s_cmp_eq_u32 s59, {need[0]}")
                    a.branch(f"s_cbranch_scc0 {Ln}", flush=False)
                for k2, wi in enumerate(need):
                    W = wins[wi]
                    if k2: a.label(labs[wi], flush=False)
                    a(f"s_waitcnt vmcnt({W-2})")
                    a(f"v_mov_b32 v11, {ks - (W-2)//2}")
                    flag_write("v10", "v11")
                    if k2 < len(need) - 1: a.branch(f"s_branch {Ln}", flush=False)
                a.label(Ln, flush=False)
            v_part(ks)
        published = 16 - max(wins) // 2
    stamp(2)
    a("s_lshl_b32 s11, s12, 12")
    for i in range(4):
        a(f"s_add_u32 s13, s11, {WQ_BASE + 1024*i}")
        a("s_mov_b32 m0, s13")
        a(f"s_add_u32 s10, s15, {8192*i}")
        a(f"buffer_load_dwordx4 v12, s[44:47], s10 offen{NT} lds")
    def drain(extra):
        for k in range(16 - published - 1, -1, -1):
            a(f"s_waitcnt vmcnt({4 + extra + 2*k})")
            a(f"v_max_u32 v11, {16 - k}, v11" if cfg.XWIN else f"v_mov_b32 v11, {16 - k}")
            flag_write("v10", "v11")
            if k == 0: stamp(3)
        a(f"s_waitcnt vmcnt({extra})")
        a("v_mov_b32 v11, 17")
        flag_write("v10", "v11")
        stamp(4)
    Lfin, Lgate = a.new("Lfin"), a.new("Lgate")
    if cfg.FFN_LD:
        Lnf = a.new("Lnf")
        a("s_cmp_eq_u32 s3, 13")
        a.branch(f"s_cbranch_scc0 {Lnf}", flush=False)
        a("s_cmp_lt_u32 s2, 224")
        a.branch(f"s_cbranch_scc0 {Lnf}", flush=False)
        for l in ffn2_loads(): a(l)
        a(f"ds_read_b32 v14, v2 offset:{C_TAG}")
        drain(4)
        a("s_mov_b32 s56, 0xaaaaaaaa"); a("s_mov_b32 s57, 0xaaaaaaaa")
        lds_wait(C_W2, 1, 0x324)
        ffn2_rest(True)
        stamp(5)
        a.branch("s_branch L_ldend")
        a.label(Lnf)
    drain(0)
    a("s_cmp_lt_u32 s2, 64")
    a.branch("s_cbranch_scc0 L_ld10", flush=False)
    a("s_cmp_eq_u32 s3, 12")
    a.branch(f"s_cbranch_scc1 {Lfin}", flush=False)
    if cfg.G_SPLIT:
        a("s_cmp_eq_u32 s3, 14")
        a.branch(f"s_cbranch_scc1 {Lgate}", flush=False)
    a.label("L_ld10", flush=False)
    stamp(10)
    a.label("L_ldend", flush=False)
    if cfg.STAMP and not cfg.SMIN: a("s_getreg_b32 s74, hwreg(HW_REG_HW_ID)")
    stamps_out(11, final=True, dbgmap={"wave": 12, 1: 13, 3: 14})
    a("s_waitcnt lgkmcnt(0)")
    a("s_endpgm")
    def gate():
        a("s_lshl_b32 s9, s2, 13"); a(f"s_add_u32 s9, s9, {YBUF}"); a("s_add_u32 s10, s9, 4096")
        a("s_waitcnt lgkmcnt(0)")
        yl = [f"buffer_load_dwordx4 v[{64+4*i}:{67+4*i}], v18, s[52:55], {'s9' if i < 4 else 's10'} offen offset:{1024*(i&3)} sc1" for i in range(7)]
        if "Y" not in cfg.ABL and "y" not in cfg.ABL: poll(yl, list(range(64, 92)), 41, 0x342, sleep=cfg.Y_SLEEP)
        else: a("s_waitcnt vmcnt(0)")
        for k in range(0, 4, 2):
            a(f"v_pk_add_f32 v[{64+k}:{65+k}], v[{64+k}:{65+k}], v[{68+k}:{69+k}]"); a(f"v_pk_add_f32 v[{72+k}:{73+k}], v[{72+k}:{73+k}], v[{76+k}:{77+k}]"); a(f"v_pk_add_f32 v[{80+k}:{81+k}], v[{80+k}:{81+k}], v[{84+k}:{85+k}]")
        for k in range(0, 4, 2):
            a(f"v_pk_add_f32 v[{64+k}:{65+k}], v[{64+k}:{65+k}], v[{72+k}:{73+k}]"); a(f"v_pk_add_f32 v[{80+k}:{81+k}], v[{80+k}:{81+k}], v[{88+k}:{89+k}]")
        for k in range(0, 4, 2): a(f"v_pk_add_f32 v[{64+k}:{65+k}], v[{64+k}:{65+k}], v[{80+k}:{81+k}]")
        red32(64)
        bf16r(64, 64)
        a(f"v_mul_f32 v65, {hex(LOG2E ^ 0x80000000)}, v64")
        a("v_exp_f32 v65, v65")
        a("v_add_f32 v65, 1.0, v65")
        a("v_rcp_f32 v65, v65")
        a("v_mul_f32 v65, v64, v65")
        bf16r(102, 65)
    if cfg.G_SPLIT:
        a.label(Lgate)
        a(f"ds_read_b32 v14, v2 offset:{C_TAG}")
        a("v_lshlrev_b32 v18, 4, v0")
        gate()
        a("v_lshlrev_b32 v18, 2, v0"); a(f"v_add_u32 v18, {G_BASE}, v18")
        a("ds_write_b32 v18, v102")
        flag_write("v2", "v1", C_G)
        stamp(5)
        a.branch("s_branch L_ld10")
    a.label(Lfin)
    a("s_setprio 3")
    a(f"ds_read_b32 v14, v2 offset:{C_TAG}")
    srd(40, 16, 4096)
    srd(44, 32, 4096)
    a("v_lshlrev_b32 v18, 4, v0")
    a("v_lshrrev_b32 v20, 1, v5"); a("v_and_b32 v21, 1, v5"); a("v_lshl_add_u32 v20, v21, 1, v20")
    a("v_and_b32 v21, 1, v0"); a("v_lshl_add_u32 v20, v21, 2, v20")
    a("v_lshrrev_b32 v21, 1, v0"); a("v_and_b32 v21, 3, v21"); a("v_lshl_add_u32 v20, v21, 9, v20")
    a("s_lshl_b32 s10, s2, 3")
    a("v_add_u32 v20, s10, v20"); a("v_lshlrev_b32 v100, 1, v20")
    a("buffer_load_ushort v101, v100, s[40:43], 0 offen")
    if not cfg.G_SPLIT: gate()
    else: a("s_waitcnt vmcnt(0) lgkmcnt(0)")
    a("v_lshlrev_b32 v101, 16, v101")
    a("s_lshl_b32 s9, s2, 12"); a(f"s_add_u32 s9, s9, {SBUF}")
    stamp(5)
    if cfg.S_GATE: lds_wait(C_S, cfg.S_GATE, 0x364, sleep=1)
    ld = [f"buffer_load_dwordx4 v[{64+4*i}:{67+4*i}], v18, s[52:55], s9 offen offset:{1024*i} sc1" for i in range(4)]
    poll(ld, list(range(64, 80)), 41, 0x360, sleep=cfg.S_SLEEP)
    stamp(9)
    for k in range(0, 4, 2):
        a(f"v_pk_add_f32 v[{64+k}:{65+k}], v[{64+k}:{65+k}], v[{68+k}:{69+k}]"); a(f"v_pk_add_f32 v[{72+k}:{73+k}], v[{72+k}:{73+k}], v[{76+k}:{77+k}]")
    for k in range(0, 4, 2): a(f"v_pk_add_f32 v[{64+k}:{65+k}], v[{64+k}:{65+k}], v[{72+k}:{73+k}]")
    red32(64)
    bf16r(64, 64)
    if cfg.G_SPLIT:
        lds_wait(C_G, 1, 0x363, sleep=0)
        a("v_lshlrev_b32 v18, 2, v0"); a(f"v_add_u32 v18, {G_BASE}, v18")
        a("ds_read_b32 v102, v18")
        a("s_waitcnt lgkmcnt(0)")
    a("v_mul_f32 v64, v64, v102"); bf16r(64, 64)
    a("v_add_f32 v64, v101, v64")
    a("v_cvt_pk_bf16_f32 v64, v64, v64")
    a("s_mov_b32 exec_lo, 0x00ff00ff"); a("s_mov_b32 exec_hi, 0x00ff00ff")
    a("buffer_store_short v64, v100, s[44:47], 0 offen" + (" sc1" if cfg.OUT_SC1 else ""))
    a("s_mov_b64 exec, -1")
    Le = a.new("Le")
    a("s_cmp_eq_u32 s2, 0")
    a.branch(f"s_cbranch_scc0 {Le}")
    a(f"ds_read_b32 v4, v2 offset:{C_EP}"); a("v_mov_b32 v5, 0")
    a("s_waitcnt lgkmcnt(0)")
    a("s_mov_b64 exec, 1")
    a("buffer_store_dword v4, v5, s[52:55], 0 offen sc1")
    a("s_mov_b64 exec, -1")
    a.label(Le)
    if cfg.ENDWAIT: a("s_waitcnt vmcnt(0)")
    stamp(10)
    stamps_out(11, final=True)
    a("s_endpgm")

    a.label("L_aux")
    if cfg.PRIO_AUX: a(f"s_setprio {cfg.PRIO_AUX}")
    a("v_and_b32 v4, 15, v0")
    a("v_lshrrev_b32 v5, 4, v0")
    a("v_lshrrev_b32 v6, 2, v4")
    a("v_and_b32 v7, 3, v4")
    a("v_lshl_add_u32 v8, v7, 2, v5"); a("v_lshlrev_b32 v8, 6, v8"); a("v_lshl_add_u32 v8, v6, 10, v8")
    if cfg.HOIST:
        start_barrier()
    srd(40, 16, 4096)
    for i in range(4):
        a(f"buffer_load_dwordx4 v[{16+4*i}:{19+4*i}], v8, s[40:43], 0 offen offset:{16*i}")
    srd(44, 22, 512 * 8192)
    srd(48, 28, 512 * 3584)
    if cfg.HOIST: srd(52, 36, WS_USED)
    a("s_cmp_lt_u32 s2, 224")
    a("s_cselect_b32 s50, s50, 0")
    a("v_lshlrev_b32 v9, 4, v5"); a("v_lshl_add_u32 v9, v6, 10, v9")
    a("s_lshr_b32 s12, s5, 3")
    a("s_and_b32 s13, s5, 7")
    a("s_and_b32 s14, s2, 7")
    a("s_lshr_b32 s15, s2, 3")
    a("s_lshl_b32 s9, s12, 8"); a("s_lshl_b32 s10, s3, 6"); a("s_add_u32 s9, s9, s10")
    a("buffer_load_dwordx4 v[32:35], v9, s[40:43], s9 offen")
    a("s_lshl_b32 s9, s14, 7"); a("s_and_b32 s10, s3, 1"); a("s_lshl_b32 s10, s10, 6"); a("s_add_u32 s9, s9, s10")
    a("buffer_load_dwordx4 v[36:39], v9, s[40:43], s9 offen")
    a("v_lshrrev_b32 v10, 3, v0"); a("v_and_b32 v11, 7, v0"); a("v_lshlrev_b32 v11, 4, v11")
    a("v_lshl_add_u32 v12, v10, 13, v11")
    a("v_mul_u32_u24 v13, 3584, v10"); a("v_add_u32 v13, v13, v11")
    a("s_lshl_b32 s9, s12, 7"); a("s_lshl_b32 s10, s3, 5"); a("s_add_u32 s9, s9, s10"); a("s_lshl_b32 s9, s9, 13")
    a("s_lshl_b32 s10, s4, 10"); a("s_add_u32 s9, s9, s10"); a("s_lshl_b32 s10, s13, 7"); a("s_add_u32 s9, s9, s10")
    a("s_lshl_b32 s11, s3, 12")
    for i in range(4):
        a(f"s_add_u32 s10, s11, {WQ_BASE + 1024*i}")
        a("s_mov_b32 m0, s10")
        a(f"s_add_u32 s10, s9, {8*8192*i}")
        a(f"buffer_load_dwordx4 v12, s[44:47], s10 offen{NT} lds")
    a("s_lshl_b32 s9, s14, 6"); a("s_lshl_b32 s10, s3, 4"); a("s_add_u32 s9, s9, s10"); a("s_mul_i32 s9, s9, 3584")
    a("s_lshl_b32 s10, s15, 7"); a("s_add_u32 s9, s9, s10")
    a("s_lshl_b32 s11, s3, 11")
    for i in range(2):
        a(f"s_add_u32 s10, s11, {W1_BASE + 1024*i}")
        a("s_mov_b32 m0, s10")
        a(f"s_add_u32 s10, s9, {8*3584*i}")
        a(f"buffer_load_dwordx4 v13, s[48:51], s10 offen{NT} lds")
    Lc = a.new("Lc")
    a("s_cmp_eq_u32 s3, 0")
    a.branch(f"s_cbranch_scc0 {Lc}", flush=False)
    a("s_load_dword s38, s[36:37], 0")
    a.label(Lc, flush=False)
    stamp(1)
    a("s_waitcnt vmcnt(6)")
    for i in range(16):
        a(f"v_lshlrev_b32 v{64+2*i}, 16, v{16+i}")
        a(f"v_and_b32 v{65+2*i}, 0xffff0000, v{16+i}")
    for k in range(0, 8, 2): a(f"v_pk_add_f32 v[{40+k}:{41+k}], v[{64+k}:{65+k}], v[{72+k}:{73+k}]")
    for i in (16, 24):
        for k in range(0, 8, 2): a(f"v_pk_add_f32 v[{40+k}:{41+k}], v[{40+k}:{41+k}], v[{64+i+k}:{65+i+k}]")
    a("v_pk_add_f32 v[40:41], v[40:41], v[42:43]"); a("v_pk_add_f32 v[44:45], v[44:45], v[46:47]"); a("v_pk_add_f32 v[40:41], v[40:41], v[44:45]")
    a("v_add_f32 v40, v40, v41")
    dpp_op("v_add_f32", 40, "x1"); dpp_op("v_add_f32", 40, "x2"); allred_g("v_add_f32", 40, 41)
    a("v_mul_f32 v40, 0x3b000000, v40")
    for i in range(32): a(f"v_sub_f32 v{64+i}, v{64+i}, v40")
    for k in range(4): a(f"v_mul_f32 v{42+k}, v{64+k}, v{64+k}")
    for i in range(4, 32, 4):
        for k in range(4): a(f"v_fmac_f32 v{42+k}, v{64+i+k}, v{64+i+k}")
    a("v_add_f32 v42, v42, v43"); a("v_add_f32 v44, v44, v45"); a("v_add_f32 v42, v42, v44")
    dpp_op("v_add_f32", 42, "x1"); dpp_op("v_add_f32", 42, "x2"); allred_g("v_add_f32", 42, 41)
    a("v_mul_f32 v42, 0x3b000000, v42")
    bf16r(40, 40); bf16r(42, 42)
    a(f"v_add_f32 v42, {hex(EPS)}, v42"); bf16r(42, 42)
    a("v_sqrt_f32 v42, v42"); bf16r(42, 42)
    a("v_rcp_f32 v42, v42")
    for d in range(32, 40):
        a(f"v_lshlrev_b32 v44, 16, v{d}")
        a(f"v_and_b32 v45, 0xffff0000, v{d}")
        a("v_sub_f32 v44, v44, v40"); a("v_sub_f32 v45, v45, v40")
        a("v_cvt_pk_bf16_f32 v46, v44, v45")
        a("v_lshlrev_b32 v44, 16, v46"); a("v_and_b32 v45, 0xffff0000, v46")
        a("v_mul_f32 v44, v44, v42"); a("v_mul_f32 v45, v45, v42")
        a(f"v_cvt_pk_bf16_f32 v{d}, v44, v45")
    a("v_lshlrev_b32 v15, 4, v0")
    a("s_lshl_b32 s9, s3, 10"); a(f"s_add_u32 s9, s9, {XN_BASE}")
    a("v_add_u32 v44, s9, v15")
    a("ds_write_b128 v44, v[32:35]")
    a("s_and_b32 s9, s3, 1"); a("s_lshl_b32 s9, s9, 10"); a(f"s_add_u32 s9, s9, {XN_BASE + 4096}")
    a("v_add_u32 v44, s9, v15")
    a("ds_write_b128 v44, v[36:39]")
    stamp(2)
    a("s_waitcnt vmcnt(0) lgkmcnt(0)")
    Lc = a.new("Lc")
    a("s_cmp_eq_u32 s3, 0")
    a.branch(f"s_cbranch_scc0 {Lc}", flush=False)
    a("s_add_u32 s38, s38, 1")
    a(f"s_and_b32 s39, s38, {TAGM}")
    a("v_mov_b32 v44, s39"); a("v_mov_b32 v45, s38")
    a(f"ds_write_b64 v2, v[44:45] offset:{C_TAG}")
    a.label(Lc)
    lds_add1(C_W)
    lds_wait(C_W, 4, 0x301, sleep=0)
    a(f"ds_read_b32 v14, v2 offset:{C_TAG}")
    stamp(3)
    if XN_BASE: a(f"v_add_u32 v15, {XN_BASE}, v15")
    for f in range(6):
        a(f"ds_read_b128 v[{32+4*f}:{35+4*f}], v15 offset:{1024*f}")
    a("v_lshrrev_b32 v8, 2, v4"); a("v_lshl_add_u32 v9, v5, 3, v8"); a("v_lshlrev_b32 v9, 7, v9"); a("v_lshl_add_u32 v9, v7, 3, v9")
    a("s_lshl_b32 s9, s3, 5")
    a(f"s_add_u32 s10, s9, {WQ_BASE}"); a("v_add_u32 v10, s10, v9")
    a(f"s_add_u32 s10, s9, {W1_BASE}"); a("v_add_u32 v11, s10, v9")
    a("v_mov_b32 v13, v10")
    for ks in range(4):
        a(f"ds_read_b64_tr_b16 v[{64+4*ks}:{65+4*ks}], v10 offset:{4096*ks}")
        a(f"ds_read_b64_tr_b16 v[{66+4*ks}:{67+4*ks}], v10 offset:{4096*ks+512}")
    for ks in range(2):
        a(f"ds_read_b64_tr_b16 v[{80+4*ks}:{81+4*ks}], v11 offset:{4096*ks}")
        a(f"ds_read_b64_tr_b16 v[{82+4*ks}:{83+4*ks}], v11 offset:{4096*ks+512}")
    a("s_waitcnt lgkmcnt(0)")
    lds_add1(C_QS)
    for ks in range(4):
        a(f"v_mfma_f32_16x16x32_bf16 v[56:59], v[{64+4*ks}:{67+4*ks}], v[{32+4*ks}:{35+4*ks}], " + ("0" if ks == 0 else "v[56:59]"))
    for ks in range(2):
        a(f"v_mfma_f32_16x16x32_bf16 v[60:63], v[{80+4*ks}:{83+4*ks}], v[{48+4*ks}:{51+4*ks}], " + ("0" if ks == 0 else "v[60:63]"))
    a("v_lshlrev_b32 v8, 13, v6"); a("v_lshl_add_u32 v8, v5, 4, v8")
    a("s_lshl_b32 s9, s4, 15"); a("s_lshl_b32 s10, s12, 11"); a("s_add_u32 s9, s9, s10")
    a("s_lshl_b32 s10, s13, 8"); a("s_add_u32 s9, s9, s10"); a("s_lshl_b32 s10, s3, 6"); a("s_add_u32 s9, s9, s10")
    a(f"s_add_u32 s9, s9, {QBUF}")
    tag4([56, 57, 58, 59])
    a("s_mov_b32 exec_lo, 0x11111111"); a("s_mov_b32 exec_hi, 0x11111111")
    if "Q" not in cfg.ABL: a("buffer_store_dwordx4 v[56:59], v8, s[52:55], s9 offen sc1")
    a("s_mov_b64 exec, -1")
    Lnh = a.new("Lnh")
    a("s_cmp_lt_u32 s2, 224")
    a.branch(f"s_cbranch_scc0 {Lnh}")
    a("v_lshlrev_b32 v9, 10, v6"); a("v_lshl_add_u32 v9, v5, 4, v9")
    a("s_lshl_b32 s9, s15, 1"); a("s_lshr_b32 s10, s3, 1"); a("s_add_u32 s9, s9, s10"); a("s_lshl_b32 s9, s9, 12")
    a("s_lshl_b32 s10, s14, 7"); a("s_add_u32 s9, s9, s10")
    a("s_and_b32 s10, s3, 1"); a("s_lshl_b32 s10, s10, 6"); a("s_add_u32 s9, s9, s10")
    a(f"s_add_u32 s9, s9, {HBUF}")
    tag4([60, 61, 62, 63])
    a("s_mov_b32 exec_lo, 0x11111111"); a("s_mov_b32 exec_hi, 0x11111111")
    if "H" not in cfg.ABL: a("buffer_store_dwordx4 v[60:63], v9, s[52:55], s9 offen sc1")
    a("s_mov_b64 exec, -1")
    a.label(Lnh)
    stamp(4)
    a("s_mov_b32 s56, 0xaaaaaaaa"); a("s_mov_b32 s57, 0xaaaaaaaa")
    a("s_cmp_eq_u32 s3, 1"); a.branch("s_cbranch_scc1 L_aux1", flush=False)
    a("s_cmp_eq_u32 s3, 2"); a.branch("s_cbranch_scc1 L_aux2", flush=False)
    a("s_cmp_eq_u32 s3, 3"); a.branch("s_cbranch_scc1 L_aux3", flush=False)
    lds_wait(C_CLKQ, 1, 0x310, sleep=cfg.LS)
    a("v_lshlrev_b32 v18, 5, v0")
    a("s_lshl_b32 s9, s4, 2"); a("s_add_u32 s9, s9, s6"); a("s_lshl_b32 s9, s9, 13"); a(f"s_add_u32 s9, s9, {QBUF}")
    a("s_add_u32 s10, s9, 4096")
    ld = [f"buffer_load_dwordx4 v[{64+8*rb+4*hf}:{67+8*rb+4*hf}], v18, s[52:55], {'s9' if rb < 2 else 's10'} offen offset:{(rb&1)*2048+16*hf} sc1" for rb in range(4) for hf in range(2)]
    if "Q" not in cfg.ABL: poll(ld, list(range(64, 96)), 41, 0x311, sleep=cfg.Q_SLEEP)
    for k in range(0, 8, 2):
        a(f"v_pk_add_f32 v[{64+k}:{65+k}], v[{64+k}:{65+k}], v[{72+k}:{73+k}]"); a(f"v_pk_add_f32 v[{80+k}:{81+k}], v[{80+k}:{81+k}], v[{88+k}:{89+k}]")
    for k in range(0, 8, 2): a(f"v_pk_add_f32 v[{64+k}:{65+k}], v[{64+k}:{65+k}], v[{80+k}:{81+k}]")
    for k in range(4): a(f"v_cvt_pk_bf16_f32 v{40+k}, v{64+2*k}, v{65+2*k}")
    a("v_lshlrev_b32 v18, 4, v0"); a(f"v_add_u32 v18, {Q_BASE}, v18")
    a("ds_write_b128 v18, v[40:43]")
    flag_write("v2", "v1", C_QRDY)
    stamp(5)
    a.branch("s_branch L_wo")
    a.label("L_aux1")
    a("s_cmp_lt_u32 s2, 224")
    a.branch("s_cbranch_scc0 L_wo", flush=False)
    srd(48, 30, 1792 * 1024)
    a("v_lshrrev_b32 v18, 4, v0"); a("v_and_b32 v19, 15, v0")
    a("v_lshlrev_b32 v20, 1, v18"); a("v_xor_b32 v20, v20, v19"); a("v_lshlrev_b32 v20, 4, v20"); a("v_lshl_add_u32 v20, v18, 10, v20")
    a("v_or_b32 v21, 4, v18"); a("v_lshlrev_b32 v21, 1, v21"); a("v_xor_b32 v21, v21, v19"); a("v_lshlrev_b32 v21, 4, v21"); a("v_lshl_add_u32 v21, v18, 10, v21")
    a("s_lshr_b32 s12, s2, 2"); a("s_lshl_b32 s9, s12, 15"); a("s_and_b32 s10, s2, 3"); a("s_lshl_b32 s10, s10, 8"); a("s_add_u32 s9, s9, s10")
    lds_wait(C_QS, 4, 0x323)
    for i in range(8):
        a(f"s_mov_b32 m0, {W1_BASE + 1024*i}")
        a(f"s_add_u32 s10, s9, {4096*i}")
        if "W" not in cfg.ABL: a(f"buffer_load_dwordx4 v{20 + ((i >> 1) & 1)}, s[48:51], s10 offen{NT} lds")
    if not cfg.FFN_LD:
        ffn2_setup()
        if cfg.H_AT: prog_wait(cfg.H_AT, 0x320, sleep=cfg.LS)
        else: lds_wait(C_CLKQ, 1, 0x320, sleep=cfg.LS)
        ffn2_rest(False)
    else:
        a("s_waitcnt vmcnt(0)")
        flag_write("v2", "v1", C_W2)
    stamp(5)
    a.branch("s_branch L_wo")
    a.label("L_aux2")
    lds_wait(C_P, 8, 0x330, sleep=cfg.LS)
    a(f"v_mov_b32 v18, {MX_BASE}")
    for h in range(4):
        a(f"ds_read_b128 v[{64+8*h}:{67+8*h}], v18 offset:{32*h}")
        a(f"ds_read_b128 v[{68+8*h}:{71+8*h}], v18 offset:{32*h+16}")
        a(f"ds_read_b128 v[{96+8*h}:{99+8*h}], v18 offset:{128+32*h}")
        a(f"ds_read_b128 v[{100+8*h}:{103+8*h}], v18 offset:{128+32*h+16}")
    a("s_waitcnt lgkmcnt(0)")
    for h in range(4):
        B = 64 + 8 * h
        a(f"v_max3_f32 v{44+h}, v{B}, v{B+1}, v{B+2}"); a(f"v_max3_f32 v{44+h}, v{44+h}, v{B+3}, v{B+4}")
        a(f"v_max3_f32 v{44+h}, v{44+h}, v{B+5}, v{B+6}"); a(f"v_max_f32 v{44+h}, v{44+h}, v{B+7}")
        B = 96 + 8 * h
        a(f"v_add_f32 v{48+h}, v{B}, v{B+1}")
        for k in range(2, 8): a(f"v_add_f32 v{48+h}, v{48+h}, v{B+k}")
    for h in range(4): a(f"v_cndmask_b32 v{52+h}, v{44+h}, v{48+h}, s[56:57]")
    tag4([52, 53, 54, 55])
    a("s_lshl_b32 s9, s4, 10"); a(f"s_add_u32 s9, s9, {MLBUF}")
    a("s_lshl_b32 s10, s5, 5"); a("s_add_u32 s10, s10, s9")
    a("v_lshlrev_b32 v18, 4, v0")
    a("s_mov_b64 exec, 3")
    if "M" not in cfg.ABL: a("buffer_store_dwordx4 v[52:55], v18, s[52:55], s10 offen sc1")
    a("s_mov_b64 exec, -1")
    stamp(5)
    prog_wait(cfg.ML_AT, 0x332, sleep=cfg.LS)
    if "M" not in cfg.ABL: poll(["buffer_load_dwordx4 v[64:67], v18, s[52:55], s9 offen sc1"], [64, 65, 66, 67], 41, 0x331, sleep=cfg.ML_SLEEP)
    for h in range(1, 4):
        a(f"s_cmp_eq_u32 s6, {h}")
        a("s_cselect_b64 s[62:63], -1, 0")
        a(f"v_cndmask_b32 v64, v64, v{64+h}, s[62:63]")
    a(f"v_mov_b32_dpp v65, v64 {DPP['x1']} row_mask:0xf bank_mask:0xf")
    a("v_cndmask_b32 v66, v64, v65, s[56:57]")
    a("v_cndmask_b32 v67, v65, v64, s[56:57]")
    a("v_mov_b32 v68, v66")
    for kind in ("x2", "r4", "r8"): dpp_op("v_max_f32", 68, kind)
    a("v_sub_f32 v66, v66, v68"); a(f"v_mul_f32 v66, {hex(LOG2E)}, v66"); a("v_exp_f32 v66, v66")
    a("v_mul_f32 v67, v66, v67")
    for kind in ("x2", "r4", "r8"): dpp_op("v_add_f32", 67, kind)
    a("v_rcp_f32 v67, v67")
    a("v_mul_f32 v66, v66, v67")
    a("v_lshrrev_b32 v18, 1, v0"); a("v_lshlrev_b32 v18, 2, v18"); a(f"v_add_u32 v18, {SC_BASE}, v18")
    a("ds_write_b32 v18, v66")
    flag_write("v2", "v1", C_SC)
    a.branch("s_branch L_wo")
    a.label("L_aux3")
    a("s_getreg_b32 s12, hwreg(HW_REG_XCC_ID, 0, 4)")
    a("s_lshl_b32 s12, s12, 16")
    for k in range(4): a(f"v_mov_b32 v{64+k}, s12")
    tag4([64, 65, 66, 67])
    a("s_lshl_b32 s9, s4, 9"); a(f"s_add_u32 s9, s9, {XCBUF}")
    a("s_lshl_b32 s10, s5, 4"); a("s_add_u32 s10, s10, s9")
    a("v_mov_b32 v18, 0")
    a("s_mov_b64 exec, 1")
    a("buffer_store_dwordx4 v[64:67], v18, s[52:55], s10 offen sc1")
    a("s_mov_b64 exec, -1")
    prog_wait(cfg.XC_AT, 0x343, sleep=cfg.LS)
    a("v_and_b32 v18, 31, v0"); a("v_lshlrev_b32 v18, 4, v18")
    poll(["buffer_load_dwordx4 v[64:67], v18, s[52:55], s9 offen sc1"], [64, 65, 66, 67], 41, 0x344, sleep=8)
    a("v_cmp_ne_u32 vcc, s12, v64")
    a("s_cmp_eq_u64 vcc, 0")
    a("s_cselect_b32 s9, 1, 2")
    if cfg.FORCE_REMOTE: a("s_mov_b32 s9, 2")
    a("v_mov_b32 v18, s9")
    flag_write("v2", "v18", C_LOC)
    if cfg.WARM:
        a("v_lshlrev_b32 v18, 4, v0")
        a("s_lshl_b32 s9, s4, 16"); a("s_lshl_b32 s10, s5, 11"); a("s_add_u32 s9, s9, s10"); a(f"s_add_u32 s9, s9, {OBUF}")
        a("buffer_load_dwordx4 v[64:67], v18, s[52:55], s9 offen sc1")
        a("buffer_load_dwordx4 v[68:71], v18, s[52:55], s9 offen offset:1024 sc1")
        a("s_waitcnt vmcnt(0)")
    stamp(5)
    a.label("L_wo")
    a("s_lshl_b32 s9, s4, 2"); a("s_add_u32 s15, s9, s6")
    a("v_lshlrev_b32 v12, 12, v6"); a("v_lshl_add_u32 v12, v7, 9, v12"); a("v_lshl_add_u32 v12, v5, 5, v12")
    a("s_lshl_b32 s9, s15, 14"); a("s_lshl_b32 s10, s3, 7"); a("s_add_u32 s9, s9, s10"); a(f"s_add_u32 s13, s9, {OBUF}")
    a("v_lshrrev_b32 v18, 1, v5"); a("v_lshlrev_b32 v15, 12, v18")
    a("v_lshl_add_u32 v15, v6, 5, v15"); a("v_and_b32 v18, 1, v5"); a("v_lshl_add_u32 v15, v18, 4, v15")
    a("s_lshl_b32 s10, s7, 15"); a("s_lshl_b32 s11, s15, 7"); a("s_add_u32 s10, s10, s11")
    a("s_lshl_b32 s11, s3, 13"); a("s_add_u32 s10, s10, s11"); a(f"s_add_u32 s14, s10, {SBUF}")
    a("v_lshlrev_b32 v10, 4, v0"); a("s_lshl_b32 s9, s3, 10"); a(f"s_add_u32 s9, s9, {DX_BASE}"); a("v_add_u32 v105, s9, v10")
    a(f"v_add_u32 v104, {DX_BASE}, v10")
    a("v_lshl_add_u32 v10, v6, 3, v7"); a("v_lshlrev_b32 v10, 2, v10"); a(f"v_add_u32 v10, {SC_BASE}, v10")
    prog_wait(13, 0x356, sleep=cfg.LS)
    lds_wait(C_SC, 1, 0x357)
    a("ds_read2_b32 v[98:99], v10 offset0:0 offset1:4")
    loads = [f"buffer_load_dwordx4 v[{16+4*i}:{19+4*i}], v12, s[52:55], s13 offen offset:{o} sc1" for i, o in enumerate((0, 16, 2048, 2064))]
    def wo_frags():
        for ks in range(4):
            a(f"ds_read_b64_tr_b16 v[{64+4*ks}:{65+4*ks}], v13 offset:{4096*ks}")
            a(f"ds_read_b64_tr_b16 v[{66+4*ks}:{67+4*ks}], v13 offset:{4096*ks+512}")
    if cfg.EARLY_POLL:
        prog_wait(16, 0x358, vt=36)
        lds_wait(C_O, 8, 0x352, vt="v36", sleep=0)
        for _ in range(cfg.O_NOP): a("s_nop 15")
        for l in loads: a(l)
        prog_wait(17, 0x350, vt=36, sleep=0)
        stamp(6)
        wo_frags()
        poll(loads, list(range(16, 32)), 3, 0x351, adaptive=True, preloaded=True)
    else:
        prog_wait(17, 0x350)
        stamp(6)
        wo_frags()
        lds_wait(C_O, 8, 0x352, sleep=0)
        poll(loads, list(range(16, 32)), 3, 0x351, adaptive=True)
    stamp(7)
    for k in range(0, 8, 2): a(f"v_pk_mul_f32 v[{16+k}:{17+k}], v[{16+k}:{17+k}], v[98:99] op_sel_hi:[1,0]")
    for k in range(0, 8, 2): a(f"v_pk_fma_f32 v[{16+k}:{17+k}], v[{24+k}:{25+k}], v[98:99], v[{16+k}:{17+k}] op_sel:[0,1,0] op_sel_hi:[1,1,1]")
    for kind in ("x1", "x2"):
        for k in range(8): dpp_op("v_add_f32", 16 + k, kind)
    for k in range(4): a(f"v_cvt_pk_bf16_f32 v{8+k}, v{16+2*k}, v{17+2*k}")
    a("ds_write_b128 v105, v[8:11]")
    lds_add1(C_D)
    lds_wait(C_D, 4, 0x353, sleep=0)
    for w in range(4): a(f"ds_read_b128 v[{48+4*w}:{51+4*w}], v104 offset:{1024*w}")
    for ks in range(4):
        a(f"s_waitcnt lgkmcnt({3-ks})")
        a(f"v_mfma_f32_16x16x32_bf16 v[32:35], v[{64+4*ks}:{67+4*ks}], v[{48+4*ks}:{51+4*ks}], " + ("0" if ks == 0 else "v[32:35]"))
    tag4([32, 33, 34, 35], rnd=not cfg.TRUNC)
    a("s_mov_b32 exec_lo, 0x11111111"); a("s_mov_b32 exec_hi, 0x11111111")
    a("buffer_store_dwordx4 v[32:35], v15, s[52:55], s14 offen sc1")
    if cfg.S_GATE: lds_add1(C_S)
    else: a("s_mov_b64 exec, -1")
    stamp(8)
    stamps_out(9, dbgmap={"wave": 3, 0: 2, 1: 3, 2: 4, 3: 5, 4: 6, 6: 7, 7: 8, 8: 9})
    a("s_endpgm")
    a.label("L_fail")
    a("v_mov_b32 v4, s61"); a("s_lshl_b32 s9, s3, 2"); a("v_mov_b32 v5, s9")
    a("s_mov_b64 exec, 1")
    a("global_store_dword v5, v4, s[34:35]")
    a.label("L_exit", flush=False)
    a("s_endpgm")
    return a

def wrap(a, lds=LDS_SIZE):
    hdr = open(REF).read().split("; Override launch geometry")[0]
    s = hdr
    s += "; Generated by gen/k4.py (hand-written schedule, see comments).\n"
    s += f"; @launch grid=(256,1,1) block=(1024,1,1) lds={lds}\n"
    s += '.amdgcn_target "amdgcn-amd-amdhsa--gfx950"\n.text\n'
    s += f".globl {KNAME}\n.p2align 8\n.type {KNAME},@function\n{KNAME}:\n"
    s += a.text().replace("CODE_KIB", "(L_code_end-" + KNAME + ")/1024").replace("KERNEL_START", KNAME)
    s += "L_code_end:\n"
    s += '.section .rodata,"a"\n.p2align 6\n'
    s += f".amdhsa_kernel {KNAME}\n"
    s += "  .amdhsa_next_free_vgpr 128\n  .amdhsa_next_free_sgpr 102\n  .amdhsa_accum_offset 128\n"
    s += "  .amdhsa_group_segment_fixed_size 0\n  .amdhsa_kernarg_size 88\n  .amdhsa_user_sgpr_count 2\n"
    s += "  .amdhsa_user_sgpr_kernarg_segment_ptr 1\n  .amdhsa_system_sgpr_workgroup_id_x 1\n"
    s += ".end_amdhsa_kernel\n"
    return s

if __name__ == "__main__":
    out = sys.argv[1]
    class C(Cfg): pass
    for kv in sys.argv[2:]:
        k, v = kv.split("=")
        cur = getattr(Cfg, k)
        if isinstance(cur, bool): val = (v == "1")
        elif isinstance(cur, int): val = int(v, 0)
        else: val = v.replace("_", " ")
        setattr(C, k, val)
    a = build(C)
    open(out, "w").write(wrap(a))
    print(out, "instructions:", a.ninst)
```
